```python
import torch

def _softmax(x, axis=-1):
    return torch.softmax(x, dim=axis)
def _gelu(x):
    return torch.nn.functional.gelu(x, approximate="tanh")
def _silu(x):
    return torch.nn.functional.silu(x)
def _sigmoid(x):
    return torch.sigmoid(x)
def _layernorm(x, axis=-1, eps=1e-5):
    m = x.mean(dim=axis, keepdim=True)
    v = x.var(dim=axis, keepdim=True, unbiased=False)
    return (x - m) / torch.sqrt(v + eps)
def _scatter_add(tgt, idx, src, axis=0):
    return tgt.clone().index_add_(axis, idx, src)
def _segment_sum(src, seg, n):
    out = torch.zeros((n,) + src.shape[1:], dtype=src.dtype)
    return out.index_add_(0, seg, src)
def _pad(x, pw):
    flat = tuple(v for pair in reversed(pw) for v in pair)
    return torch.nn.functional.pad(x, flat)

kernel_name = 'concat_heads__mha_block__spectral_gfnet__prompt'

def setup_inputs():

    _w = (lambda a: (lambda t: t.to(torch.bfloat16) if t.is_floating_point() else t)(torch.as_tensor(a)))
    def _A_setup():
        B, S, D, H = 1, 2048, 512, 32
        return {
            "x": _w((lambda *s: torch.randn(*s, dtype=torch.bfloat16) * 0.2)(B, S, D)),
            "wqkv": _w((lambda *s: torch.randn(*s, dtype=torch.bfloat16) * 0.2)(D, 3 * D)),
            "wo": _w((lambda *s: torch.randn(*s, dtype=torch.bfloat16) * 0.05)(D, D)),
        }
    _A_in = _A_setup()

    def _B_setup():
        B, S, D = 1, 2048, 512
        Df = D // 2 + 1
        return {
            "x": _w((lambda *s: torch.randn(*s, dtype=torch.bfloat16) * 0.05)(B, S, D)),
            "w_r": _w((lambda *s: torch.randn(*s, dtype=torch.bfloat16) * 6.4)(S, Df) * 0.02),
            "w_i": _w((lambda *s: torch.randn(*s, dtype=torch.bfloat16) * 6.4)(S, Df) * 0.02),
        }
    _B_in = _B_setup()

    return {
        "A_x": _A_in["x"],
        "A_wqkv": _A_in["wqkv"],
        "A_wo": _A_in["wo"],
        "B_x": _B_in["x"],
        "B_w_r": _B_in["w_r"],
        "B_w_i": _B_in["w_i"],
    }

def reference(A_x, A_wqkv, A_wo, B_x, B_w_r, B_w_i):
    def _A_ref(x, wqkv, wo):
        B, S, D = x.shape
        H = 32
        Dh = D // H
        qkv = (lambda x, *d: x.permute(*d))((x @ wqkv).reshape(B, S, 3, H, Dh), 2, 0, 3, 1, 4)
        q, k, v = qkv[0], qkv[1], qkv[2]
        scores = torch.einsum("bhqd,bhkd->bhqk", q, k) * (Dh ** -0.5)
        p = _softmax(scores, axis=-1)
        o = torch.einsum("bhqk,bhkd->bhqd", p, v)
        return (lambda x, *d: x.permute(*d))(o, 0, 2, 1, 3).reshape(B, S, D) @ wo

    def _B_ref(x, w_r, w_i):
        B, S, D = x.shape
        X = (lambda x, axes=(-2,-1): torch.fft.rfft2(x.float(), dim=axes))(x, axes=(-2, -1))
        W = w_r + 1j * w_i
        X = X * W
        y = (lambda x, s, axes=(-2,-1): torch.fft.irfft2(x, s=s, dim=axes).to(torch.bfloat16))(X, (S, D), axes=(-2, -1))
        return y

    a = _A_ref(A_x, A_wqkv, A_wo)
    b = _B_ref(B_x, B_w_r, B_w_i)
    return torch.concatenate([a, b], axis=-1)
```

```python
import re
class Asm:
    def __init__(self):
        self.lines = []
        self.vm = []
    def __call__(self, s):
        for ln in s.split('\n'):
            ln = ln.strip()
            if ln: self.lines.append(ln)
    def label(self, l): self.lines.append(l + ':')
    def comment(self, c): self.lines.append('; ' + c)
    def vmem(self, s, tag):
        self(s); self.vm.append(tag)
    def vm_wait(self, tag):
        idx = [i for i, t in enumerate(self.vm) if t == tag]
        assert idx, f'no vm op with tag {tag}'
        n = len(self.vm) - 1 - idx[-1]
        assert n <= 63, n
        self(f's_waitcnt vmcnt({n})')
        return n
    def vm_reset(self): self.vm = []

def vr(a, n=1):
    return f'v{a}' if n == 1 else f'v[{a}:{a+n-1}]'
def sr(a, n=1):
    return f's{a}' if n == 1 else f's[{a}:{a+n-1}]'

REG_RE = re.compile(r'^(-|\|)?(abs\()?([vsa])(\d+)\)?\|?$')
RNG_RE = re.compile(r'^(-)?([vsa])\[(\d+):(\d+)\]$')
def regs_of(op):
    op = op.strip()
    m = RNG_RE.match(op)
    if m: return [(m.group(2), i) for i in range(int(m.group(3)), int(m.group(4)) + 1)]
    m = REG_RE.match(op)
    if m: return [(m.group(3), int(m.group(4)))]
    if op in ('vcc', 'vcc_lo', 'vcc_hi'): return [('s', 'vcc')]
    if op in ('exec', 'exec_lo', 'exec_hi'): return [('s', 'exec')]
    if op == 'm0': return [('s', 'm0')]
    return []
TRANS = ('v_exp_f32', 'v_log_f32', 'v_rcp_f32', 'v_rsq_f32', 'v_sqrt_f32', 'v_sin_f32', 'v_cos_f32', 'v_exp_f16')
class Ins:
    __slots__ = ('text', 'mn', 'kind', 'w', 'r', 'passes', 'srcC', 'srcAB', 'lds_dma', 'wide_store', 'nstates')
def parse(text):
    t = text.split(';')[0].strip()
    ins = Ins(); ins.text = text; ins.w = []; ins.r = []; ins.passes = 0; ins.srcC = []; ins.srcAB = []
    ins.lds_dma = False; ins.wide_store = False; ins.nstates = 1
    if not t or t.endswith(':') or t.startswith('.'):
        ins.kind = 'meta'; ins.mn = ''; ins.nstates = 0; return ins
    parts = t.split(None, 1); mn = parts[0]; ins.mn = mn
    ops = [] if len(parts) == 1 else [o.strip() for o in re.split(r',(?![^\[]*\])', parts[1])]
    mods = ''
    if ops:
        toks = ops[-1].split()
        if len(toks) > 1: ops[-1] = toks[0]; mods = ' '.join(toks[1:])
    R = [regs_of(o) for o in ops]
    flat = lambda L: [x for l in L for x in l]
    if mn.startswith('v_mfma'):
        ins.kind = 'mfma'; ins.w = R[0]; ins.srcAB = R[1] + R[2]; ins.srcC = R[3]; ins.r = ins.srcAB + ins.srcC
        ins.passes = 8 if '32x32' in mn else 4
    elif mn.startswith('v_cmp'):
        ins.kind = 'valu'; ins.w = R[0]; ins.r = flat(R[1:])
    elif mn.startswith('v_permlane'):
        ins.kind = 'valu'; ins.w = R[0] + R[1]; ins.r = R[0] + R[1]
    elif mn in ('v_readfirstlane_b32', 'v_readlane_b32'):
        ins.kind = 'valu'; ins.w = R[0]; ins.r = flat(R[1:])
    elif mn in ('v_add_co_u32', 'v_addc_co_u32', 'v_sub_co_u32'):
        ins.kind = 'valu'; ins.w = R[0] + R[1]; ins.r = flat(R[2:])
    elif mn.startswith('v_'):
        ins.kind = 'valu'; ins.w = R[0]; ins.r = flat(R[1:])
        if mn.startswith(('v_fmac', 'v_pk_fmac', 'v_mac')): ins.r += R[0]
        if mn.startswith('v_cndmask') and len(ops) == 3: ins.r += [('s', 'vcc')]
    elif mn.startswith(('buffer_load', 'global_load')):
        ins.kind = 'vmem'
        if 'lds' in mods.split() or 'lds' in mn:
            ins.lds_dma = True; ins.r = flat(R) + [('s', 'm0')]
        else:
            ins.w = R[0]; ins.r = flat(R[1:])
    elif mn.startswith(('buffer_store', 'global_store', 'buffer_atomic', 'global_atomic')):
        ins.kind = 'vmem'; ins.r = flat(R)
        if 'x4' in mn or 'x3' in mn:
            ins.wide_store = True
            ins.srcC = R[0] if mn.startswith('buffer') else R[1]
    elif mn.startswith('ds_read') or mn.startswith('ds_bpermute') or mn.startswith('ds_swizzle'):
        ins.kind = 'ds'; ins.w = R[0]; ins.r = flat(R[1:])
    elif mn.startswith('ds_'):
        ins.kind = 'ds'; ins.r = flat(R)
    elif mn == 's_nop':
        ins.kind = 'salu'; ins.nstates = int(ops[0], 0) + 1
    elif mn.startswith(('s_cbranch', 's_branch', 's_barrier', 's_waitcnt', 's_endpgm', 's_setprio', 's_sleep')):
        ins.kind = 'salu'
    elif mn.startswith('s_cmp'):
        ins.kind = 'salu'; ins.r = flat(R)
    elif mn.startswith(('s_load', 's_memtime', 's_getreg', 's_getpc')):
        ins.kind = 'salu'; ins.w = R[0]; ins.r = flat(R[1:])
    elif mn.startswith('s_'):
        ins.kind = 'salu'; ins.w = R[0]; ins.r = flat(R[1:])
        if 'saveexec' in mn: ins.w = ins.w + [('s', 'exec')]; ins.r += [('s', 'exec')]
    elif mn.startswith('buffer_wbl2') or mn.startswith('buffer_inv'):
        ins.kind = 'vmem'
    else:
        raise ValueError('unknown instr: ' + text)
    return ins
def need(prev, cur):
    n = 0
    pw = set(prev.w);
    if not pw and not prev.wide_store and prev.kind != 'mfma': return 0
    cr = set(cur.r); cw = set(cur.w)
    if prev.kind == 'valu':
        vw = {x for x in pw if x[0] in 'va'}; sw = {x for x in pw if x[0] == 's'}
        if cur.kind == 'mfma' and vw & cr: n = max(n, 2)
        if cur.kind == 'valu':
            if prev.mn.replace('_e64', '') in TRANS and cur.mn.replace('_e64', '') not in TRANS and vw & cr: n = max(n, 1)
            if cur.mn.startswith('v_permlane') and vw & cr: n = max(n, 2)
            if cur.mn in ('v_readfirstlane_b32', 'v_readlane_b32') and vw & cr: n = max(n, 1)
            if sw & cr: n = max(n, 2)
            if 'dpp' in cur.text and vw & cr: n = max(n, 2)
        if cur.kind == 'vmem' and sw & cr: n = max(n, 5)
        if ('s', 'exec') in sw and cur.kind == 'mfma': n = max(n, 4)
        if cur.kind == 'salu' and sw & cr: n = max(n, 4)
    if prev.kind == 'mfma':
        big = prev.passes == 8
        if cur.kind == 'mfma':
            if pw & set(cur.srcAB): n = max(n, 12 if big else 8)
            if pw & set(cur.srcC):
                if not (prev.w == cur.srcC and prev.passes == cur.passes): n = max(n, 10 if big else 6)
            if pw & cw and prev.w != cur.w: n = max(n, 12 if big else 8)
        elif cur.kind in ('valu', 'vmem', 'ds'):
            if pw & (cr | cw): n = max(n, 12 if big else 8)
            if cur.kind == 'valu' and set(prev.srcC) & cw: n = max(n, 7 if big else 3)
    if prev.kind == 'salu' and ('s', 'm0') in pw and cur.lds_dma: n = max(n, 1)
    if prev.wide_store and set(prev.srcC) & cw:
        n = max(n, 2 if cur.kind == 'valu' else 1)
    return n
def hazard_pass(lines, window=14, verbose=False):
    out = []; hist = []; ninserted = 0
    for ln in lines:
        ins = parse(ln)
        if ins.kind == 'meta':
            out.append(ln); continue
        req = 0; dist = 0
        for p in reversed(hist[-window:]):
            nd = need(p, ins)
            if nd > dist: req = max(req, nd - dist)
            dist += p.nstates
            if dist >= 13: break
        if req > 0:
            k = req
            while k > 0:
                c = min(k, 16); nop = f's_nop {c-1}'; out.append(nop); hist.append(parse(nop)); k -= c
            ninserted += req
            if verbose: print('hazard: +%d before %s' % (req, ln))
        out.append(ln); hist.append(ins)
    return out, ninserted
def check_loop(lines_body):
    two = list(lines_body) + list(lines_body)
    out, n = hazard_pass(two)
    out1, n1 = hazard_pass(list(lines_body))
    return n - 2 * n1
```

```python
from asmlib import *
from maps import *
SLOT = 28672; B1X = 114688; WPR = 123904; EXC = 133120; K1_LDS = 142592
QSCALE = 0x3eb8aa3b
def srd(a, d, ptr, size):
    a(f's_mov_b32 s{d}, s{ptr}'); a(f's_mov_b32 s{d+1}, s{ptr+1}'); a(f's_mov_b32 s{d+2}, {size}'); a(f's_mov_b32 s{d+3}, 0x20000')
def gen_k1(name, tlabel):
    a = Asm()
    X, WQ, BX, WSEL, WS, TB = 4, 8, 12, 16, 24, 28
    sW, sTB, sHP, sT, sXROW, sWOFF, sT2, sT3 = 32, 33, 34, 35, 52, 53, 54, 55
    a('s_cmp_ge_u32 s2, 256'); a('s_cbranch_scc1 L_k1_end')
    a('s_load_dwordx16 s[36:51], s[0:1], 0'); a('s_load_dwordx2 s[56:57], s[0:1], 64')
    a('s_getpc_b64 s[58:59]'); a.label('L_k1_pc')
    a(f's_add_u32 s58, s58, {tlabel}-L_k1_pc'); a('s_addc_u32 s59, s59, 0')
    a('v_lshrrev_b32 v2, 6, v0'); a('v_and_b32 v3, 63, v0'); a('v_lshlrev_b32 v1, 4, v3')
    a(f'v_readfirstlane_b32 s{sW}, v2')
    a('s_and_b32 s60, s2, 7'); a('s_lshr_b32 s61, s2, 3')
    a('s_lshr_b32 s62, s60, 1'); a('s_lshl_b32 s62, s62, 2'); a('s_and_b32 s63, s61, 3'); a(f's_add_u32 s{sTB}, s62, s63')
    a('s_and_b32 s62, s60, 1'); a('s_lshl_b32 s62, s62, 3'); a('s_lshr_b32 s63, s61, 2'); a(f's_add_u32 s{sHP}, s62, s63')
    a('s_waitcnt lgkmcnt(0)')
    srd(a, X, 36, 2048 * 512 * 2); srd(a, WQ, 38, 512 * 1536 * 2); srd(a, BX, 42, 2048 * 512 * 2)
    a(f's_cmp_lt_u32 s{sW}, 2'); a(f's_cselect_b32 s{WSEL}, s44, s46'); a(f's_cselect_b32 s{WSEL+1}, s45, s47')
    a(f's_mov_b32 s{WSEL+2}, {2048*257*2}'); a(f's_mov_b32 s{WSEL+3}, 0x20000')
    srd(a, WS, 56, WS_USED); srd(a, TB, 58, 10240)
    a('s_lshr_b32 s60, s2, 6'); a('s_lshl_b32 s60, s60, 2')
    a(f's_and_b32 s61, s{sW}, 1'); a('s_lshl_b32 s61, s61, 1')
    a(f's_lshr_b32 s62, s{sW}, 1'); a('s_lshl_b32 s62, s62, 4')
    a('s_add_u32 s60, s60, s61'); a('s_add_u32 s60, s60, s62')
    a('s_lshl_b32 s60, s60, 6'); a('s_and_b32 s61, s2, 63'); a('s_add_u32 s60, s60, s61')
    a('s_lshl_b32 s60, s60, 10')
    a(f's_mul_i32 s61, s{sW}, 2304'); a(f's_add_u32 s61, s61, {B1X}')
    a('s_mov_b32 m0, s61'); a('s_add_u32 s61, s61, 1152')
    a.vmem(f'buffer_load_dwordx4 v1, s[{BX}:{BX+3}], s60 offen lds', 'b1x')
    a('s_mov_b32 m0, s61'); a('s_add_u32 s60, s60, 65536')
    a.vmem(f'buffer_load_dwordx4 v1, s[{BX}:{BX+3}], s60 offen lds', 'b1x')
    for q in range(10):
        if q % 4 == 0: a(f's_mov_b32 s60, {q*1024}')
        a.vmem(f'buffer_load_dwordx4 {vr(112+4*q,4)}, v1, s[{TB}:{TB+3}], s60 offen offset:{(q%4)*1024}', 'b1t')
    a('s_and_b32 s60, s2, 15'); a('s_lshr_b32 s61, s2, 4'); a('s_lshl_b32 s61, s61, 7')
    a('s_add_u32 s60, s60, s61'); a(f's_and_b32 s61, s{sW}, 1'); a('s_lshl_b32 s61, s61, 4'); a('s_add_u32 s60, s60, s61')
    a('s_mul_i32 s60, s60, 514')
    a(f's_mul_i32 s61, s{sW}, {4*576}'); a(f's_add_u32 s61, s61, {WPR}')
    a('v_min_u32 v13, 498, v1')
    a('s_mov_b32 exec_hi, 1')
    for u in range(4):
        a('s_mov_b32 m0, s61'); a('s_add_u32 s61, s61, 576')
        a.vmem(f'buffer_load_dwordx4 v13, s[{WSEL}:{WSEL+3}], s60 offen lds', 'wp')
        if u < 3: a(f's_add_u32 s60, s60, {32*514}')
    a('s_mov_b64 exec, -1')
    a('v_lshrrev_b32 v4, 3, v3'); a('v_lshlrev_b32 v4, 10, v4'); a('v_and_b32 v5, 7, v3'); a('v_lshrrev_b32 v6, 4, v3')
    a('v_xor_b32 v5, v5, v6'); a('v_lshlrev_b32 v5, 4, v5'); a('v_add_u32 v106, v4, v5'); a('v_xor_b32 v107, 64, v106')
    for u in range(3):
        a(f'v_add_u32 v4, {64*u}, v3'); a('v_mul_u32_u24 v5, 171, v4'); a('v_lshrrev_b32 v5, 11, v5')
        a('v_mul_u32_u24 v6, 12, v5'); a('v_sub_u32 v6, v4, v6')
        a(f'v_lshl_add_u32 v5, v2, 4, v5'); a('v_mul_u32_u24 v5, 3072, v5')
        a('v_lshrrev_b32 v7, 2, v6'); a('v_lshlrev_b32 v7, 10, v7'); a('v_and_b32 v6, 3, v6'); a('v_lshlrev_b32 v6, 4, v6')
        a(f'v_add3_u32 v{108+u}, v5, v6, v7')
    a(f's_lshl_b32 s{sXROW}, s{sTB}, 7'); a(f's_lshl_b32 s60, s{sW}, 5'); a(f's_add_u32 s{sXROW}, s{sXROW}, s60'); a(f's_lshl_b32 s{sXROW}, s{sXROW}, 10')
    a(f's_lshl_b32 s{sWOFF}, s{sHP}, 6')
    a(f's_lshl_b32 s{sT2}, s{sW}, 12')
    a(f's_mul_i32 s{sT3}, s{sW}, 3072')
    def dma_stage(st):
        slot = (st % 4) * SLOT
        for q in range(4):
            a(f's_add_u32 s60, s{sT2}, {slot + q*1024}'); a('s_mov_b32 m0, s60')
            a(f's_add_u32 s61, s{sXROW}, {q*8192 + st*128}')
            a.vmem(f'buffer_load_dwordx4 v{106 + (q&1)}, s[{X}:{X+3}], s61 offen lds', f'g{st}')
        a(f's_add_u32 s61, s{sWOFF}, {st*64*3072}')
        for u in range(3):
            a(f's_add_u32 s60, s{sT3}, {slot + 16384 + u*1024}'); a('s_mov_b32 m0, s60')
            if u == 0: a('s_nop 0')
            a.vmem(f'buffer_load_dwordx4 v{108+u}, s[{WQ}:{WQ+3}], s61 offen lds', f'g{st}')
    for st in range(4): dma_stage(st)
    a('v_and_b32 v4, 31, v3'); a('v_lshrrev_b32 v5, 5, v3'); a('v_bfe_u32 v6, v4, 1, 3'); a('v_xor_b32 v5, v5, v6')
    a('v_lshlrev_b32 v5, 4, v5'); a('v_lshl_add_u32 v5, v4, 7, v5'); a('v_lshl_add_u32 v5, v2, 12, v5')
    for ks in range(4):
        a(f'v_xor_b32 v{96+ks}, {32*ks}, v5'); a(f'v_add_u32 v{100+ks}, {2*SLOT}, v{96+ks}')
    a('v_and_b32 v4, 15, v3'); a('v_lshrrev_b32 v5, 5, v3'); a('v_lshlrev_b32 v5, 3, v5'); a('v_lshrrev_b32 v6, 2, v4'); a('v_add_u32 v5, v5, v6')
    a('v_mul_u32_u24 v5, 192, v5'); a('v_bfe_u32 v6, v3, 4, 1'); a('v_lshlrev_b32 v6, 5, v6'); a('v_and_b32 v7, 3, v4'); a('v_lshlrev_b32 v7, 3, v7')
    a('v_add3_u32 v104, v5, v6, v7'); a(f'v_add_u32 v105, {2*SLOT}, v104')
    a('v_lshrrev_b32 v5, 5, v3'); a('v_lshlrev_b32 v5, 3, v5'); a('v_lshrrev_b32 v6, 2, v4'); a('v_add_u32 v5, v5, v6'); a('v_lshlrev_b32 v5, 5, v5')
    a('v_bfe_u32 v6, v3, 4, 1'); a('v_mul_u32_u24 v6, 1152, v6'); a('v_add3_u32 v5, v5, v6, v7')
    a('v_mul_u32_u24 v6, 2304, v2'); a('v_add_u32 v5, v5, v6'); a(f'v_add_u32 v8, {B1X}, v5')
    a.vm_wait('b1t')
    for kap in range(2):
        for rho in range(2):
            a(f'ds_read_b64_tr_b16 {vr(152+4*kap+2*rho,2)}, v8 offset:{(16*kap+4*rho)*32}')
    a('s_waitcnt lgkmcnt(0)')
    DRE, DIM = 160, 176
    a(f'v_mfma_f32_32x32x16_bf16 {vr(DRE,16)}, {vr(152,4)}, {vr(112,4)}, 0')
    a(f'v_mfma_f32_32x32x16_bf16 {vr(DIM,16)}, {vr(152,4)}, {vr(120,4)}, 0')
    a(f'v_mfma_f32_32x32x16_bf16 {vr(DRE,16)}, {vr(156,4)}, {vr(116,4)}, {vr(DRE,16)}')
    a(f'v_mfma_f32_32x32x16_bf16 {vr(DIM,16)}, {vr(156,4)}, {vr(124,4)}, {vr(DIM,16)}')
    a('v_and_b32 v4, 31, v3'); a('v_mul_u32_u24 v5, 144, v4'); a('v_lshrrev_b32 v6, 5, v3'); a('v_lshlrev_b32 v6, 6, v6')
    a('v_lshlrev_b32 v7, 2, v2'); a('v_add3_u32 v5, v5, v6, v7'); a(f'v_add_u32 v9, {EXC}, v5')
    TWC, TWS = 136, 144
    for p in range(8):
        r0 = 2 * p; c = TWC + (r0 & 7); s = TWS + (r0 & 7)
        a(f'v_pk_mul_f32 v[10:11], {vr(DRE+r0,2)}, {vr(c,2)}')
        a(f'v_pk_mul_f32 v[12:13], {vr(DIM+r0,2)}, {vr(c,2)}')
        a(f'v_pk_fma_f32 v[10:11], {vr(DIM+r0,2)}, {vr(s,2)}, v[10:11]')
        a(f'v_pk_fma_f32 v[12:13], {vr(DRE+r0,2)}, {vr(s,2)}, v[12:13] neg_lo:[0,1,0] neg_hi:[0,1,0]')
        a(f'v_cvt_pk_bf16_f32 v{192+p}, v10, v11'); a(f'v_cvt_pk_bf16_f32 v{200+p}, v12, v13')
    D2 = (208, 224)
    for r in range(2):
        a(f'v_mfma_f32_32x32x16_bf16 {vr(D2[r],16)}, {vr(128,4)}, {vr(192+4*r,4)}, 0')
    for r in range(2):
        a(f'v_mfma_f32_32x32x16_bf16 {vr(D2[r],16)}, {vr(132,4)}, {vr(200+4*r,4)}, {vr(D2[r],16)}')
    for rr in range(8):
        a(f'v_cvt_pk_bf16_f32 v{10+(rr&1)}, v{D2[0]+rr}, v{D2[1]+rr}')
        a(f'ds_write_b32 v9, v{10+(rr&1)} offset:{4608*(rr>>2) + 32*((rr>>1)&1) + 16*(rr&1)}')
    a('v_cvt_pk_bf16_f32 v10, v216, v232'); a('v_mov_b32 v11, 0'); a(f'v_lshlrev_b32 v12, 2, v2'); a(f'v_add_u32 v12, {EXC+9216}, v12')
    a('s_mov_b64 exec, 1')
    a('ds_write_b32 v12, v10'); a('ds_write_b32 v12, v11 offset:16')
    a('s_mov_b64 exec, -1')
    a.vm_wait('g0'); a('s_waitcnt lgkmcnt(0)'); a('s_barrier')
    XF = (64, 68); WF = (72, 84)
    def reads(st, ks, buf):
        slot = st % 4; hi = slot >= 2; so = (slot & 1) * SLOT
        a(f'ds_read_b128 {vr(XF[buf],4)}, v{(100 if hi else 96)+ks} offset:{so}')
        for jb in range(3):
            for rho in range(2):
                a(f'ds_read_b64_tr_b16 {vr(WF[buf]+4*jb+2*rho,2)}, v{105 if hi else 104} offset:{so + 16384 + (16*ks+4*rho)*192 + jb*64}')
    reads(0, 0, 0)
    a('v_lshrrev_b32 v4, 3, v0'); a('v_mul_u32_u24 v4, 144, v4'); a('v_and_b32 v5, 7, v0'); a('v_lshl_add_u32 v4, v5, 4, v4'); a(f'v_add_u32 v4, {EXC}, v4')
    a('ds_read_b128 v[112:115], v4'); a('ds_read_b128 v[116:119], v4 offset:4608')
    a('v_and_b32 v5, 15, v3'); a('v_lshrrev_b32 v6, 2, v5'); a('v_mul_u32_u24 v6, 576, v6'); a('v_and_b32 v5, 3, v5'); a('v_lshlrev_b32 v5, 3, v5')
    a('v_lshrrev_b32 v7, 4, v3'); a('v_lshlrev_b32 v7, 5, v7'); a('v_add3_u32 v5, v5, v6, v7'); a('v_lshl_add_u32 v5, v2, 7, v5'); a(f'v_add_u32 v5, {WPR}, v5')
    for rho in range(4):
        a(f'ds_read_b64_tr_b16 {vr(120+2*rho,2)}, v5 offset:{rho*2304}')
    a(f's_mul_i32 s60, s2, {BLK}'); a(f's_add_u32 s61, s60, {U1}'); a(f's_add_u32 s62, s60, {WT}')
    a('v_lshlrev_b32 v6, 4, v0')
    a('v_lshrrev_b32 v7, 1, v2'); a('v_lshlrev_b32 v7, 7, v7'); a('v_and_b32 v10, 31, v3'); a('v_lshl_add_u32 v7, v10, 2, v7')
    a('v_and_b32 v10, 1, v2'); a('v_lshl_add_u32 v7, v10, 1, v7'); a('v_lshrrev_b32 v10, 5, v3'); a('v_add_u32 v7, v7, v10'); a('v_lshlrev_b32 v7, 5, v7')
    a('s_waitcnt lgkmcnt(4)')
    a.vmem(f'buffer_store_dwordx4 v[112:115], v6, s[{WS}:{WS+3}], s61 offen', 'st')
    a('s_add_u32 s63, s61, 4096')
    a.vmem(f'buffer_store_dwordx4 v[116:119], v6, s[{WS}:{WS+3}], s63 offen', 'st')
    a('s_waitcnt lgkmcnt(0)')
    a.vmem(f'buffer_store_dwordx4 v[120:123], v7, s[{WS}:{WS+3}], s62 offen', 'st')
    a.vmem(f'buffer_store_dwordx4 v[124:127], v7, s[{WS}:{WS+3}], s62 offen offset:16', 'st')
    a(f's_cmp_lg_u32 s{sW}, 0'); a('s_cbranch_scc1 L_k1_nonyq')
    a('s_add_u32 s61, s61, 8192'); a('s_add_u32 s62, s62, 8192')
    a('s_mov_b64 exec, 0xffff')
    a('v_mul_u32_u24 v4, 576, v3'); a(f'v_add_u32 v4, {WPR+526}, v4'); a('ds_read_u16 v10, v4')
    a('v_lshlrev_b32 v5, 2, v3'); a(f'v_add_u32 v4, {EXC+9216}, v5'); a('ds_read_b32 v11, v4')
    a('v_lshlrev_b32 v4, 1, v3')
    a('s_waitcnt lgkmcnt(0)')
    a(f'buffer_store_short v10, v4, s[{WS}:{WS+3}], s62 offen')
    a('s_mov_b64 exec, 0xff')
    a(f'buffer_store_dword v11, v5, s[{WS}:{WS+3}], s61 offen')
    a('s_mov_b64 exec, -1')
    a.label('L_k1_nonyq')
    ACC = (16, 32, 48)
    def mfmas(buf, first):
        x = vr(XF[buf], 4)
        for jb in range(3):
            wv = vr(WF[buf] + 4 * jb, 4); d = vr(ACC[jb], 16); c = '0' if first else d
            if jb < 2: a(f'v_mfma_f32_32x32x16_bf16 {d}, {wv}, {x}, {c}')
            else:      a(f'v_mfma_f32_32x32x16_bf16 {d}, {x}, {wv}, {c}')
    step = 0
    for st in range(8):
        for ks in range(4):
            buf = step & 1
            if ks < 3:
                reads(st, ks + 1, buf ^ 1)
                a('s_waitcnt lgkmcnt(7)')
                mfmas(buf, step == 0)
            else:
                if st < 7:
                    a('s_waitcnt lgkmcnt(0)')
                    a.vm_wait(f'g{st+1}'); a('s_barrier')
                    if st + 4 < 8: dma_stage(st + 4)
                    reads(st + 1, 0, buf ^ 1)
                    mfmas(buf, False)
                else:
                    a('s_waitcnt lgkmcnt(0)')
                    mfmas(buf, False)
            step += 1
    a(f's_lshl_b32 s60, s{sTB}, 2'); a(f's_add_u32 s60, s60, s{sW}'); a('s_lshl_b32 s60, s60, 10')
    a(f's_lshl_b32 s61, s{sHP}, 17'); a('s_add_u32 s60, s60, s61')
    a(f's_add_u32 s61, s60, {QF}'); a(f's_add_u32 s62, s60, {QF+65536}')
    a(f's_add_u32 s63, s60, {KF}'); a(f's_add_u32 s64, s60, {KF+65536}'); a(f's_add_u32 s65, s60, {VF}')
    a('v_bfe_u32 v4, v3, 4, 1'); a('v_lshlrev_b32 v4, 16, v4'); a('v_lshrrev_b32 v5, 5, v3'); a('v_lshlrev_b32 v5, 8, v5')
    a('v_and_b32 v6, 15, v3'); a('v_lshlrev_b32 v6, 4, v6'); a('v_add3_u32 v4, v4, v5, v6')
    for p in range(8):
        a(f'v_mul_f32 v{ACC[0]+2*p}, {QSCALE}, v{ACC[0]+2*p}'); a(f'v_mul_f32 v{ACC[0]+2*p+1}, {QSCALE}, v{ACC[0]+2*p+1}')
    for jb in range(3):
        for p in range(8):
            a(f'v_cvt_pk_bf16_f32 v{64+8*jb+p}, v{ACC[jb]+2*p}, v{ACC[jb]+2*p+1}')
    a(f'buffer_store_dwordx4 v[64:67], v1, s[{WS}:{WS+3}], s61 offen'); a(f'buffer_store_dwordx4 v[68:71], v1, s[{WS}:{WS+3}], s62 offen')
    a(f'buffer_store_dwordx4 v[72:75], v1, s[{WS}:{WS+3}], s63 offen'); a(f'buffer_store_dwordx4 v[76:79], v1, s[{WS}:{WS+3}], s64 offen')
    a(f'buffer_store_dwordx4 v[80:83], v4, s[{WS}:{WS+3}], s65 offen'); a(f'buffer_store_dwordx4 v[84:87], v4, s[{WS}:{WS+3}], s65 offen offset:512')
    a.label('L_k1_end')
    a('s_endpgm')
    return a
```

```python
from asmlib import *
from maps import *
from k1 import srd
K2_GRID = 769; K2_LDS = 32768; K2_VGPR = 152
M32 = 'v_mfma_f32_32x32x16_bf16'; M16 = 'v_mfma_f32_16x16x32_bf16'
def gen_attn(a):
    WS = 4; sW, sK, sV, sC, sBIG, sVM, sIT, sQ = 8, 9, 10, 11, 12, 14, 16, 17
    Q = 4; KB = (8, 12); VB = (16, 24); S = (32, 48); P = 64; O = 72; vV = 88
    a('s_load_dwordx2 s[20:21], s[0:1], 64')
    a('v_lshrrev_b32 v2, 6, v0'); a('v_and_b32 v3, 63, v0'); a('v_lshlrev_b32 v1, 4, v3')
    a(f'v_readfirstlane_b32 s{sW}, v2')
    a('s_and_b32 s22, s2, 7'); a('s_lshl_b32 s22, s22, 2'); a('s_bfe_u32 s23, s2, 0x20003'); a('s_add_u32 s22, s22, s23')
    a('s_lshr_b32 s23, s2, 5'); a('s_lshl_b32 s23, s23, 2'); a(f's_add_u32 s23, s23, s{sW}')
    a('s_lshl_b32 s24, s22, 16')
    a(f's_lshl_b32 s25, s{sW}, 10')
    a(f's_add_u32 s{sK}, s24, s25'); a(f's_add_u32 s{sV}, s{sK}, {VF}'); a(f's_add_u32 s{sK}, s{sK}, {KF}')
    a(f's_lshl_b32 s26, s23, 10'); a(f's_add_u32 s{sQ}, s24, s26'); a(f's_add_u32 s{sQ}, s{sQ}, {QF}')
    a('s_lshl_b32 s26, s23, 15'); a('s_lshl_b32 s27, s22, 10'); a('s_add_u32 s28, s26, s27'); a(f's_add_u32 s28, s28, {OF}')
    a(f's_mov_b32 s{sBIG}, 0x7ff00000'); a(f's_mov_b32 s{sVM}, 0xffff'); a(f's_mov_b32 s{sVM+1}, 0xffff')
    a('s_waitcnt lgkmcnt(0)')
    srd(a, WS, 20, WS_USED)
    def dma(slot, guard):
        ko, vo = f's{sK}', f's{sV}'
        if guard:
            a(f's_cmp_lt_u32 s{sC}, 16'); a(f's_cselect_b32 s30, s{sK}, s{sBIG}'); a(f's_cselect_b32 s31, s{sV}, s{sBIG}'); ko, vo = 's30', 's31'
        a(f's_add_u32 s29, s25, {slot*8192}'); a('s_mov_b32 m0, s29'); a(f's_add_u32 s29, s29, 4096')
        a(f'buffer_load_dwordx4 v1, s[{WS}:{WS+3}], {ko} offen lds')
        a('s_mov_b32 m0, s29'); a(f's_add_u32 s{sK}, s{sK}, 4096')
        a(f'buffer_load_dwordx4 v1, s[{WS}:{WS+3}], {vo} offen lds')
        a(f's_add_u32 s{sV}, s{sV}, 4096'); a(f's_add_u32 s{sC}, s{sC}, 1')
    a(f's_mov_b32 s{sC}, 0')
    dma(0, False)
    a(f'buffer_load_dwordx4 {vr(Q,4)}, v1, s[{WS}:{WS+3}], s{sQ} offen')
    dma(1, False)
    a('v_lshrrev_b32 v4, 5, v3') if False else None
    a(f'v_lshrrev_b32 v{vV}, 5, v3'); a(f'v_lshlrev_b32 v{vV}, 8, v{vV}'); a('v_and_b32 v89, 15, v3'); a(f'v_lshl_add_u32 v{vV}, v89, 4, v{vV}')
    a('v_and_b32 v89, 27, v3'); a('v_cmp_eq_u32 vcc, 16, v89'); a('v_mov_b32 v90, 0x3f803f80'); a('v_cndmask_b32 v89, 0, v90, vcc')
    for i in range(16): a(f'v_mov_b32 v{VB[0]+i}, v89')
    for i in range(16): a(f'v_mov_b32 v{O+i}, 0')
    for i in range(4): a(f'v_mov_b32 v{P+4+i}, 0')
    a('s_waitcnt vmcnt(2)'); a('s_barrier')
    dma(2, False)
    def rdK(t, buf): a(f'ds_read_b128 {vr(KB[buf],4)}, v1 offset:{((t>>2)&3)*8192 + (t&3)*1024}')
    def rdV(t, buf):
        base = ((t >> 2) & 3) * 8192 + 4096 + (t & 3) * 1024
        a(f's_mov_b64 exec, s[{sVM}:{sVM+1}]')
        a(f'ds_read_b128 {vr(VB[buf],4)}, v{vV} offset:{base}'); a(f'ds_read_b128 {vr(VB[buf]+4,4)}, v{vV} offset:{base+512}')
        a('s_mov_b64 exec, -1')
    rdK(0, 0); rdK(1, 1); rdV(0, 0)
    a('s_waitcnt lgkmcnt(3)')
    a(f'{M32} {vr(S[0],16)}, {vr(KB[0],4)}, {vr(Q,4)}, 0')
    a('s_nop 7'); a('s_nop 3')
    a(f's_mov_b32 s{sIT}, 4')
    a.label('L_att_loop')
    start = len(a.lines)
    for u in range(16):
        cur = u & 1; nxt = cur ^ 1; s = S[cur]
        e = lambda i: a(f'v_exp_f32 v{s+i}, v{s+i}')
        c = lambda i: a(f'v_cvt_pk_bf16_f32 v{P+i}, v{s+2*i}, v{s+2*i+1}')
        if u % 4 == 2:
            a('s_waitcnt vmcnt(2)'); a('s_barrier'); dma(((u + 2) // 4 + 2) % 4, True)
        a('s_waitcnt lgkmcnt(0)')
        a(f'{M32} {vr(S[nxt],16)}, {vr(KB[nxt],4)}, {vr(Q,4)}, 0')
        e(0); e(1)
        a(f'{M32} {vr(O,16)}, {vr(VB[nxt]+4,4)}, {vr(P+4,4)}, {vr(O,16)}')
        rdK(u + 2, cur); rdV(u + 1, nxt)
        e(2); c(0); e(3); e(4); c(1); e(5); e(6); c(2); e(7); e(8); c(3); e(9); e(10)
        a(f'{M32} {vr(O,16)}, {vr(VB[cur],4)}, {vr(P,4)}, {vr(O,16)}')
        c(4); e(11); e(12); c(5); e(13); e(14); c(6); e(15)
        a('s_nop 0')
        c(7)
    body = a.lines[start:]
    a(f's_sub_u32 s{sIT}, s{sIT}, 1'); a(f's_cmp_lg_u32 s{sIT}, 0'); a('s_cbranch_scc1 L_att_loop')
    extra = check_loop(body + ['s_sub_u32 s16, s16, 1', 's_cmp_lg_u32 s16, 0', 's_cbranch_scc1 L_att_loop'])
    assert extra == 0, extra
    a(f'{M32} {vr(O,16)}, {vr(VB[1]+4,4)}, {vr(P+4,4)}, {vr(O,16)}')
    a('s_waitcnt vmcnt(0) lgkmcnt(0)')
    a('s_nop 7'); a('s_nop 3')
    a(f'v_mul_f32 v89, 0, v{O}')
    for i in range(1, 8): a(f'v_fma_f32 v89, v{O+i}, 0, v89')
    a(f'v_cmp_eq_f32 s[30:31], 0, v89')
    a(f'v_mov_b32 v90, 0x21800000'); a(f'v_cmp_le_f32 s[32:33], v90, v{O+8}')
    a(f'v_mov_b32 v90, 0x5d800000'); a(f'v_cmp_ge_f32 s[34:35], v90, v{O+8}')
    a('s_and_b64 s[30:31], s[30:31], s[32:33]'); a('s_and_b64 s[30:31], s[30:31], s[34:35]')
    a('s_cmp_eq_u64 s[30:31], -1'); a('s_cbranch_scc0 L_att_fallback')
    a.label('L_att_fin')
    a(f'v_rcp_f32 v89, v{O+8}')
    for i in range(8): a(f'v_mul_f32 v{O+i}, v{O+i}, v89')
    for i in range(4): a(f'v_cvt_pk_bf16_f32 v{P+i}, v{O+2*i}, v{O+2*i+1}')
    a(f'buffer_store_dwordx4 {vr(P,4)}, v1, s[{WS}:{WS+3}], s28 offen')
    a('s_endpgm')
    a.label('L_att_fallback')
    a('s_nop 7'); a('s_nop 7')
    a(f's_add_u32 s30, s24, {KF}'); a(f's_add_u32 s31, s24, {VF}')
    a(f'v_mov_b32 v90, 0xff800000')
    a(f's_mov_b32 s{sIT}, 64'); a('s_mov_b32 s32, s30')
    a.label('L_fb_max')
    a(f'buffer_load_dwordx4 {vr(KB[0],4)}, v1, s[{WS}:{WS+3}], s32 offen'); a('s_waitcnt vmcnt(0)')
    a(f'{M32} {vr(S[0],16)}, {vr(KB[0],4)}, {vr(Q,4)}, 0')
    a('s_nop 7'); a('s_nop 7')
    for i in range(8): a(f'v_max3_f32 v90, v90, v{S[0]+2*i}, v{S[0]+2*i+1}')
    a('s_add_u32 s32, s32, 1024'); a(f's_sub_u32 s{sIT}, s{sIT}, 1'); a(f's_cmp_lg_u32 s{sIT}, 0'); a('s_cbranch_scc1 L_fb_max')
    a('v_mov_b32 v91, v90'); a('s_nop 1'); a('v_permlane32_swap_b32 v90, v91'); a('s_nop 1'); a('v_max_f32 v90, v90, v91')
    for i in range(16): a(f'v_sub_f32 v{S[1]+i}, 0, v90')
    for i in range(16): a(f'v_mov_b32 v{O+i}, 0')
    a(f's_mov_b32 s{sIT}, 64')
    a.label('L_fb_pv')
    a(f'buffer_load_dwordx4 {vr(KB[0],4)}, v1, s[{WS}:{WS+3}], s30 offen')
    a(f's_mov_b64 exec, s[{sVM}:{sVM+1}]')
    a(f'buffer_load_dwordx4 {vr(VB[0],4)}, v{vV}, s[{WS}:{WS+3}], s31 offen'); a(f'buffer_load_dwordx4 {vr(VB[0]+4,4)}, v{vV}, s[{WS}:{WS+3}], s31 offen offset:512')
    a('s_mov_b64 exec, -1')
    a('s_waitcnt vmcnt(0)'); a('s_nop 7')
    a(f'{M32} {vr(S[0],16)}, {vr(KB[0],4)}, {vr(Q,4)}, {vr(S[1],16)}')
    a('s_nop 7'); a('s_nop 7')
    for i in range(16): a(f'v_exp_f32 v{S[0]+i}, v{S[0]+i}')
    a('s_nop 1')
    for i in range(8): a(f'v_cvt_pk_bf16_f32 v{P+i}, v{S[0]+2*i}, v{S[0]+2*i+1}')
    a('s_nop 1')
    a(f'{M32} {vr(O,16)}, {vr(VB[0],4)}, {vr(P,4)}, {vr(O,16)}'); a(f'{M32} {vr(O,16)}, {vr(VB[0]+4,4)}, {vr(P+4,4)}, {vr(O,16)}')
    a('s_nop 7'); a('s_nop 7')
    a('s_add_u32 s30, s30, 1024'); a('s_add_u32 s31, s31, 1024'); a(f's_sub_u32 s{sIT}, s{sIT}, 1'); a(f's_cmp_lg_u32 s{sIT}, 0'); a('s_cbranch_scc1 L_fb_pv')
    a('s_nop 7'); a('s_nop 7')
    a('s_branch L_att_fin')
def gen_b2(a, tlabel):
    WS, TB = 4, 8; sW, sPOS = 12, 13
    ARE, AIM, WR, WI = 4, 8, 12, 16
    F32 = ((20, 24, 28), (32, 36, 40)); F64 = ((44, 48, 52), (56, 60, 64)); TW1C, TW1S, TW2C, TW2S = 68, 76, 84, 92
    ACC = 100; FR = 116; TMP = 148
    a('s_load_dwordx2 s[20:21], s[0:1], 64')
    a('s_getpc_b64 s[22:23]'); a.label('L_b2_pc'); a(f's_add_u32 s22, s22, {tlabel}-L_b2_pc'); a('s_addc_u32 s23, s23, 0')
    a('v_lshrrev_b32 v2, 6, v0'); a('v_and_b32 v3, 63, v0'); a('v_lshlrev_b32 v1, 4, v3')
    a(f'v_readfirstlane_b32 s{sW}, v2')
    a('s_sub_u32 s24, s2, 512'); a('s_and_b32 s25, s24, 7'); a('s_lshl_b32 s25, s25, 5'); a('s_lshr_b32 s26, s24, 3'); a('s_add_u32 s25, s25, s26')
    a('s_cmp_lt_u32 s24, 256'); a(f's_cselect_b32 s{sPOS}, s25, 256')
    a('s_waitcnt lgkmcnt(0)')
    srd(a, WS, 20, WS_USED); srd(a, TB, 22, 63488)
    a('v_lshrrev_b32 v148, 4, v3'); a('v_and_b32 v149, 15, v3'); a('v_lshl_add_u32 v150, v148, 6, v149'); a(f's_movk_i32 s24, {BLK}')
    a('v_mul_lo_u32 v150, v150, s24'); a('v_mul_lo_u32 v151, v3, s24')
    a(f's_lshl_b32 s25, s{sPOS}, 5'); a(f's_mul_i32 s26, s{sW}, {16*BLK}'); a('s_add_u32 s26, s26, s25'); a(f's_add_u32 s26, s26, {U1}')
    a(f's_mul_i32 s27, s{sW}, {64*BLK}'); a('s_add_u32 s27, s27, s25'); a(f's_add_u32 s27, s27, {WT}')
    a.vm_reset()
    a.vmem(f'buffer_load_dwordx4 {vr(ARE,4)}, v150, s[{WS}:{WS+3}], s26 offen', 'u'); a.vmem(f'buffer_load_dwordx4 {vr(AIM,4)}, v150, s[{WS}:{WS+3}], s26 offen offset:16', 'u')
    def tl(dst, soffreg, imm, tag): a.vmem(f'buffer_load_dwordx4 {vr(dst,4)}, v1, s[{TB}:{TB+3}], {soffreg} offen offset:{imm}', tag)
    a('s_mov_b32 s28, 4096')
    for q in range(6): tl(20 + 4 * q, '0' if q < 4 else 's28', (q % 4) * 1024, 'f32')
    a(f's_lshl_b32 s29, s{sW}, 12'); a(f's_add_u32 s30, s29, {T2_TW1}')
    for q in range(4): tl(TW1C + 4 * q, 's30', q * 1024, 'tw1')
    a(f's_mul_i32 s30, s{sW}, 6144'); a(f's_add_u32 s30, s30, {T2_F64}'); a('s_add_u32 s31, s30, 4096')
    for q in range(6): tl(44 + 4 * q, 's30' if q < 4 else 's31', (q % 4) * 1024, 'f64')
    a.vmem(f'buffer_load_dwordx4 {vr(WR,4)}, v151, s[{WS}:{WS+3}], s27 offen', 'w'); a.vmem(f'buffer_load_dwordx4 {vr(WI,4)}, v151, s[{WS}:{WS+3}], s27 offen offset:16', 'w')
    a(f's_add_u32 s30, s29, {T2_TW2}')
    for q in range(4): tl(TW2C + 4 * q, 's30', q * 1024, 'tw2')
    VWR, VRD = 150, 151
    a(f'v_mul_u32_u24 v{VRD}, 144, v149'); a(f'v_lshl_add_u32 v{VWR}, v148, 3, v{VRD}'); a(f'v_lshl_add_u32 v{VWR}, v2, 5, v{VWR}'); a(f'v_lshl_add_u32 v{VRD}, v148, 4, v{VRD}')
    acc = lambda nt, c: ACC + 8 * nt + 4 * c
    def cmul(nt, cre, sim, sign):
        for hh in range(2):
            re = vr(acc(nt, 0) + 2 * hh, 2); im = vr(acc(nt, 1) + 2 * hh, 2); c = vr(cre + 4 * nt + 2 * hh, 2); s = vr(sim + 4 * nt + 2 * hh, 2)
            n1 = ' neg_lo:[0,1,0] neg_hi:[0,1,0]'
            a(f'v_pk_mul_f32 v[120:121], {re}, {c}'); a(f'v_pk_mul_f32 v[122:123], {im}, {c}')
            a(f'v_pk_fma_f32 v[120:121], {im}, {s}, v[120:121]' + (n1 if sign > 0 else ''))
            a(f'v_pk_fma_f32 v[122:123], {re}, {s}, v[122:123]' + (n1 if sign < 0 else ''))
            yield hh
    a.vm_wait('f32')
    for nt in range(2):
        C, S_, nS = F32[nt]
        a(f'{M16} {vr(acc(nt,0),4)}, {vr(ARE,4)}, {vr(C,4)}, 0'); a(f'{M16} {vr(acc(nt,1),4)}, {vr(AIM,4)}, {vr(C,4)}, 0')
    for nt in range(2):
        C, S_, nS = F32[nt]
        a(f'{M16} {vr(acc(nt,0),4)}, {vr(AIM,4)}, {vr(S_,4)}, {vr(acc(nt,0),4)}'); a(f'{M16} {vr(acc(nt,1),4)}, {vr(ARE,4)}, {vr(nS,4)}, {vr(acc(nt,1),4)}')
    a.vm_wait('tw1')
    def twiddle_to_lds(cre, sim, sign, ldsbase):
        for nt in range(2):
            for hh in cmul(nt, cre, sim, sign):
                a(f'v_cvt_pk_bf16_f32 v{124+hh}, v120, v121'); a(f'v_cvt_pk_bf16_f32 v{126+hh}, v122, v123')
            a(f'ds_write_b64 v{VWR}, v[124:125] offset:{ldsbase + nt*2304}'); a(f'ds_write_b64 v{VWR}, v[126:127] offset:{ldsbase + 4608 + nt*2304}')
    twiddle_to_lds(TW1C, TW1S, -1, 0)
    a('s_waitcnt lgkmcnt(0)'); a('s_barrier')
    fr = lambda c, nt, kap: FR + 16 * c + 8 * nt + 4 * kap
    def read_frags(ldsbase):
        for nt in range(2):
            for kap in range(2):
                for c in range(2):
                    a(f'ds_read_b128 {vr(fr(c,nt,kap),4)}, v{VRD} offset:{ldsbase + c*4608 + nt*2304 + kap*64}')
    read_frags(0)
    a.vm_wait('f64'); a('s_waitcnt lgkmcnt(0)')
    for kap in range(2):
        C, S_, nS = F64[kap]
        for nt in range(2):
            a(f'{M16} {vr(acc(nt,0),4)}, {vr(C,4)}, {vr(fr(0,nt,kap),4)}, ' + ('0' if kap == 0 else vr(acc(nt,0),4)))
            a(f'{M16} {vr(acc(nt,1),4)}, {vr(C,4)}, {vr(fr(1,nt,kap),4)}, ' + ('0' if kap == 0 else vr(acc(nt,1),4)))
        for nt in range(2):
            a(f'{M16} {vr(acc(nt,0),4)}, {vr(S_,4)}, {vr(fr(1,nt,kap),4)}, {vr(acc(nt,0),4)}')
            a(f'{M16} {vr(acc(nt,1),4)}, {vr(nS,4)}, {vr(fr(0,nt,kap),4)}, {vr(acc(nt,1),4)}')
    a.vm_wait('w')
    for q in range(4):
        a(f'v_lshlrev_b32 v{TW1C+2*q}, 16, v{WR+q}'); a(f'v_and_b32 v{TW1C+2*q+1}, 0xffff0000, v{WR+q}')
        a(f'v_lshlrev_b32 v{TW1S+2*q}, 16, v{WI+q}'); a(f'v_and_b32 v{TW1S+2*q+1}, 0xffff0000, v{WI+q}')
    a(f's_and_b32 s24, s{sPOS}, 255'); a('s_cmp_lg_u32 s24, 0'); a('s_cbranch_scc1 L_b2_nohalf')
    for q in range(16): a(f'v_mul_f32 v{TW1C+q}, 0.5, v{TW1C+q}')
    a.label('L_b2_nohalf')
    twiddle_to_lds(TW1C, TW1S, +1, 9216)
    a('s_waitcnt lgkmcnt(0)'); a('s_barrier')
    read_frags(9216)
    a('s_waitcnt lgkmcnt(0)')
    for kap in range(2):
        C, S_, nS = F64[kap]
        for nt in range(2):
            a(f'{M16} {vr(acc(nt,0),4)}, {vr(fr(0,nt,kap),4)}, {vr(C,4)}, ' + ('0' if kap == 0 else vr(acc(nt,0),4)))
            a(f'{M16} {vr(acc(nt,1),4)}, {vr(fr(1,nt,kap),4)}, {vr(C,4)}, ' + ('0' if kap == 0 else vr(acc(nt,1),4)))
        for nt in range(2):
            a(f'{M16} {vr(acc(nt,0),4)}, {vr(fr(1,nt,kap),4)}, {vr(nS,4)}, {vr(acc(nt,0),4)}')
            a(f'{M16} {vr(acc(nt,1),4)}, {vr(fr(0,nt,kap),4)}, {vr(S_,4)}, {vr(acc(nt,1),4)}')
    a.vm_wait('tw2')
    RRE, RIM = 128, 132
    for nt in range(2):
        for hh in cmul(nt, TW2C, TW2S, +1):
            a(f'v_cvt_pk_bf16_f32 v{RRE+2*nt+hh}, v120, v121'); a(f'v_cvt_pk_bf16_f32 v{RIM+2*nt+hh}, v122, v123')
    for mt in range(2):
        C, S_, nS = F32[mt]
        a(f'{M16} {vr(acc(mt,0),4)}, {vr(C,4)}, {vr(RRE,4)}, 0'); a(f'{M16} {vr(acc(mt,1),4)}, {vr(C,4)}, {vr(RIM,4)}, 0')
    for mt in range(2):
        C, S_, nS = F32[mt]
        a(f'{M16} {vr(acc(mt,0),4)}, {vr(nS,4)}, {vr(RIM,4)}, {vr(acc(mt,0),4)}'); a(f'{M16} {vr(acc(mt,1),4)}, {vr(S_,4)}, {vr(RRE,4)}, {vr(acc(mt,1),4)}')
    a(f's_cmp_eq_u32 s{sPOS}, 256'); a('s_cbranch_scc1 L_b2_nyq')
    a('v_lshlrev_b32 v136, 18, v148'); a('v_lshl_add_u32 v136, v149, 10, v136')
    a(f's_lshl_b32 s24, s{sW}, 14'); a(f's_lshl_b32 s25, s{sPOS}, 2'); a('s_add_u32 s24, s24, s25'); a(f's_add_u32 s24, s24, {ZT}')
    a(f's_cmp_lg_u32 s{sPOS}, 0'); a('s_cbranch_scc1 L_b2_st')
    a('s_nop 7')
    for mt in range(2):
        for r in range(4): a(f'v_mov_b32 v{acc(mt,1)+r}, 0')
    a.label('L_b2_st')
    for mt in range(2):
        for r in range(4):
            a(f'v_cvt_pk_bf16_f32 v{120+4*mt+r}, v{acc(mt,0)+r}, v{acc(mt,1)+r}')
            a(f's_add_u32 s25, s24, {(16*mt+r)*65536}')
            a(f'buffer_store_dword v{120+4*mt+r}, v136, s[{WS}:{WS+3}], s25 offen')
    a('s_endpgm')
    a.label('L_b2_nyq')
    a('s_nop 7')
    a('v_lshlrev_b32 v136, 10, v148'); a('v_lshl_add_u32 v136, v149, 2, v136')
    a(f's_lshl_b32 s24, s{sW}, 6'); a(f's_add_u32 s24, s24, {ZN}')
    for mt in range(2):
        for r in range(4):
            a(f's_add_u32 s25, s24, {(16*mt+r)*256}')
            a(f'buffer_store_dword v{acc(mt,0)+r}, v136, s[{WS}:{WS+3}], s25 offen')
    a('s_endpgm')
def gen_k2(name, tlabel):
    a = Asm()
    a('s_cmp_ge_u32 s2, 512'); a('s_cbranch_scc1 L_k2_b2')
    gen_attn(a)
    a.label('L_k2_b2')
    a(f's_cmp_ge_u32 s2, {K2_GRID}'); a('s_cbranch_scc1 L_k2_end')
    gen_b2(a, tlabel)
    a.label('L_k2_end'); a('s_endpgm')
    return a
```

```python
from asmlib import *
from maps import *
from k1 import srd
K3_LDS = 65536; K3_VGPR = 248
M32 = 'v_mfma_f32_32x32x16_bf16'; M16 = 'v_mfma_f32_16x16x32_bf16'
def gen_k3(name, tlabel):
    a = Asm()
    WS, WO, OUT, TB = 4, 8, 12, 16; sW, sTB, sNB = 20, 21, 22
    a('s_cmp_ge_u32 s2, 256'); a('s_cbranch_scc1 L_k3_end')
    a('s_load_dwordx2 s[24:25], s[0:1], 16'); a('s_load_dwordx2 s[26:27], s[0:1], 48'); a('s_load_dwordx2 s[28:29], s[0:1], 64')
    a('s_getpc_b64 s[30:31]'); a.label('L_k3_pc'); a(f's_add_u32 s30, s30, {tlabel}-L_k3_pc'); a('s_addc_u32 s31, s31, 0')
    a('v_lshrrev_b32 v2, 6, v0'); a('v_and_b32 v3, 63, v0'); a('v_lshlrev_b32 v1, 4, v3')
    a(f'v_readfirstlane_b32 s{sW}, v2')
    a('s_and_b32 s32, s2, 7'); a('s_lshr_b32 s33, s2, 3'); a('s_lshl_b32 s32, s32, 2'); a('s_and_b32 s34, s33, 3'); a(f's_add_u32 s{sTB}, s32, s34'); a(f's_lshr_b32 s{sNB}, s33, 2')
    a('s_waitcnt lgkmcnt(0)')
    srd(a, WS, 28, WS_USED); srd(a, WO, 24, 512 * 512 * 2); srd(a, OUT, 26, 2048 * 1024 * 2); srd(a, TB, 30, 16384)
    A0, A1, B1T, B2T, TWC, TWS, DRE, DIM, PK = 128, 132, 136, 152, 168, 184, 200, 216, 232
    a('s_lshl_b32 s32, s2, 3'); a(f's_lshl_b32 s33, s{sW}, 1'); a('s_add_u32 s32, s32, s33')
    a('s_lshl_b32 s33, s32, 10'); a(f's_add_u32 s33, s33, {ZT}')
    a.vmem(f'buffer_load_dwordx4 {vr(A0,4)}, v1, s[{WS}:{WS+3}], s33 offen', 'z'); a.vmem(f'buffer_load_dwordx4 {vr(A1,4)}, v1, s[{WS}:{WS+3}], s33 offen offset:1024', 'z')
    a('s_lshl_b32 s33, s32, 2'); a(f's_add_u32 s33, s33, {ZN}'); a('v_bfe_u32 v4, v3, 4, 1'); a('v_lshlrev_b32 v4, 2, v4')
    a.vmem(f'buffer_load_dword v5, v4, s[{WS}:{WS+3}], s33 offen', 'z')
    for q in range(16):
        if q % 4 == 0: a(f's_mov_b32 s33, {q*1024}')
        a.vmem(f'buffer_load_dwordx4 {vr(B1T+4*q,4)}, v1, s[{TB}:{TB+3}], s33 offen offset:{(q%4)*1024}', 't')
    a('v_lshrrev_b32 v7, 5, v3'); a('v_lshlrev_b32 v7, 10, v7'); a('v_bfe_u32 v8, v3, 4, 1'); a('v_lshlrev_b32 v8, 9, v8'); a('v_and_b32 v9, 15, v3'); a('v_lshlrev_b32 v9, 4, v9')
    a('v_add3_u32 v6, v7, v8, v9'); a('v_and_b32 v7, 1, v2'); a('v_lshl_add_u32 v6, v7, 8, v6')
    a(f's_lshl_b32 s33, s{sTB}, 1'); a(f's_lshr_b32 s34, s{sW}, 1'); a('s_add_u32 s33, s33, s34'); a('s_lshl_b32 s33, s33, 15'); a(f's_add_u32 s33, s33, {OF}')
    a('v_lshrrev_b32 v7, 3, v3'); a('v_and_b32 v8, 6, v7'); a('v_and_b32 v9, 7, v3'); a('v_xor_b32 v8, v8, v9'); a('v_lshlrev_b32 v8, 4, v8'); a('v_lshl_add_u32 v10, v7, 10, v8')
    a(f's_lshl_b32 s34, s{sW}, 12'); a(f's_lshl_b32 s35, s{sW}, 15'); a(f's_lshl_b32 s36, s{sNB}, 7'); a('s_add_u32 s35, s35, s36')
    OFR = 16
    for g in range(4):
        for u in range(4):
            ks = 4 * g + u
            if ks % 2 == 0: a(f's_add_u32 s36, s33, {(ks>>1)*4096}')
            a.vmem(f'buffer_load_dwordx4 {vr(OFR+4*ks,4)}, v6, s[{WS}:{WS+3}], s36 offen offset:{(ks&1)*2048}', f'o{g}')
        for u in range(4):
            a(f's_add_u32 s36, s34, {g*16384 + u*1024}'); a('s_mov_b32 m0, s36'); a(f's_add_u32 s37, s35, {(16*g+u)*8192}')
            a.vmem(f'buffer_load_dwordx4 v10, s[{WO}:{WO+3}], s37 offen lds', f'w{g}')
    a('v_lshrrev_b32 v7, 5, v3'); a('v_lshlrev_b32 v7, 4, v7'); a('v_bfe_u32 v8, v3, 4, 1'); a('v_lshl_add_u32 v7, v8, 2, v7'); a('v_bfe_u32 v9, v3, 2, 2'); a('v_add_u32 v7, v7, v9')
    a('v_lshlrev_b32 v7, 7, v7')
    a('v_and_b32 v9, 2, v9'); a('v_lshl_add_u32 v9, v8, 2, v9')
    a('v_bfe_u32 v8, v3, 1, 1'); a('v_lshl_add_u32 v7, v8, 4, v7'); a('v_and_b32 v8, 1, v3'); a('v_lshl_add_u32 v7, v8, 3, v7')
    for nt in range(4):
        a(f'v_xor_b32 v8, {2*nt}, v9'); a(f'v_lshl_add_u32 v{11+nt}, v8, 4, v7')
    a('v_and_b32 v7, 1, v3'); a('v_lshlrev_b32 v7, 31, v7'); a('v_or_b32 v7, 0x36000000, v7'); a('v_cmp_gt_u32 vcc, 32, v3'); a('v_cndmask_b32 v4, 0, v7, vcc')
    a.vm_wait('t')
    a(f'{M32} {vr(DRE,16)}, {vr(A0,4)}, {vr(B1T,4)}, 0'); a(f'{M32} {vr(DIM,16)}, {vr(A0,4)}, {vr(B1T+8,4)}, 0')
    a(f'{M32} {vr(DRE,16)}, {vr(A1,4)}, {vr(B1T+4,4)}, {vr(DRE,16)}'); a(f'{M32} {vr(DIM,16)}, {vr(A1,4)}, {vr(B1T+12,4)}, {vr(DIM,16)}')
    a(f'v_fma_f32 v{DRE}, v5, v4, v{DRE}')
    n1 = ' neg_lo:[0,1,0] neg_hi:[0,1,0]'
    for p in range(8):
        re = vr(DRE + 2 * p, 2); im = vr(DIM + 2 * p, 2); c = vr(TWC + 2 * p, 2); s = vr(TWS + 2 * p, 2)
        a(f'v_pk_mul_f32 v[128:129], {re}, {c}'); a(f'v_pk_mul_f32 v[130:131], {im}, {c}')
        a(f'v_pk_fma_f32 v[128:129], {im}, {s}, v[128:129]' + n1); a(f'v_pk_fma_f32 v[130:131], {re}, {s}, v[130:131]')
        a(f'v_cvt_pk_bf16_f32 v{PK+p}, v128, v129'); a(f'v_cvt_pk_bf16_f32 v{PK+8+p}, v130, v131')
    a(f'{M32} {vr(DRE,16)}, {vr(PK,4)}, {vr(B2T,4)}, 0'); a(f'{M32} {vr(DRE,16)}, {vr(PK+4,4)}, {vr(B2T+4,4)}, {vr(DRE,16)}')
    a(f'{M32} {vr(DRE,16)}, {vr(PK+8,4)}, {vr(B2T+8,4)}, {vr(DRE,16)}'); a(f'{M32} {vr(DRE,16)}, {vr(PK+12,4)}, {vr(B2T+12,4)}, {vr(DRE,16)}')
    a('v_and_b32 v7, 31, v3'); a('v_lshlrev_b32 v7, 5, v7'); a('v_lshrrev_b32 v8, 5, v3'); a('v_lshl_add_u32 v5, v8, 4, v7')
    a('s_lshl_b32 s33, s32, 11'); a('s_add_u32 s33, s33, 1024')
    for r in range(2):
        for p in range(4): a(f'v_cvt_pk_bf16_f32 v{PK+4*r+p}, v{DRE+8*r+2*p}, v{DRE+8*r+2*p+1}')
        a(f'v_permlane32_swap_b32 v{PK+4*r}, v{PK+4*r+2}'); a(f'v_permlane32_swap_b32 v{PK+4*r+1}, v{PK+4*r+3}')
    a.vmem(f'buffer_store_dwordx4 {vr(PK,4)}, v5, s[{OUT}:{OUT+3}], s33 offen', 'st'); a.vmem(f'buffer_store_dwordx4 {vr(PK+4,4)}, v5, s[{OUT}:{OUT+3}], s33 offen offset:2048', 'st')
    ACC = 80; WF = (96, 112)
    def reads(ks, buf):
        for nt in range(4):
            for rho in range(2):
                a(f'ds_read_b64_tr_b16 {vr(WF[buf]+4*nt+2*rho,2)}, v{11+nt} offset:{ks*4096 + rho*1024}')
    a.vm_wait('w0'); a('s_barrier'); reads(0, 0)
    for ks in range(16):
        buf = ks & 1
        if ks % 4 == 3 and ks < 15:
            a('s_waitcnt lgkmcnt(0)'); a.vm_wait(f'w{ks//4+1}'); a('s_barrier'); reads(ks + 1, buf ^ 1)
        elif ks < 15:
            reads(ks + 1, buf ^ 1); a('s_waitcnt lgkmcnt(8)')
        else:
            a('s_waitcnt lgkmcnt(0)')
        for nt in range(4):
            a(f'{M16} {vr(ACC+4*nt,4)}, {vr(WF[buf]+4*nt,4)}, {vr(OFR+4*ks,4)}, ' + ('0' if ks == 0 else vr(ACC+4*nt,4)))
    a('v_and_b32 v7, 15, v3'); a('v_lshlrev_b32 v7, 11, v7'); a('v_lshrrev_b32 v8, 4, v3'); a('v_lshl_add_u32 v7, v8, 3, v7')
    a(f's_lshl_b32 s33, s{sTB}, 6'); a(f's_lshl_b32 s34, s{sW}, 4'); a('s_add_u32 s33, s33, s34'); a('s_lshl_b32 s33, s33, 11'); a(f's_lshl_b32 s34, s{sNB}, 7'); a('s_add_u32 s33, s33, s34')
    for nt in range(4):
        a(f'v_cvt_pk_bf16_f32 v{96+2*nt}, v{ACC+4*nt}, v{ACC+4*nt+1}'); a(f'v_cvt_pk_bf16_f32 v{97+2*nt}, v{ACC+4*nt+2}, v{ACC+4*nt+3}')
        a(f'buffer_store_dwordx2 {vr(96+2*nt,2)}, v7, s[{OUT}:{OUT+3}], s33 offen offset:{nt*32}')
    a.label('L_k3_end'); a('s_endpgm')
    return a
```

```python
import numpy as np
QF = 0x000000; KF = 0x200000; VF = 0x400000; OF = 0x600000
U1 = 0x800000; WT = 0xB00000; ZT = 0xE00000; ZN = 0x1000000
BLK = 8320
WS_USED = 0x1010000
def bf16_bits(x):
    x = np.ascontiguousarray(x, np.float32); u = x.view(np.uint32).astype(np.uint64)
    return ((u + 0x7fff + ((u >> 16) & 1)) >> 16).astype(np.uint16)
def bf16_to_f32(b):
    return (b.astype(np.uint32) << 16).view(np.float32)
def slot8(h, j):
    return 8 * (j >> 2) + 4 * h + (j & 3)
def s1_of(g, j):
    return 4 * g + j if j < 4 else 16 + 4 * g + (j - 4)
def pos_of_k(k):
    if k == 256: return 256
    k1 = k & 31; k2 = k >> 5
    return 128 * (k2 >> 2) + 4 * k1 + (k2 & 3)
def k_of_pos(p):
    if p == 256: return 256
    k2 = 4 * (p >> 7) + (p & 3); k1 = (p >> 2) & 31
    return k1 + 32 * k2
def b1_rows(b):
    g = b >> 6; s2 = b & 63
    return [64 * s1_of(g, j) + s2 for j in range(8)]
def wt_rows(b):
    w = b >> 6; g = (b >> 4) & 3; i = b & 15
    return [(16 * (jj >> 2) + i) + 32 * (16 * w + 4 * g + (jj & 3)) for jj in range(8)]
def frag_bf16(fn):
    a = np.array([[fn(l, j) for j in range(8)] for l in range(64)], np.float64)
    return bf16_bits(a.astype(np.float32)).reshape(64, 8).view(np.uint32).reshape(-1)
def tab_f32(fn, n):
    a = np.array([[fn(l, i) for i in range(n)] for l in range(64)], np.float64).astype(np.float32)
    return a.reshape(64, n // 4, 4).transpose(1, 0, 2).reshape(-1).view(np.uint32)
c2 = lambda num, den: np.cos(2 * np.pi * (num % den) / den)
s2_ = lambda num, den: np.sin(2 * np.pi * (num % den) / den)
def table1():
    T = []
    for fn in (c2, lambda a, b: -s2_(a, b)):
        for kap in range(2):
            T.append(frag_bf16(lambda l, j: fn((16 * kap + 8 * (l >> 5) + j) * (l & 31), 32)))
    def f16(l, j, part):
        m = l & 31; d2 = slot8(l >> 5, j)
        if m < 16:
            k2 = m >> 1; c = m & 1
            if c == 0: return c2(d2 * k2, 16) if part == 0 else s2_(d2 * k2, 16)
            else:      return -s2_(d2 * k2, 16) if part == 0 else c2(d2 * k2, 16)
        if m == 16: return c2(d2 * 8, 16) if part == 0 else s2_(d2 * 8, 16)
        return 0.0
    T.append(frag_bf16(lambda l, j: f16(l, j, 0)))
    T.append(frag_bf16(lambda l, j: f16(l, j, 1)))
    T.append(tab_f32(lambda l, i: (c2 if i < 8 else s2_)(slot8(l >> 5, i & 7) * (l & 31), 512), 16))
    return np.concatenate(T)
def table2():
    T = []
    for nt in range(2):
        for fn in (c2, s2_, lambda a, b: -s2_(a, b)):
            T.append(frag_bf16(lambda l, j: fn(s1_of(l >> 4, j) * (16 * nt + (l & 15)), 32)))
    for w in range(4):
        for kap in range(2):
            for fn in (c2, s2_, lambda a, b: -s2_(a, b)):
                T.append(frag_bf16(lambda l, j: fn((16 * w + (l & 15)) * (32 * kap + 8 * (l >> 4) + j), 64)))
    for w in range(4):
        T.append(tab_f32(lambda l, x: (c2 if x < 8 else s2_)((16 * w + 4 * (l >> 4) + (x & 3)) * (16 * ((x & 7) >> 2) + (l & 15)), 2048), 16))
    for w in range(4):
        T.append(tab_f32(lambda l, x: (c2 if x < 8 else s2_)((16 * ((x & 7) >> 2) + 4 * (l >> 4) + (x & 3)) * (16 * w + (l & 15)), 2048), 16))
    return np.concatenate(T)
T2_F32 = 0; T2_F64 = 6 * 1024; T2_TW1 = 30 * 1024; T2_TW2 = 46 * 1024
def table3():
    T = []
    sc = 2.0 ** -19
    def b1(l, jj, c, r):
        n = l & 31; h = l >> 5
        if (n >> 4) != r: return 0.0
        d2 = n & 15; k2 = 4 * h + (jj >> 1); cp = jj & 1
        if c == 0: v = c2(k2 * d2, 16) if cp == 0 else -s2_(k2 * d2, 16)
        else:      v = s2_(k2 * d2, 16) if cp == 0 else c2(k2 * d2, 16)
        return v * sc
    for c in range(2):
        for r in range(2):
            T.append(frag_bf16(lambda l, j: b1(l, j, c, r)))
    for c in range(2):
        for kap in range(2):
            T.append(frag_bf16(lambda l, j: (c2 if c == 0 else (lambda a, b: -s2_(a, b)))((16 * kap + slot8(l >> 5, j)) * (l & 31), 32)))
    T.append(tab_f32(lambda l, x: (c2 if x < 16 else s2_)((8 * ((x & 15) >> 2) + 4 * (l >> 5) + (x & 3)) * (l & 15), 512), 32))
    return np.concatenate(T)
```

```python
import sys, numpy as np
from asmlib import *
from maps import *
import k1
NAME = 'concat_heads__mha_block__spectral_gfnet__prompt'
HEADER = open('cdna_kernels/' + NAME + '.s.ref').read().split('; Override launch')[0]
def kd(name, vgpr, sgpr):
    acc = (vgpr + 3) // 4 * 4
    return f""".amdhsa_kernel {name}
  .amdhsa_next_free_vgpr {vgpr}
  .amdhsa_next_free_sgpr {sgpr}
  .amdhsa_accum_offset {acc}
  .amdhsa_group_segment_fixed_size 0
  .amdhsa_kernarg_size 72
  .amdhsa_user_sgpr_count 2
  .amdhsa_user_sgpr_kernarg_segment_ptr 1
  .amdhsa_system_sgpr_workgroup_id_x 1
.end_amdhsa_kernel
"""
def table_text(label, words):
    out = ['.p2align 8', f'.type {label},@object', f'{label}:']
    for i in range(0, len(words), 8):
        out.append('.long ' + ','.join('0x%x' % int(w) for w in words[i:i + 8]))
    out.append(f'.size {label}, {4*len(words)}')
    return '\n'.join(out)
def func(name, a):
    lines, n = hazard_pass(a.lines)
    body = '\n'.join(('  ' + l) if not l.endswith(':') else l for l in lines)
    return f'.globl {name}\n.p2align 8\n.type {name},@function\n{name}:\n{body}\n', n
def build(which=('k1', 'k2', 'k3')):
    ks = []; text = []; kds = []; tabs = []
    if 'k1' in which:
        a = k1.gen_k1('k1_kernel', 'tab1'); t, n = func('k1_kernel', a); text.append(t); print('k1 nops inserted', n, file=sys.stderr)
        ks.append(f'; @launch kernel=k1_kernel grid=(256,1,1) block=(256,1,1) lds={k1.K1_LDS}'); kds.append(kd('k1_kernel', 240, 100)); tabs.append(table_text('tab1', table1()))
    if 'k2' in which:
        import k2
        a = k2.gen_k2('k2_kernel', 'tab2'); t, n = func('k2_kernel', a); text.append(t); print('k2 nops inserted', n, file=sys.stderr)
        ks.append(f'; @launch kernel=k2_kernel grid=({k2.K2_GRID},1,1) block=({k2.K2_BLOCK},1,1) lds={k2.K2_LDS}'); kds.append(kd('k2_kernel', k2.K2_VGPR, 100 if STAMPS else 48)); tabs.append(table_text('tab2', table2()))
    if 'k3' in which:
        import k3
        a = k3.gen_k3('k3_kernel', 'tab3'); t, n = func('k3_kernel', a); text.append(t); print('k3 nops inserted', n, file=sys.stderr)
        ks.append(f'; @launch kernel=k3_kernel grid=(256,1,1) block=(256,1,1) lds={k3.K3_LDS}'); kds.append(kd('k3_kernel', k3.K3_VGPR, 100)); tabs.append(table_text('tab3', table3()))
    s = HEADER + '\n'.join(ks) + '\n.amdgcn_target "amdgcn-amd-amdhsa--gfx950"\n.text\n' + '\n'.join(text) + '\n' + '\n'.join(tabs) + '\n.section .rodata,"a"\n.p2align 6\n' + '\n.p2align 6\n'.join(kds)
    return s
if __name__ == '__main__':
    which = sys.argv[2].split(',') if len(sys.argv) > 2 else ('k1', 'k2', 'k3')
    open(sys.argv[1], 'w').write(build(which))
```

```python
import re
class Asm:
    def __init__(self):
        self.lines = []
        self.vm = []
    def __call__(self, s):
        for ln in s.split('\n'):
            ln = ln.strip()
            if ln: self.lines.append(ln)
    def label(self, l): self.lines.append(l + ':')
    def comment(self, c): self.lines.append('; ' + c)
    def vmem(self, s, tag):
        self(s); self.vm.append(tag)
    def vm_wait(self, tag):
        idx = [i for i, t in enumerate(self.vm) if t == tag]
        assert idx, f'no vm op with tag {tag}'
        n = len(self.vm) - 1 - idx[-1]
        assert n <= 63, n
        self(f's_waitcnt vmcnt({n})')
        return n
    def vm_reset(self): self.vm = []

def vr(a, n=1):
    return f'v{a}' if n == 1 else f'v[{a}:{a+n-1}]'
def sr(a, n=1):
    return f's{a}' if n == 1 else f's[{a}:{a+n-1}]'

REG_RE = re.compile(r'^(-|\|)?(abs\()?([vsa])(\d+)\)?\|?$')
RNG_RE = re.compile(r'^(-)?([vsa])\[(\d+):(\d+)\]$')
def regs_of(op):
    op = op.strip()
    m = RNG_RE.match(op)
    if m: return [(m.group(2), i) for i in range(int(m.group(3)), int(m.group(4)) + 1)]
    m = REG_RE.match(op)
    if m: return [(m.group(3), int(m.group(4)))]
    if op in ('vcc', 'vcc_lo', 'vcc_hi'): return [('s', 'vcc')]
    if op in ('exec', 'exec_lo', 'exec_hi'): return [('s', 'exec')]
    if op == 'm0': return [('s', 'm0')]
    return []
TRANS = ('v_exp_f32', 'v_log_f32', 'v_rcp_f32', 'v_rsq_f32', 'v_sqrt_f32', 'v_sin_f32', 'v_cos_f32', 'v_exp_f16')
class Ins:
    __slots__ = ('text', 'mn', 'kind', 'w', 'r', 'passes', 'srcC', 'srcAB', 'lds_dma', 'wide_store', 'nstates')
def parse(text):
    t = text.split(';')[0].strip()
    ins = Ins(); ins.text = text; ins.w = []; ins.r = []; ins.passes = 0; ins.srcC = []; ins.srcAB = []
    ins.lds_dma = False; ins.wide_store = False; ins.nstates = 1
    if not t or t.endswith(':') or t.startswith('.'):
        ins.kind = 'meta'; ins.mn = ''; ins.nstates = 0; return ins
    parts = t.split(None, 1); mn = parts[0]; ins.mn = mn
    ops = [] if len(parts) == 1 else [o.strip() for o in re.split(r',(?![^\[]*\])', parts[1])]
    mods = ''
    if ops:
        toks = ops[-1].split()
        if len(toks) > 1: ops[-1] = toks[0]; mods = ' '.join(toks[1:])
    R = [regs_of(o) for o in ops]
    flat = lambda L: [x for l in L for x in l]
    if mn.startswith('v_mfma'):
        ins.kind = 'mfma'; ins.w = R[0]; ins.srcAB = R[1] + R[2]; ins.srcC = R[3]; ins.r = ins.srcAB + ins.srcC
        ins.passes = 8 if '32x32' in mn else 4
    elif mn.startswith('v_cmp'):
        ins.kind = 'valu'; ins.w = R[0]; ins.r = flat(R[1:])
    elif mn.startswith('v_permlane'):
        ins.kind = 'valu'; ins.w = R[0] + R[1]; ins.r = R[0] + R[1]
    elif mn in ('v_readfirstlane_b32', 'v_readlane_b32'):
        ins.kind = 'valu'; ins.w = R[0]; ins.r = flat(R[1:])
    elif mn in ('v_add_co_u32', 'v_addc_co_u32', 'v_sub_co_u32'):
        ins.kind = 'valu'; ins.w = R[0] + R[1]; ins.r = flat(R[2:])
    elif mn.startswith('v_'):
        ins.kind = 'valu'; ins.w = R[0]; ins.r = flat(R[1:])
        if mn.startswith(('v_fmac', 'v_pk_fmac', 'v_mac')): ins.r += R[0]
        if mn.startswith('v_cndmask') and len(ops) == 3: ins.r += [('s', 'vcc')]
    elif mn.startswith(('buffer_load', 'global_load')):
        ins.kind = 'vmem'
        if 'lds' in mods.split() or 'lds' in mn:
            ins.lds_dma = True; ins.r = flat(R) + [('s', 'm0')]
        else:
            ins.w = R[0]; ins.r = flat(R[1:])
    elif mn.startswith(('buffer_store', 'global_store', 'buffer_atomic', 'global_atomic')):
        ins.kind = 'vmem'; ins.r = flat(R)
        if 'x4' in mn or 'x3' in mn:
            ins.wide_store = True
            ins.srcC = R[0] if mn.startswith('buffer') else R[1]
    elif mn.startswith('ds_read') or mn.startswith('ds_bpermute') or mn.startswith('ds_swizzle'):
        ins.kind = 'ds'; ins.w = R[0]; ins.r = flat(R[1:])
    elif mn.startswith('ds_'):
        ins.kind = 'ds'; ins.r = flat(R)
    elif mn == 's_nop':
        ins.kind = 'salu'; ins.nstates = int(ops[0], 0) + 1
    elif mn.startswith(('s_cbranch', 's_branch', 's_barrier', 's_waitcnt', 's_endpgm', 's_setprio', 's_sleep')):
        ins.kind = 'salu'
    elif mn.startswith('s_cmp'):
        ins.kind = 'salu'; ins.r = flat(R)
    elif mn.startswith(('s_load', 's_memtime', 's_getreg', 's_getpc')):
        ins.kind = 'salu'; ins.w = R[0]; ins.r = flat(R[1:])
    elif mn.startswith('s_'):
        ins.kind = 'salu'; ins.w = R[0]; ins.r = flat(R[1:])
        if 'saveexec' in mn: ins.w = ins.w + [('s', 'exec')]; ins.r += [('s', 'exec')]
    elif mn.startswith('buffer_wbl2') or mn.startswith('buffer_inv'):
        ins.kind = 'vmem'
    else:
        raise ValueError('unknown instr: ' + text)
    return ins
def need(prev, cur):
    n = 0
    pw = set(prev.w);
    if not pw and not prev.wide_store and prev.kind != 'mfma': return 0
    cr = set(cur.r); cw = set(cur.w)
    if prev.kind == 'valu':
        vw = {x for x in pw if x[0] in 'va'}; sw = {x for x in pw if x[0] == 's'}
        if cur.kind == 'mfma' and vw & cr: n = max(n, 2)
        if cur.kind == 'valu':
            if prev.mn.replace('_e64', '') in TRANS and cur.mn.replace('_e64', '') not in TRANS and vw & cr: n = max(n, 1)
            if cur.mn.startswith('v_permlane') and vw & cr: n = max(n, 2)
            if cur.mn in ('v_readfirstlane_b32', 'v_readlane_b32') and vw & cr: n = max(n, 1)
            if sw & cr: n = max(n, 2)
            if 'dpp' in cur.text and vw & cr: n = max(n, 2)
        if cur.kind == 'vmem' and sw & cr: n = max(n, 5)
        if ('s', 'exec') in sw and cur.kind == 'mfma': n = max(n, 4)
        if cur.kind == 'salu' and sw & cr: n = max(n, 1)
    if prev.kind == 'mfma':
        big = prev.passes == 8
        if cur.kind == 'mfma':
            if pw & set(cur.srcAB): n = max(n, 12 if big else 8)
            if pw & set(cur.srcC):
                if not (prev.w == cur.srcC and prev.passes == cur.passes): n = max(n, 10 if big else 6)
            if pw & cw and prev.w != cur.w: n = max(n, 12 if big else 8)
        elif cur.kind in ('valu', 'vmem', 'ds'):
            if pw & (cr | cw): n = max(n, 12 if big else 8)
            if cur.kind == 'valu' and set(prev.srcC) & cw: n = max(n, 7 if big else 3)
    if prev.kind == 'salu' and ('s', 'm0') in pw and cur.lds_dma: n = max(n, 1)
    if prev.wide_store and set(prev.srcC) & cw:
        n = max(n, 2 if cur.kind == 'valu' else 1)
    return n
def hazard_pass(lines, window=14, verbose=False):
    out = []; hist = []; ninserted = 0
    for ln in lines:
        ins = parse(ln)
        if ins.kind == 'meta':
            out.append(ln); continue
        req = 0; dist = 0
        for p in reversed(hist[-window:]):
            nd = need(p, ins)
            if nd > dist: req = max(req, nd - dist)
            dist += p.nstates
            if dist >= 13: break
        if req > 0:
            k = req
            while k > 0:
                c = min(k, 16); nop = f's_nop {c-1}'; out.append(nop); hist.append(parse(nop)); k -= c
            ninserted += req
            if verbose: print('hazard: +%d before %s' % (req, ln))
        out.append(ln); hist.append(ins)
    return out, ninserted
def check_loop(lines_body):
    two = list(lines_body) + list(lines_body)
    out, n = hazard_pass(two)
    out1, n1 = hazard_pass(list(lines_body))
    return n - 2 * n1

import os
STAMPS = os.environ.get('STAMPS', '0') == '1'
STAMP_BASE = 0x1800000
def stamp(a, idx, sreg=84):
    if not STAMPS: return
    r = sreg + 2 * idx
    a(f's_memtime s[{r}:{r+1}]')
    if idx == 0: a('s_memrealtime s[72:73]')
    if idx == 7: a('s_memrealtime s[74:75]')
def stamp_init(a, sW):
    if not STAMPS: return
    a(f's_mov_b32 s82, s{sW}')
    for i in range(1, 8): a(f's_mov_b32 s{84+2*i}, 0')
stamp_wave = stamp_init
def stamp_flush(a, n, kern, sreg=84):
    if not STAMPS: return
    a('s_waitcnt vmcnt(0) lgkmcnt(0)')
    a('s_load_dwordx2 s[76:77], s[0:1], 64'); a('s_waitcnt lgkmcnt(0)')
    a('s_mov_b32 s78, 0x4000000'); a('s_mov_b32 s79, 0x20000')
    a('s_lshl_b32 s80, s2, 4'); a('s_add_u32 s80, s80, s82'); a('s_lshl_b32 s80, s80, 6'); a(f's_add_u32 s80, s80, {STAMP_BASE + kern * 0x100000}')
    a('s_mov_b64 exec, 1'); a('v_mov_b32 v0, 0')
    for i in range(8):
        a(f'v_mov_b32 v2, s{sreg+2*i}'); a(f'buffer_store_dword v2, v0, s[76:79], s80 offen offset:{4*i}'); a('s_waitcnt vmcnt(0)')
    a('v_mov_b32 v2, s72'); a('v_mov_b32 v3, s74'); a('buffer_store_dwordx2 v[2:3], v0, s[76:79], s80 offen offset:32'); a('s_waitcnt vmcnt(0)')
    a('s_getreg_b32 s72, hwreg(HW_REG_HW_ID)'); a('s_getreg_b32 s74, hwreg(HW_REG_XCC_ID)')
    a('v_mov_b32 v2, s72'); a('v_mov_b32 v3, s74'); a('buffer_store_dwordx2 v[2:3], v0, s[76:79], s80 offen offset:40'); a('s_waitcnt vmcnt(0)')
```

```python
from asmlib import *
from maps import *
from k1 import srd
M32 = 'v_mfma_f32_32x32x16_bf16'; M16 = 'v_mfma_f32_16x16x32_bf16'
def gen_b2(a, tlabel, natt):
    WS, TB = 4, 8; sW, sPOS = 12, 13
    G, I, VWR, VRD = 4, 5, 6, 7
    F32 = ((8, 12, 16), (20, 24, 28)); F64 = ((32, 36, 40), (44, 48, 52))
    ARE, AIM = 56, 60; WR, WI = 56, 60
    TW1C, TW1S, TW2C, TW2S = 64, 72, 80, 88
    ACC = 96; FR = 112; T = 120
    a('v_lshrrev_b32 v2, 6, v0'); a('v_and_b32 v3, 63, v0'); a('v_lshlrev_b32 v1, 4, v3')
    a(f'v_readfirstlane_b32 s{sW}, v2')
    a('s_load_dwordx2 s[20:21], s[0:1], 64')
    a('s_getpc_b64 s[22:23]'); a.label('L_b2_pc'); a(f's_add_u32 s22, s22, {tlabel}-L_b2_pc'); a('s_addc_u32 s23, s23, 0')
    a(f's_cmp_ge_u32 s{sW}, 4'); a('s_cbranch_scc1 L_k2_end')
    stamp(a, 0); stamp_wave(a, sW)
    a(f's_sub_u32 s24, s2, {natt}'); a('s_and_b32 s25, s24, 7'); a('s_lshl_b32 s25, s25, 5'); a('s_lshr_b32 s26, s24, 3'); a('s_add_u32 s25, s25, s26')
    a('s_cmp_lt_u32 s24, 256'); a(f's_cselect_b32 s{sPOS}, s25, 256')
    a('s_waitcnt lgkmcnt(0)')
    srd(a, WS, 20, WS_USED); srd(a, TB, 22, 63488)
    a(f'v_lshrrev_b32 v{G}, 4, v3'); a(f'v_and_b32 v{I}, 15, v3'); a(f'v_lshl_add_u32 v{T}, v{G}, 6, v{I}'); a(f's_movk_i32 s24, {BLK}')
    a(f'v_mul_lo_u32 v{T}, v{T}, s24'); a(f'v_mul_lo_u32 v{T+1}, v3, s24')
    a(f's_lshl_b32 s25, s{sPOS}, 5'); a(f's_mul_i32 s26, s{sW}, {16*BLK}'); a('s_add_u32 s26, s26, s25'); a(f's_add_u32 s26, s26, {U1}')
    a(f's_mul_i32 s27, s{sW}, {64*BLK}'); a('s_add_u32 s27, s27, s25'); a(f's_add_u32 s27, s27, {WT}')
    a.vm_reset()
    a.vmem(f'buffer_load_dwordx4 {vr(ARE,4)}, v{T}, s[{WS}:{WS+3}], s26 offen', 'u'); a.vmem(f'buffer_load_dwordx4 {vr(AIM,4)}, v{T}, s[{WS}:{WS+3}], s26 offen offset:16', 'u')
    def tl(dst, soffreg, imm, tag): a.vmem(f'buffer_load_dwordx4 {vr(dst,4)}, v1, s[{TB}:{TB+3}], {soffreg} offen offset:{imm}', tag)
    a('s_mov_b32 s28, 4096')
    for q in range(6): tl(8 + 4 * q, '0' if q < 4 else 's28', (q % 4) * 1024, 'f32')
    a(f's_lshl_b32 s29, s{sW}, 12'); a(f's_add_u32 s30, s29, {T2_TW1}')
    for q in range(4): tl(TW1C + 4 * q, 's30', q * 1024, 'tw1')
    a(f's_mul_i32 s30, s{sW}, 6144'); a(f's_add_u32 s30, s30, {T2_F64}'); a('s_add_u32 s31, s30, 4096')
    for q in range(6): tl(32 + 4 * q, 's30' if q < 4 else 's31', (q % 4) * 1024, 'f64')
    a(f's_add_u32 s30, s29, {T2_TW2}')
    for q in range(4): tl(TW2C + 4 * q, 's30', q * 1024, 'tw2')
    a(f'v_mul_u32_u24 v{VRD}, 144, v{I}'); a(f'v_lshl_add_u32 v{VWR}, v{G}, 3, v{VRD}'); a(f'v_lshl_add_u32 v{VWR}, v2, 5, v{VWR}'); a(f'v_lshl_add_u32 v{VRD}, v{G}, 4, v{VRD}')
    a(f'v_mov_b32 v{T+7}, v{T+1}')
    acc = lambda nt, c: ACC + 8 * nt + 4 * c
    def cmul(nt, cre, sim, sign):
        for hh in range(2):
            re = vr(acc(nt, 0) + 2 * hh, 2); im = vr(acc(nt, 1) + 2 * hh, 2); c = vr(cre + 4 * nt + 2 * hh, 2); s = vr(sim + 4 * nt + 2 * hh, 2)
            n1 = ' neg_lo:[0,1,0] neg_hi:[0,1,0]'
            a(f'v_pk_mul_f32 {vr(T,2)}, {re}, {c}'); a(f'v_pk_mul_f32 {vr(T+2,2)}, {im}, {c}')
            a(f'v_pk_fma_f32 {vr(T,2)}, {im}, {s}, {vr(T,2)}' + (n1 if sign > 0 else ''))
            a(f'v_pk_fma_f32 {vr(T+2,2)}, {re}, {s}, {vr(T+2,2)}' + (n1 if sign < 0 else ''))
            yield hh
    a.vm_wait('f32')
    import os
    bp = int(os.environ.get('B2PRIO', '3'))
    if bp: a(f's_setprio {bp}')
    for nt in range(2):
        C, S_, nS = F32[nt]
        a(f'{M16} {vr(acc(nt,0),4)}, {vr(ARE,4)}, {vr(C,4)}, 0'); a(f'{M16} {vr(acc(nt,1),4)}, {vr(AIM,4)}, {vr(C,4)}, 0')
    for nt in range(2):
        C, S_, nS = F32[nt]
        a(f'{M16} {vr(acc(nt,0),4)}, {vr(AIM,4)}, {vr(S_,4)}, {vr(acc(nt,0),4)}'); a(f'{M16} {vr(acc(nt,1),4)}, {vr(ARE,4)}, {vr(nS,4)}, {vr(acc(nt,1),4)}')
    a('s_nop 3')
    a.vmem(f'buffer_load_dwordx4 {vr(WR,4)}, v{T+7}, s[{WS}:{WS+3}], s27 offen', 'w'); a.vmem(f'buffer_load_dwordx4 {vr(WI,4)}, v{T+7}, s[{WS}:{WS+3}], s27 offen offset:16', 'w')
    a.vm_wait('tw1'); stamp(a, 1)
    def twiddle_to_lds(cre, sim, sign, ldsbase):
        for nt in range(2):
            for hh in cmul(nt, cre, sim, sign):
                a(f'v_cvt_pk_bf16_f32 v{T+4+hh}, v{T}, v{T+1}'); a(f'v_cvt_pk_bf16_f32 v{FR+hh}, v{T+2}, v{T+3}')
            a(f'ds_write_b64 v{VWR}, {vr(T+4,2)} offset:{ldsbase + nt*2304}'); a(f'ds_write_b64 v{VWR}, {vr(FR,2)} offset:{ldsbase + 4608 + nt*2304}')
            a('s_nop 0')
    twiddle_to_lds(TW1C, TW1S, -1, 0)
    a('s_waitcnt lgkmcnt(0)'); a('s_barrier')
    fr = lambda c, kap: FR + 8 * c + 4 * kap
    def read_frags(ldsbase, nt):
        for kap in range(2):
            for c in range(2):
                a(f'ds_read_b128 {vr(fr(c,kap),4)}, v{VRD} offset:{ldsbase + c*4608 + nt*2304 + kap*64}')
    a.vm_wait('f64')
    for nt in range(2):
        read_frags(0, nt); a('s_waitcnt lgkmcnt(0)')
        for kap in range(2):
            C, S_, nS = F64[kap]
            a(f'{M16} {vr(acc(nt,0),4)}, {vr(C,4)}, {vr(fr(0,kap),4)}, ' + ('0' if kap == 0 else vr(acc(nt,0),4)))
            a(f'{M16} {vr(acc(nt,1),4)}, {vr(C,4)}, {vr(fr(1,kap),4)}, ' + ('0' if kap == 0 else vr(acc(nt,1),4)))
            a(f'{M16} {vr(acc(nt,0),4)}, {vr(S_,4)}, {vr(fr(1,kap),4)}, {vr(acc(nt,0),4)}')
            a(f'{M16} {vr(acc(nt,1),4)}, {vr(nS,4)}, {vr(fr(0,kap),4)}, {vr(acc(nt,1),4)}')
        a('s_nop 3')
    a.vm_wait('w')
    for q in range(4):
        a(f'v_lshlrev_b32 v{TW1C+2*q}, 16, v{WR+q}'); a(f'v_and_b32 v{TW1C+2*q+1}, 0xffff0000, v{WR+q}')
        a(f'v_lshlrev_b32 v{TW1S+2*q}, 16, v{WI+q}'); a(f'v_and_b32 v{TW1S+2*q+1}, 0xffff0000, v{WI+q}')
    a(f's_and_b32 s24, s{sPOS}, 255'); a('s_cmp_lg_u32 s24, 0'); a('s_cbranch_scc1 L_b2_nohalf')
    for q in range(16): a(f'v_mul_f32 v{TW1C+q}, 0.5, v{TW1C+q}')
    a.label('L_b2_nohalf')
    twiddle_to_lds(TW1C, TW1S, +1, 9216)
    a('s_waitcnt lgkmcnt(0)'); a('s_barrier')
    for nt in range(2):
        read_frags(9216, nt); a('s_waitcnt lgkmcnt(0)')
        for kap in range(2):
            C, S_, nS = F64[kap]
            a(f'{M16} {vr(acc(nt,0),4)}, {vr(fr(0,kap),4)}, {vr(C,4)}, ' + ('0' if kap == 0 else vr(acc(nt,0),4)))
            a(f'{M16} {vr(acc(nt,1),4)}, {vr(fr(1,kap),4)}, {vr(C,4)}, ' + ('0' if kap == 0 else vr(acc(nt,1),4)))
            a(f'{M16} {vr(acc(nt,0),4)}, {vr(fr(1,kap),4)}, {vr(nS,4)}, {vr(acc(nt,0),4)}')
            a(f'{M16} {vr(acc(nt,1),4)}, {vr(fr(0,kap),4)}, {vr(S_,4)}, {vr(acc(nt,1),4)}')
        a('s_nop 3')
    a.vm_wait('tw2')
    RRE, RIM = 56, 60
    for nt in range(2):
        for hh in cmul(nt, TW2C, TW2S, +1):
            a(f'v_cvt_pk_bf16_f32 v{RRE+2*nt+hh}, v{T}, v{T+1}'); a(f'v_cvt_pk_bf16_f32 v{RIM+2*nt+hh}, v{T+2}, v{T+3}')
    for mt in range(2):
        C, S_, nS = F32[mt]
        a(f'{M16} {vr(acc(mt,0),4)}, {vr(C,4)}, {vr(RRE,4)}, 0'); a(f'{M16} {vr(acc(mt,1),4)}, {vr(C,4)}, {vr(RIM,4)}, 0')
    for mt in range(2):
        C, S_, nS = F32[mt]
        a(f'{M16} {vr(acc(mt,0),4)}, {vr(nS,4)}, {vr(RIM,4)}, {vr(acc(mt,0),4)}'); a(f'{M16} {vr(acc(mt,1),4)}, {vr(S_,4)}, {vr(RRE,4)}, {vr(acc(mt,1),4)}')
    stamp(a, 2)
    a(f's_cmp_eq_u32 s{sPOS}, 256'); a('s_cbranch_scc1 L_b2_nyq')
    a(f'v_lshlrev_b32 v{T}, 18, v{G}'); a(f'v_lshl_add_u32 v{T}, v{I}, 10, v{T}')
    a(f's_lshl_b32 s24, s{sW}, 14'); a(f's_lshl_b32 s25, s{sPOS}, 2'); a('s_add_u32 s24, s24, s25'); a(f's_add_u32 s24, s24, {ZT}')
    a(f's_cmp_lg_u32 s{sPOS}, 0'); a('s_cbranch_scc1 L_b2_st')
    a('s_nop 7')
    for mt in range(2):
        for r in range(4): a(f'v_mov_b32 v{acc(mt,1)+r}, 0')
    a.label('L_b2_st')
    a('s_nop 7')
    for mt in range(2):
        for r in range(4):
            a(f'v_cvt_pk_bf16_f32 v{FR+4*mt+r}, v{acc(mt,0)+r}, v{acc(mt,1)+r}')
            a(f's_add_u32 s25, s24, {(16*mt+r)*65536}')
            a(f'buffer_store_dword v{FR+4*mt+r}, v{T}, s[{WS}:{WS+3}], s25 offen')
    if STAMPS: a('s_waitcnt vmcnt(0)'); stamp(a, 7); stamp_flush(a, 4, 1)
    a('s_endpgm')
    a.label('L_b2_nyq')
    a('s_nop 7')
    a(f'v_lshlrev_b32 v{T}, 10, v{G}'); a(f'v_lshl_add_u32 v{T}, v{I}, 2, v{T}')
    a(f's_lshl_b32 s24, s{sW}, 6'); a(f's_add_u32 s24, s24, {ZN}')
    for mt in range(2):
        for r in range(4):
            a(f's_add_u32 s25, s24, {(16*mt+r)*256}')
            a(f'buffer_store_dword v{acc(mt,0)+r}, v{T}, s[{WS}:{WS+3}], s25 offen')
    a('s_endpgm')
```

```python
from asmlib import *
from maps import *
SLOT = 28672; B1X = 114688; WPR = 123904; EXC = 133120; K1_LDS = 142592
QSCALE = 0x3eb8aa3b
def srd(a, d, ptr, size):
    a(f's_mov_b32 s{d}, s{ptr}'); a(f's_mov_b32 s{d+1}, s{ptr+1}'); a(f's_mov_b32 s{d+2}, {size}'); a(f's_mov_b32 s{d+3}, 0x20000')
def gen_k1(name, tlabel):
    a = Asm()
    X, WQ, BX, WSEL, WS, TB = 4, 8, 12, 16, 24, 28
    sW, sTB, sHP, sT, sXROW, sWOFF, sT2, sT3 = 32, 33, 34, 35, 52, 53, 54, 55
    a('s_cmp_ge_u32 s2, 256'); a('s_cbranch_scc1 L_k1_end')
    a('s_load_dwordx16 s[36:51], s[0:1], 0'); a('s_load_dwordx2 s[56:57], s[0:1], 64')
    a('s_getpc_b64 s[58:59]'); a.label('L_k1_pc')
    a(f's_add_u32 s58, s58, {tlabel}-L_k1_pc'); a('s_addc_u32 s59, s59, 0')
    a('v_lshrrev_b32 v2, 6, v0'); a('v_and_b32 v3, 63, v0'); a('v_lshlrev_b32 v1, 4, v3')
    a(f'v_readfirstlane_b32 s{sW}, v2'); stamp(a, 0); stamp_wave(a, sW)
    a('s_and_b32 s60, s2, 7'); a('s_lshr_b32 s61, s2, 3')
    a('s_lshr_b32 s62, s60, 1'); a('s_lshl_b32 s62, s62, 2'); a('s_and_b32 s63, s61, 3'); a(f's_add_u32 s{sTB}, s62, s63')
    a('s_and_b32 s62, s60, 1'); a('s_lshl_b32 s62, s62, 3'); a('s_lshr_b32 s63, s61, 2'); a(f's_add_u32 s{sHP}, s62, s63')
    a('s_waitcnt lgkmcnt(0)')
    srd(a, X, 36, 2048 * 512 * 2); srd(a, WQ, 38, 512 * 1536 * 2); srd(a, BX, 42, 2048 * 512 * 2)
    a(f's_cmp_lt_u32 s{sW}, 2'); a(f's_cselect_b32 s{WSEL}, s44, s46'); a(f's_cselect_b32 s{WSEL+1}, s45, s47')
    a(f's_mov_b32 s{WSEL+2}, {2048*257*2}'); a(f's_mov_b32 s{WSEL+3}, 0x20000')
    srd(a, WS, 56, WS_USED); srd(a, TB, 58, 10240)
    a('s_lshr_b32 s60, s2, 6'); a('s_lshl_b32 s60, s60, 2')
    a(f's_and_b32 s61, s{sW}, 1'); a('s_lshl_b32 s61, s61, 1')
    a(f's_lshr_b32 s62, s{sW}, 1'); a('s_lshl_b32 s62, s62, 4')
    a('s_add_u32 s60, s60, s61'); a('s_add_u32 s60, s60, s62')
    a('s_lshl_b32 s60, s60, 6'); a('s_and_b32 s61, s2, 63'); a('s_add_u32 s60, s60, s61')
    a('s_lshl_b32 s60, s60, 10')
    a(f's_mul_i32 s61, s{sW}, 2304'); a(f's_add_u32 s61, s61, {B1X}')
    a('s_mov_b32 m0, s61'); a('s_add_u32 s61, s61, 1152')
    a.vmem(f'buffer_load_dwordx4 v1, s[{BX}:{BX+3}], s60 offen lds', 'b1x')
    a('s_mov_b32 m0, s61'); a('s_add_u32 s60, s60, 65536')
    a.vmem(f'buffer_load_dwordx4 v1, s[{BX}:{BX+3}], s60 offen lds', 'b1x')
    for q in range(10):
        if q % 4 == 0: a(f's_mov_b32 s60, {q*1024}')
        a.vmem(f'buffer_load_dwordx4 {vr(112+4*q,4)}, v1, s[{TB}:{TB+3}], s60 offen offset:{(q%4)*1024}', 'b1t')
    a('s_and_b32 s60, s2, 15'); a('s_lshr_b32 s61, s2, 4'); a('s_lshl_b32 s61, s61, 7')
    a('s_add_u32 s60, s60, s61'); a(f's_and_b32 s61, s{sW}, 1'); a('s_lshl_b32 s61, s61, 4'); a('s_add_u32 s60, s60, s61')
    a('s_mul_i32 s60, s60, 514')
    a(f's_mul_i32 s61, s{sW}, {4*576}'); a(f's_add_u32 s61, s61, {WPR}')
    a('v_min_u32 v13, 498, v1')
    a('s_mov_b32 exec_hi, 1')
    for u in range(4):
        a('s_mov_b32 m0, s61'); a('s_add_u32 s61, s61, 576')
        a.vmem(f'buffer_load_dwordx4 v13, s[{WSEL}:{WSEL+3}], s60 offen lds', 'wp')
        if u < 3: a(f's_add_u32 s60, s60, {32*514}')
    a('s_mov_b64 exec, -1')
    a('v_lshrrev_b32 v4, 3, v3'); a('v_lshlrev_b32 v4, 10, v4'); a('v_and_b32 v5, 7, v3'); a('v_lshrrev_b32 v6, 4, v3')
    a('v_xor_b32 v5, v5, v6'); a('v_lshlrev_b32 v5, 4, v5'); a('v_add_u32 v106, v4, v5'); a('v_xor_b32 v107, 64, v106')
    for u in range(3):
        a(f'v_add_u32 v4, {64*u}, v3'); a('v_mul_u32_u24 v5, 171, v4'); a('v_lshrrev_b32 v5, 11, v5')
        a('v_mul_u32_u24 v6, 12, v5'); a('v_sub_u32 v6, v4, v6')
        a(f'v_lshl_add_u32 v5, v2, 4, v5'); a('v_mul_u32_u24 v5, 3072, v5')
        a('v_lshrrev_b32 v7, 2, v6'); a('v_lshlrev_b32 v7, 10, v7'); a('v_and_b32 v6, 3, v6'); a('v_lshlrev_b32 v6, 4, v6')
        a(f'v_add3_u32 v{108+u}, v5, v6, v7')
    a(f's_lshl_b32 s{sXROW}, s{sTB}, 7'); a(f's_lshl_b32 s60, s{sW}, 5'); a(f's_add_u32 s{sXROW}, s{sXROW}, s60'); a(f's_lshl_b32 s{sXROW}, s{sXROW}, 10')
    a(f's_lshl_b32 s{sWOFF}, s{sHP}, 6')
    a(f's_lshl_b32 s{sT2}, s{sW}, 12')
    a(f's_mul_i32 s{sT3}, s{sW}, 3072')
    def dma_stage(st):
        slot = (st % 4) * SLOT
        for q in range(4):
            a(f's_add_u32 s60, s{sT2}, {slot + q*1024}'); a('s_mov_b32 m0, s60')
            a(f's_add_u32 s61, s{sXROW}, {q*8192 + st*128}')
            a.vmem(f'buffer_load_dwordx4 v{106 + (q&1)}, s[{X}:{X+3}], s61 offen lds', f'g{st}')
        a(f's_add_u32 s61, s{sWOFF}, {st*64*3072}')
        for u in range(3):
            a(f's_add_u32 s60, s{sT3}, {slot + 16384 + u*1024}'); a('s_mov_b32 m0, s60')
            if u == 0: a('s_nop 0')
            a.vmem(f'buffer_load_dwordx4 v{108+u}, s[{WQ}:{WQ+3}], s61 offen lds', f'g{st}')
    for st in range(4): dma_stage(st)
    a('v_and_b32 v4, 31, v3'); a('v_lshrrev_b32 v5, 5, v3'); a('v_bfe_u32 v6, v4, 1, 3'); a('v_xor_b32 v5, v5, v6')
    a('v_lshlrev_b32 v5, 4, v5'); a('v_lshl_add_u32 v5, v4, 7, v5'); a('v_lshl_add_u32 v5, v2, 12, v5')
    for ks in range(4):
        a(f'v_xor_b32 v{96+ks}, {32*ks}, v5'); a(f'v_add_u32 v{100+ks}, {2*SLOT}, v{96+ks}')
    a('v_and_b32 v4, 15, v3'); a('v_lshrrev_b32 v5, 5, v3'); a('v_lshlrev_b32 v5, 3, v5'); a('v_lshrrev_b32 v6, 2, v4'); a('v_add_u32 v5, v5, v6')
    a('v_mul_u32_u24 v5, 192, v5'); a('v_bfe_u32 v6, v3, 4, 1'); a('v_lshlrev_b32 v6, 5, v6'); a('v_and_b32 v7, 3, v4'); a('v_lshlrev_b32 v7, 3, v7')
    a('v_add3_u32 v104, v5, v6, v7'); a(f'v_add_u32 v105, {2*SLOT}, v104')
    a('v_lshrrev_b32 v5, 5, v3'); a('v_lshlrev_b32 v5, 3, v5'); a('v_lshrrev_b32 v6, 2, v4'); a('v_add_u32 v5, v5, v6'); a('v_lshlrev_b32 v5, 5, v5')
    a('v_bfe_u32 v6, v3, 4, 1'); a('v_mul_u32_u24 v6, 1152, v6'); a('v_add3_u32 v5, v5, v6, v7')
    a('v_mul_u32_u24 v6, 2304, v2'); a('v_add_u32 v5, v5, v6'); a(f'v_add_u32 v8, {B1X}, v5')
    stamp(a, 1)
    a.vm_wait('b1t')
    stamp(a, 2)
    for kap in range(2):
        for rho in range(2):
            a(f'ds_read_b64_tr_b16 {vr(152+4*kap+2*rho,2)}, v8 offset:{(16*kap+4*rho)*32}')
    a('s_waitcnt lgkmcnt(0)')
    DRE, DIM = 160, 176
    a(f'v_mfma_f32_32x32x16_bf16 {vr(DRE,16)}, {vr(152,4)}, {vr(112,4)}, 0')
    a(f'v_mfma_f32_32x32x16_bf16 {vr(DIM,16)}, {vr(152,4)}, {vr(120,4)}, 0')
    a(f'v_mfma_f32_32x32x16_bf16 {vr(DRE,16)}, {vr(156,4)}, {vr(116,4)}, {vr(DRE,16)}')
    a(f'v_mfma_f32_32x32x16_bf16 {vr(DIM,16)}, {vr(156,4)}, {vr(124,4)}, {vr(DIM,16)}')
    a('v_and_b32 v4, 31, v3'); a('v_mul_u32_u24 v5, 144, v4'); a('v_lshrrev_b32 v6, 5, v3'); a('v_lshlrev_b32 v6, 6, v6')
    a('v_lshlrev_b32 v7, 2, v2'); a('v_add3_u32 v5, v5, v6, v7'); a(f'v_add_u32 v9, {EXC}, v5')
    TWC, TWS = 136, 144
    for p in range(8):
        r0 = 2 * p; c = TWC + (r0 & 7); s = TWS + (r0 & 7)
        a(f'v_pk_mul_f32 v[10:11], {vr(DRE+r0,2)}, {vr(c,2)}')
        a(f'v_pk_mul_f32 v[12:13], {vr(DIM+r0,2)}, {vr(c,2)}')
        a(f'v_pk_fma_f32 v[10:11], {vr(DIM+r0,2)}, {vr(s,2)}, v[10:11]')
        a(f'v_pk_fma_f32 v[12:13], {vr(DRE+r0,2)}, {vr(s,2)}, v[12:13] neg_lo:[0,1,0] neg_hi:[0,1,0]')
        a(f'v_cvt_pk_bf16_f32 v{192+p}, v10, v11'); a(f'v_cvt_pk_bf16_f32 v{200+p}, v12, v13')
    D2 = (208, 224)
    for r in range(2):
        a(f'v_mfma_f32_32x32x16_bf16 {vr(D2[r],16)}, {vr(128,4)}, {vr(192+4*r,4)}, 0')
    for r in range(2):
        a(f'v_mfma_f32_32x32x16_bf16 {vr(D2[r],16)}, {vr(132,4)}, {vr(200+4*r,4)}, {vr(D2[r],16)}')
    for rr in range(8):
        a(f'v_cvt_pk_bf16_f32 v{10+(rr&1)}, v{D2[0]+rr}, v{D2[1]+rr}')
        a(f'ds_write_b32 v9, v{10+(rr&1)} offset:{4608*(rr>>2) + 32*((rr>>1)&1) + 16*(rr&1)}')
    a('v_cvt_pk_bf16_f32 v10, v216, v232'); a('v_mov_b32 v11, 0'); a(f'v_lshlrev_b32 v12, 2, v2'); a(f'v_add_u32 v12, {EXC+9216}, v12')
    a('s_mov_b64 exec, 1')
    a('ds_write_b32 v12, v10'); a('ds_write_b32 v12, v11 offset:16')
    a('s_mov_b64 exec, -1')
    stamp(a, 3)
    a.vm_wait('g0'); a('s_waitcnt lgkmcnt(0)'); a('s_barrier')
    stamp(a, 4)
    XF = (64, 68); WF = (72, 84)
    def reads(st, ks, buf):
        slot = st % 4; hi = slot >= 2; so = (slot & 1) * SLOT
        a(f'ds_read_b128 {vr(XF[buf],4)}, v{(100 if hi else 96)+ks} offset:{so}')
        for jb in range(3):
            for rho in range(2):
                a(f'ds_read_b64_tr_b16 {vr(WF[buf]+4*jb+2*rho,2)}, v{105 if hi else 104} offset:{so + 16384 + (16*ks+4*rho)*192 + jb*64}')
    reads(0, 0, 0)
    a('v_lshrrev_b32 v4, 3, v0'); a('v_mul_u32_u24 v4, 144, v4'); a('v_and_b32 v5, 7, v0'); a('v_lshl_add_u32 v4, v5, 4, v4'); a(f'v_add_u32 v4, {EXC}, v4')
    a('ds_read_b128 v[112:115], v4'); a('ds_read_b128 v[116:119], v4 offset:4608')
    a('v_and_b32 v5, 15, v3'); a('v_lshrrev_b32 v6, 2, v5'); a('v_mul_u32_u24 v6, 576, v6'); a('v_and_b32 v5, 3, v5'); a('v_lshlrev_b32 v5, 3, v5')
    a('v_lshrrev_b32 v7, 4, v3'); a('v_lshlrev_b32 v7, 5, v7'); a('v_add3_u32 v5, v5, v6, v7'); a('v_lshl_add_u32 v5, v2, 7, v5'); a(f'v_add_u32 v5, {WPR}, v5')
    for rho in range(4):
        a(f'ds_read_b64_tr_b16 {vr(120+2*rho,2)}, v5 offset:{rho*2304}')
    a(f's_mul_i32 s60, s2, {BLK}'); a(f's_add_u32 s61, s60, {U1}'); a(f's_add_u32 s62, s60, {WT}')
    a('v_lshlrev_b32 v6, 4, v0')
    a('v_lshrrev_b32 v7, 1, v2'); a('v_lshlrev_b32 v7, 7, v7'); a('v_and_b32 v10, 31, v3'); a('v_lshl_add_u32 v7, v10, 2, v7')
    a('v_and_b32 v10, 1, v2'); a('v_lshl_add_u32 v7, v10, 1, v7'); a('v_lshrrev_b32 v10, 5, v3'); a('v_add_u32 v7, v7, v10'); a('v_lshlrev_b32 v7, 5, v7')
    a('s_waitcnt lgkmcnt(4)')
    a.vmem(f'buffer_store_dwordx4 v[112:115], v6, s[{WS}:{WS+3}], s61 offen', 'st')
    a('s_add_u32 s63, s61, 4096')
    a.vmem(f'buffer_store_dwordx4 v[116:119], v6, s[{WS}:{WS+3}], s63 offen', 'st')
    a('s_waitcnt lgkmcnt(0)')
    a.vmem(f'buffer_store_dwordx4 v[120:123], v7, s[{WS}:{WS+3}], s62 offen', 'st')
    a.vmem(f'buffer_store_dwordx4 v[124:127], v7, s[{WS}:{WS+3}], s62 offen offset:16', 'st')
    a(f's_cmp_lg_u32 s{sW}, 0'); a('s_cbranch_scc1 L_k1_nonyq')
    a('s_add_u32 s61, s61, 8192'); a('s_add_u32 s62, s62, 8192')
    a('s_mov_b64 exec, 0xffff')
    a('v_mul_u32_u24 v4, 576, v3'); a(f'v_add_u32 v4, {WPR+526}, v4'); a('ds_read_u16 v10, v4')
    a('v_lshlrev_b32 v5, 2, v3'); a(f'v_add_u32 v4, {EXC+9216}, v5'); a('ds_read_b32 v11, v4')
    a('v_lshlrev_b32 v4, 1, v3')
    a('s_waitcnt lgkmcnt(0)')
    a(f'buffer_store_short v10, v4, s[{WS}:{WS+3}], s62 offen')
    a('s_mov_b64 exec, 0xff')
    a(f'buffer_store_dword v11, v5, s[{WS}:{WS+3}], s61 offen')
    a('s_mov_b64 exec, -1')
    a.label('L_k1_nonyq')
    stamp(a, 5)
    ACC = (16, 32, 48)
    def mfmas(buf, first):
        x = vr(XF[buf], 4)
        for jb in range(3):
            wv = vr(WF[buf] + 4 * jb, 4); d = vr(ACC[jb], 16); c = '0' if first else d
            if jb < 2: a(f'v_mfma_f32_32x32x16_bf16 {d}, {wv}, {x}, {c}')
            else:      a(f'v_mfma_f32_32x32x16_bf16 {d}, {x}, {wv}, {c}')
    step = 0
    for st in range(8):
        for ks in range(4):
            buf = step & 1
            if ks < 3:
                reads(st, ks + 1, buf ^ 1)
                a('s_waitcnt lgkmcnt(7)')
                mfmas(buf, step == 0)
            else:
                if st < 7:
                    a('s_waitcnt lgkmcnt(0)')
                    a.vm_wait(f'g{st+1}'); a('s_barrier')
                    if st + 4 < 8: dma_stage(st + 4)
                    reads(st + 1, 0, buf ^ 1)
                    mfmas(buf, False)
                else:
                    a('s_waitcnt lgkmcnt(0)')
                    mfmas(buf, False)
            step += 1
    stamp(a, 6)
    a(f's_lshl_b32 s60, s{sTB}, 2'); a(f's_add_u32 s60, s60, s{sW}'); a('s_lshl_b32 s60, s60, 10')
    a(f's_lshl_b32 s61, s{sHP}, 17'); a('s_add_u32 s60, s60, s61')
    a(f's_add_u32 s61, s60, {QF}'); a(f's_add_u32 s62, s60, {QF+65536}')
    a(f's_add_u32 s63, s60, {KF}'); a(f's_add_u32 s64, s60, {KF+65536}'); a(f's_add_u32 s65, s60, {VF}')
    a('v_bfe_u32 v4, v3, 4, 1'); a('v_lshlrev_b32 v4, 16, v4'); a('v_lshrrev_b32 v5, 5, v3'); a('v_lshlrev_b32 v5, 8, v5')
    a('v_and_b32 v6, 15, v3'); a('v_lshlrev_b32 v6, 4, v6'); a('v_add3_u32 v4, v4, v5, v6')
    for p in range(8):
        a(f'v_mul_f32 v{ACC[0]+2*p}, {QSCALE}, v{ACC[0]+2*p}'); a(f'v_mul_f32 v{ACC[0]+2*p+1}, {QSCALE}, v{ACC[0]+2*p+1}')
    for jb in range(3):
        for p in range(8):
            a(f'v_cvt_pk_bf16_f32 v{64+8*jb+p}, v{ACC[jb]+2*p}, v{ACC[jb]+2*p+1}')
    a(f'buffer_store_dwordx4 v[64:67], v1, s[{WS}:{WS+3}], s61 offen'); a(f'buffer_store_dwordx4 v[68:71], v1, s[{WS}:{WS+3}], s62 offen')
    a(f'buffer_store_dwordx4 v[72:75], v1, s[{WS}:{WS+3}], s63 offen'); a(f'buffer_store_dwordx4 v[76:79], v1, s[{WS}:{WS+3}], s64 offen')
    a(f'buffer_store_dwordx4 v[80:83], v4, s[{WS}:{WS+3}], s65 offen'); a(f'buffer_store_dwordx4 v[84:87], v4, s[{WS}:{WS+3}], s65 offen offset:512')
    a('s_waitcnt vmcnt(0)') if STAMPS else None
    stamp(a, 7); stamp_flush(a, 4, 0)
    a.label('L_k1_end')
    a('s_endpgm')
    return a
```

```python
import os
from asmlib import *
from maps import *
from k1 import srd
DG = os.environ.get('DG', '').split(',')
NATT = 256
K2_GRID = NATT if 'nob2' in DG else NATT + 257
K2_LDS = 49152 + 256; K2_VGPR = 128; K2_BLOCK = 512
M32 = 'v_mfma_f32_32x32x16_bf16'; M16 = 'v_mfma_f32_16x16x32_bf16'
SLOTB = 12288
def gen_attn(a):
    WS = 4; sW, sK, sV, sC, sBIG, sVM, sIT, sLK, sLV, sKM, sEP = 8, 9, 10, 11, 12, 14, 16, 17, 18, 36, 38
    Q = 4; KB = (8, 12); VB = (16, 24); S = (32, 48); O = 64; P = 80; E = 88; vV = 94; T0 = 95; vC = 96; vOne = 97; vF = 98
    a('s_load_dwordx2 s[20:21], s[0:1], 64')
    a('v_lshrrev_b32 v2, 6, v0'); a('v_and_b32 v3, 63, v0'); a('v_lshlrev_b32 v1, 4, v3')
    a(f'v_readfirstlane_b32 s{sW}, v2'); stamp(a, 0); stamp_wave(a, sW)
    a('s_and_b32 s22, s2, 7'); a('s_lshl_b32 s22, s22, 2'); a('s_bfe_u32 s23, s2, 0x20003'); a('s_add_u32 s22, s22, s23')
    a('s_lshr_b32 s23, s2, 5'); a('s_lshl_b32 s23, s23, 3'); a(f's_add_u32 s23, s23, s{sW}')
    a('s_lshl_b32 s24, s22, 16')
    a(f's_lshr_b32 s25, s{sW}, 1'); a(f's_and_b32 s26, s{sW}, 1')
    a('s_lshl_b32 s27, s25, 10'); a('s_lshl_b32 s29, s26, 9'); a('s_add_u32 s27, s27, s29')
    a(f's_mov_b32 s{sLK}, s27')
    a(f's_lshl_b32 s{sLV}, s25, 11'); a('s_lshl_b32 s29, s26, 10'); a(f's_add_u32 s{sLV}, s{sLV}, s29'); a(f's_add_u32 s{sLV}, s{sLV}, 4096')
    a(f's_add_u32 s{sK}, s24, s27'); a(f's_add_u32 s{sV}, s{sK}, {VF}'); a(f's_add_u32 s{sK}, s{sK}, {KF}')
    a(f's_lshl_b32 s26, s23, 10'); a(f's_add_u32 s19, s24, s26'); a(f's_add_u32 s19, s19, {QF}')
    a('s_lshl_b32 s26, s23, 15'); a('s_lshl_b32 s27, s22, 10'); a('s_add_u32 s28, s26, s27'); a(f's_add_u32 s28, s28, {OF}')
    a(f's_mov_b32 s{sBIG}, 0x7ff00000'); a(f's_mov_b32 s{sVM}, 0xffff'); a(f's_mov_b32 s{sVM+1}, 0xffff')
    a(f's_mov_b32 s{sKM}, -1'); a(f's_mov_b32 s{sKM+1}, 0')
    a(f'v_lshrrev_b32 v{vV}, 5, v3'); a(f'v_lshlrev_b32 v{vV}, 8, v{vV}'); a(f'v_and_b32 v{T0}, 15, v3'); a(f'v_lshl_add_u32 v{vV}, v{T0}, 4, v{vV}')
    a('s_waitcnt lgkmcnt(0)')
    srd(a, WS, 20, WS_USED)
    def dma_list(slot, guard):
        L = []; ko, vo = f's{sK}', f's{sV}'
        if guard:
            L += [f's_cmp_lt_u32 s{sC}, 16', f's_cselect_b32 s30, s{sK}, s{sBIG}', f's_cselect_b32 s31, s{sV}, s{sBIG}']; ko, vo = 's30', 's31'
        L += [f's_add_u32 s33, s{sLV}, {slot*SLOTB}',
              [f's_add_u32 m0, s{sLK}, {slot*SLOTB}', f's_mov_b64 exec, s[{sKM}:{sKM+1}]', f'buffer_load_dwordx4 v1, s[{WS}:{WS+3}], {ko} offen lds',
               's_mov_b32 m0, s33', f's_mov_b64 exec, s[{sVM}:{sVM+1}]', f'buffer_load_dwordx4 v{vV}, s[{WS}:{WS+3}], {vo} offen lds', 's_mov_b64 exec, -1'],
              f's_add_u32 s{sK}, s{sK}, 4096', f's_add_u32 s{sV}, s{sV}, 4096', f's_add_u32 s{sC}, s{sC}, 1']
        return L
    def emit(L):
        for x in L:
            if isinstance(x, list): emit(x)
            else: a(x)
    a(f's_mov_b32 s{sC}, 0')
    emit(dma_list(0, False))
    a(f'buffer_load_dwordx4 {vr(Q,4)}, v1, s[{WS}:{WS+3}], s19 offen')
    emit(dma_list(1, False))
    a(f'v_and_b32 v{T0}, 27, v3'); a(f'v_cmp_eq_u32 vcc, 16, v{T0}'); a(f'v_mov_b32 v{E}, 0x3f803f80'); a(f'v_cndmask_b32 v{P}, 0, v{E}, vcc')
    for i in range(1, 4): a(f'v_mov_b32 v{P+i}, v{P}')
    a(f'v_add_u32 v{T0}, s{sLV}, v1')
    a(f's_not_b64 exec, s[{sVM}:{sVM+1}]')
    for slot in range(4): a(f'ds_write_b128 v{T0}, {vr(P,4)} offset:{slot*SLOTB}')
    a('s_mov_b64 exec, -1')
    for i in range(8): a(f'v_mov_b32 v{VB[1]+i}, 0')
    for i in range(16): a(f'v_mov_b32 v{O+i}, 0')
    for i in range(8): a(f'v_mov_b32 v{P+i}, 0')
    for i in range(6): a(f'v_mov_b32 v{E+i}, 0')
    a(f'v_mov_b32 v{vC}, 49152'); a(f'v_mov_b32 v{vOne}, 1'); a(f'v_mov_b32 v{T0}, 0')
    a(f'ds_write_b32 v{vC}, v{T0}')
    a(f's_mov_b32 s{sEP}, 0')
    a('s_waitcnt vmcnt(2) lgkmcnt(0)'); a('s_barrier')
    emit(dma_list(2, False))
    rdK = lambda t, buf: f'ds_read_b128 {vr(KB[buf],4)}, v1 offset:{((t>>2)&3)*SLOTB + (t&3)*1024}'
    rdV = lambda t, buf, j2: f'ds_read_b128 {vr(VB[buf]+4*j2,4)}, v1 offset:{((t>>2)&3)*SLOTB + 4096 + (t&3)*2048 + j2*1024}'
    a(rdK(0, 0)); a(rdV(0, 0, 0)); a(rdV(0, 0, 1)); a(rdK(1, 1))
    a('s_waitcnt lgkmcnt(3)')
    a(f'{M32} {vr(S[0],16)}, {vr(KB[0],4)}, {vr(Q,4)}, 0')
    a('s_nop 7'); a('s_nop 3')
    a(f's_mov_b32 s{sIT}, {64 // 16}'); stamp(a, 1)
    def body(t):
        cur = t & 1; nxt = cur ^ 1; s = S[cur]
        q = [] if 'nolds' in DG else [rdK(t + 2, cur), rdV(t + 1, nxt, 0), rdV(t + 1, nxt, 1)]
        pre = [f's_setprio {3 - ((t + 2) & 3)}'] if 'noprio' not in DG else []
        pre += ['s_waitcnt lgkmcnt(0)']
        if 'oldbar' in DG:
            if t % 4 == 2:
                pre = ['s_waitcnt vmcnt(2)', 's_barrier'] + pre
                q = q + dma_list(((t + 2) // 4 + 2) % 4, True)
        else:
            if t % 4 == 0:
                q = q + ['s_waitcnt vmcnt(2)', ['s_mov_b64 exec, 1', f'ds_add_u32 v{vC}, v{vOne}', 's_mov_b64 exec, -1'], f's_add_u32 s{sEP}, s{sEP}, 8']
            if t % 4 == 1:
                q = q + [f'ds_read_b32 v{vF}, v{vC}']
            if t % 4 == 2:
                lab = f'L_att_spin{t}'; ok = f'L_att_go{t}'
                pre = pre + [f'v_readfirstlane_b32 s39, v{vF}', f's_cmp_ge_u32 s39, s{sEP}', f's_cbranch_scc1 {ok}', f'{lab}:', 's_sleep 1', f'ds_read_b32 v{vF}, v{vC}', 's_waitcnt lgkmcnt(0)',
                             f'v_readfirstlane_b32 s39, v{vF}', f's_cmp_ge_u32 s39, s{sEP}', f's_cbranch_scc0 {lab}', f'{ok}:']
                q = q + dma_list(((t + 2) // 4 + 2) % 4, True)
        def e(i):
            a(f'v_exp_f32 v{E + i % 6}, v{s+i}')
            if i >= 3 and q:
                x = q.pop(0)
                if isinstance(x, list): emit(x)
                else: a(x)
        c = lambda i: a(f'v_cvt_pk_bf16_f32 v{P+i}, v{E + (2*i) % 6}, v{E + (2*i+1) % 6}')
        emit(pre)
        a(f'{M32} {vr(S[nxt],16)}, {vr(KB[nxt],4)}, {vr(Q,4)}, 0')
        c(7)
        e(0); e(1); e(2)
        a(f'{M32} {vr(O,16)}, {vr(VB[nxt]+4,4)}, {vr(P+4,4)}, {vr(O,16)}')
        e(3); c(0); e(4); c(1); e(5); e(6); c(2); e(7); e(8); c(3); e(9); e(10)
        a(f'{M32} {vr(O,16)}, {vr(VB[cur],4)}, {vr(P,4)}, {vr(O,16)}')
        c(4); e(11); e(12); c(5); e(13); e(14); c(6); e(15)
        emit(q)
    a.label('L_att_loop')
    start = len(a.lines)
    for t in range(16): body(t)
    tail = [f's_sub_u32 s{sIT}, s{sIT}, 1', f's_cmp_lg_u32 s{sIT}, 0', 's_cbranch_scc1 L_att_loop']
    bodyl = a.lines[start:]
    emit(tail)
    extra = check_loop(bodyl + tail)
    assert extra == 0, extra
    stamp(a, 2)
    a(f'v_cvt_pk_bf16_f32 v{P+7}, v{E + 14 % 6}, v{E + 15 % 6}'); a('s_nop 1')
    a(f'{M32} {vr(O,16)}, {vr(VB[1]+4,4)}, {vr(P+4,4)}, {vr(O,16)}')
    a('s_waitcnt vmcnt(0) lgkmcnt(0)')
    a('s_nop 7'); a('s_nop 3')
    o = O
    a(f'v_mul_f32 v{T0}, 0, v{o}')
    for i in range(1, 8): a(f'v_fma_f32 v{T0}, v{o+i}, 0, v{T0}')
    a(f'v_cmp_eq_f32 s[30:31], 0, v{T0}')
    a(f'v_mov_b32 v{E}, 0x21800000'); a(f'v_cmp_le_f32 s[32:33], v{E}, v{o+8}')
    a(f'v_mov_b32 v{E}, 0x5d800000'); a(f'v_cmp_ge_f32 s[34:35], v{E}, v{o+8}')
    a('s_and_b64 s[30:31], s[30:31], s[32:33]'); a('s_and_b64 s[30:31], s[30:31], s[34:35]')
    a('s_cmp_eq_u64 s[30:31], -1'); a(f's_cbranch_scc0 L_att_fallback')
    a.label(f'L_att_fin')
    a(f'v_rcp_f32 v{T0}, v{o+8}')
    for i in range(8): a(f'v_mul_f32 v{o+i}, v{o+i}, v{T0}')
    for i in range(4): a(f'v_cvt_pk_bf16_f32 v{P+i}, v{o+2*i}, v{o+2*i+1}')
    a(f'buffer_store_dwordx4 {vr(P,4)}, v1, s[{WS}:{WS+3}], s28 offen')
    if STAMPS: a('s_waitcnt vmcnt(0)'); stamp(a, 7); stamp_flush(a, 4, 1)
    a('s_endpgm')
    q = Q; m = E
    a.label(f'L_att_fallback')
    a('s_setprio 0'); a('s_nop 7'); a('s_nop 7')
    a(f's_add_u32 s30, s24, {KF}'); a(f's_add_u32 s31, s24, {VF}')
    a(f'v_mov_b32 v{m}, 0xff800000')
    a(f's_mov_b32 s{sIT}, 64'); a('s_mov_b32 s32, s30')
    a.label(f'L_fb_max')
    a(f'buffer_load_dwordx4 {vr(KB[0],4)}, v1, s[{WS}:{WS+3}], s32 offen'); a('s_waitcnt vmcnt(0)')
    a(f'{M32} {vr(S[0],16)}, {vr(KB[0],4)}, {vr(q,4)}, 0')
    a('s_nop 7'); a('s_nop 7')
    for i in range(8): a(f'v_max3_f32 v{m}, v{m}, v{S[0]+2*i}, v{S[0]+2*i+1}')
    a('s_add_u32 s32, s32, 1024'); a(f's_sub_u32 s{sIT}, s{sIT}, 1'); a(f's_cmp_lg_u32 s{sIT}, 0'); a(f's_cbranch_scc1 L_fb_max')
    a(f'v_mov_b32 v{m+1}, v{m}'); a('s_nop 1'); a(f'v_permlane32_swap_b32 v{m}, v{m+1}'); a('s_nop 1'); a(f'v_max_f32 v{m}, v{m}, v{m+1}')
    for i in range(16): a(f'v_sub_f32 v{S[1]+i}, 0, v{m}')
    for i in range(16): a(f'v_mov_b32 v{o+i}, 0')
    a(f'v_and_b32 v{m}, 27, v3'); a(f'v_cmp_eq_u32 vcc, 16, v{m}'); a(f'v_mov_b32 v{m+1}, 0x3f803f80'); a('s_nop 1'); a(f'v_cndmask_b32 v{m}, 0, v{m+1}, vcc')
    for i in range(8): a(f'v_mov_b32 v{VB[0]+i}, v{m}')
    a(f's_mov_b32 s{sIT}, 64')
    a.label(f'L_fb_pv')
    a(f'buffer_load_dwordx4 {vr(KB[0],4)}, v1, s[{WS}:{WS+3}], s30 offen')
    a(f's_mov_b64 exec, s[{sVM}:{sVM+1}]')
    a(f'buffer_load_dwordx4 {vr(VB[0],4)}, v{vV}, s[{WS}:{WS+3}], s31 offen'); a(f'buffer_load_dwordx4 {vr(VB[0]+4,4)}, v{vV}, s[{WS}:{WS+3}], s31 offen offset:512')
    a('s_mov_b64 exec, -1')
    a('s_waitcnt vmcnt(0)'); a('s_nop 7')
    a(f'{M32} {vr(S[0],16)}, {vr(KB[0],4)}, {vr(q,4)}, {vr(S[1],16)}')
    a('s_nop 7'); a('s_nop 7')
    for i in range(16): a(f'v_exp_f32 v{S[0]+i}, v{S[0]+i}')
    a('s_nop 1')
    for i in range(8): a(f'v_cvt_pk_bf16_f32 v{P+i}, v{S[0]+2*i}, v{S[0]+2*i+1}')
    a('s_nop 1')
    a(f'{M32} {vr(o,16)}, {vr(VB[0],4)}, {vr(P,4)}, {vr(o,16)}'); a(f'{M32} {vr(o,16)}, {vr(VB[0]+4,4)}, {vr(P+4,4)}, {vr(o,16)}')
    a('s_nop 7'); a('s_nop 7')
    a('s_add_u32 s30, s30, 1024'); a('s_add_u32 s31, s31, 1024'); a(f's_sub_u32 s{sIT}, s{sIT}, 1'); a(f's_cmp_lg_u32 s{sIT}, 0'); a(f's_cbranch_scc1 L_fb_pv')
    a('s_nop 7'); a('s_nop 7')
    a(f's_branch L_att_fin')
def gen_k2(name, tlabel):
    import b2
    a = Asm()
    a(f's_cmp_ge_u32 s2, {NATT}'); a('s_cbranch_scc1 L_k2_b2')
    gen_attn(a)
    a.label('L_k2_b2')
    a(f's_cmp_ge_u32 s2, {K2_GRID}'); a('s_cbranch_scc1 L_k2_end')
    b2.gen_b2(a, tlabel, NATT)
    a.label('L_k2_end'); a('s_endpgm')
    return a
```

```python
from asmlib import *
from maps import *
from k1 import srd
K3_LDS = 65536; K3_VGPR = 248
M32 = 'v_mfma_f32_32x32x16_bf16'; M16 = 'v_mfma_f32_16x16x32_bf16'
def gen_k3(name, tlabel):
    a = Asm()
    WS, WO, OUT, TB = 4, 8, 12, 16; sW, sTB, sNB = 20, 21, 22
    a('s_cmp_ge_u32 s2, 256'); a('s_cbranch_scc1 L_k3_end')
    a('s_load_dwordx2 s[24:25], s[0:1], 16'); a('s_load_dwordx2 s[26:27], s[0:1], 48'); a('s_load_dwordx2 s[28:29], s[0:1], 64')
    a('s_getpc_b64 s[30:31]'); a.label('L_k3_pc'); a(f's_add_u32 s30, s30, {tlabel}-L_k3_pc'); a('s_addc_u32 s31, s31, 0')
    a('v_lshrrev_b32 v2, 6, v0'); a('v_and_b32 v3, 63, v0'); a('v_lshlrev_b32 v1, 4, v3')
    a(f'v_readfirstlane_b32 s{sW}, v2'); stamp(a, 0); stamp_wave(a, sW)
    a('s_and_b32 s32, s2, 7'); a('s_lshr_b32 s33, s2, 3'); a('s_lshl_b32 s32, s32, 2'); a('s_and_b32 s34, s33, 3'); a(f's_add_u32 s{sTB}, s32, s34'); a(f's_lshr_b32 s{sNB}, s33, 2')
    a('s_waitcnt lgkmcnt(0)')
    srd(a, WS, 28, WS_USED); srd(a, WO, 24, 512 * 512 * 2); srd(a, OUT, 26, 2048 * 1024 * 2); srd(a, TB, 30, 16384)
    A0, A1, B1T, B2T, TWC, TWS, DRE, DIM, PK = 128, 132, 136, 152, 168, 184, 200, 216, 232
    a('s_lshl_b32 s32, s2, 3'); a(f's_lshl_b32 s33, s{sW}, 1'); a('s_add_u32 s32, s32, s33')
    a('s_lshl_b32 s33, s32, 10'); a(f's_add_u32 s33, s33, {ZT}')
    a.vmem(f'buffer_load_dwordx4 {vr(A0,4)}, v1, s[{WS}:{WS+3}], s33 offen', 'z'); a.vmem(f'buffer_load_dwordx4 {vr(A1,4)}, v1, s[{WS}:{WS+3}], s33 offen offset:1024', 'z')
    a('s_lshl_b32 s33, s32, 2'); a(f's_add_u32 s33, s33, {ZN}'); a('v_bfe_u32 v4, v3, 4, 1'); a('v_lshlrev_b32 v4, 2, v4')
    a.vmem(f'buffer_load_dword v5, v4, s[{WS}:{WS+3}], s33 offen', 'z')
    for q in range(16):
        if q % 4 == 0: a(f's_mov_b32 s33, {q*1024}')
        a.vmem(f'buffer_load_dwordx4 {vr(B1T+4*q,4)}, v1, s[{TB}:{TB+3}], s33 offen offset:{(q%4)*1024}', 't')
    a('v_lshrrev_b32 v7, 5, v3'); a('v_lshlrev_b32 v7, 10, v7'); a('v_bfe_u32 v8, v3, 4, 1'); a('v_lshlrev_b32 v8, 9, v8'); a('v_and_b32 v9, 15, v3'); a('v_lshlrev_b32 v9, 4, v9')
    a('v_add3_u32 v6, v7, v8, v9'); a('v_and_b32 v7, 1, v2'); a('v_lshl_add_u32 v6, v7, 8, v6')
    a(f's_lshl_b32 s33, s{sTB}, 1'); a(f's_lshr_b32 s34, s{sW}, 1'); a('s_add_u32 s33, s33, s34'); a('s_lshl_b32 s33, s33, 15'); a(f's_add_u32 s33, s33, {OF}')
    a('v_lshrrev_b32 v7, 3, v3'); a('v_and_b32 v8, 6, v7'); a('v_and_b32 v9, 7, v3'); a('v_xor_b32 v8, v8, v9'); a('v_lshlrev_b32 v8, 4, v8'); a('v_lshl_add_u32 v10, v7, 10, v8')
    a(f's_lshl_b32 s34, s{sW}, 12'); a(f's_lshl_b32 s35, s{sW}, 15'); a(f's_lshl_b32 s36, s{sNB}, 7'); a('s_add_u32 s35, s35, s36')
    OFR = 16
    for g in range(4):
        for u in range(4):
            ks = 4 * g + u
            if ks % 2 == 0: a(f's_add_u32 s36, s33, {(ks>>1)*4096}')
            a.vmem(f'buffer_load_dwordx4 {vr(OFR+4*ks,4)}, v6, s[{WS}:{WS+3}], s36 offen offset:{(ks&1)*2048}', f'o{g}')
        for u in range(4):
            a(f's_add_u32 s36, s34, {g*16384 + u*1024}'); a('s_mov_b32 m0, s36'); a(f's_add_u32 s37, s35, {(16*g+u)*8192}')
            a.vmem(f'buffer_load_dwordx4 v10, s[{WO}:{WO+3}], s37 offen lds', f'w{g}')
    a('v_lshrrev_b32 v7, 5, v3'); a('v_lshlrev_b32 v7, 4, v7'); a('v_bfe_u32 v8, v3, 4, 1'); a('v_lshl_add_u32 v7, v8, 2, v7'); a('v_bfe_u32 v9, v3, 2, 2'); a('v_add_u32 v7, v7, v9')
    a('v_lshlrev_b32 v7, 7, v7')
    a('v_and_b32 v9, 2, v9'); a('v_lshl_add_u32 v9, v8, 2, v9')
    a('v_bfe_u32 v8, v3, 1, 1'); a('v_lshl_add_u32 v7, v8, 4, v7'); a('v_and_b32 v8, 1, v3'); a('v_lshl_add_u32 v7, v8, 3, v7')
    for nt in range(4):
        a(f'v_xor_b32 v8, {2*nt}, v9'); a(f'v_lshl_add_u32 v{11+nt}, v8, 4, v7')
    a('v_and_b32 v7, 1, v3'); a('v_lshlrev_b32 v7, 31, v7'); a('v_or_b32 v7, 0x36000000, v7'); a('v_cmp_gt_u32 vcc, 32, v3'); a('v_cndmask_b32 v4, 0, v7, vcc')
    a.vm_wait('t')
    a(f'{M32} {vr(DRE,16)}, {vr(A0,4)}, {vr(B1T,4)}, 0'); a(f'{M32} {vr(DIM,16)}, {vr(A0,4)}, {vr(B1T+8,4)}, 0')
    a(f'{M32} {vr(DRE,16)}, {vr(A1,4)}, {vr(B1T+4,4)}, {vr(DRE,16)}'); a(f'{M32} {vr(DIM,16)}, {vr(A1,4)}, {vr(B1T+12,4)}, {vr(DIM,16)}')
    a(f'v_fma_f32 v{DRE}, v5, v4, v{DRE}')
    n1 = ' neg_lo:[0,1,0] neg_hi:[0,1,0]'
    for p in range(8):
        re = vr(DRE + 2 * p, 2); im = vr(DIM + 2 * p, 2); c = vr(TWC + 2 * p, 2); s = vr(TWS + 2 * p, 2)
        a(f'v_pk_mul_f32 v[128:129], {re}, {c}'); a(f'v_pk_mul_f32 v[130:131], {im}, {c}')
        a(f'v_pk_fma_f32 v[128:129], {im}, {s}, v[128:129]' + n1); a(f'v_pk_fma_f32 v[130:131], {re}, {s}, v[130:131]')
        a(f'v_cvt_pk_bf16_f32 v{PK+p}, v128, v129'); a(f'v_cvt_pk_bf16_f32 v{PK+8+p}, v130, v131')
    a(f'{M32} {vr(DRE,16)}, {vr(PK,4)}, {vr(B2T,4)}, 0'); a(f'{M32} {vr(DRE,16)}, {vr(PK+4,4)}, {vr(B2T+4,4)}, {vr(DRE,16)}')
    a(f'{M32} {vr(DRE,16)}, {vr(PK+8,4)}, {vr(B2T+8,4)}, {vr(DRE,16)}'); a(f'{M32} {vr(DRE,16)}, {vr(PK+12,4)}, {vr(B2T+12,4)}, {vr(DRE,16)}')
    a('v_and_b32 v7, 31, v3'); a('v_lshlrev_b32 v7, 5, v7'); a('v_lshrrev_b32 v8, 5, v3'); a('v_lshl_add_u32 v5, v8, 4, v7')
    a('s_lshl_b32 s33, s32, 11'); a('s_add_u32 s33, s33, 1024')
    for r in range(2):
        for p in range(4): a(f'v_cvt_pk_bf16_f32 v{PK+4*r+p}, v{DRE+8*r+2*p}, v{DRE+8*r+2*p+1}')
        a(f'v_permlane32_swap_b32 v{PK+4*r}, v{PK+4*r+2}'); a(f'v_permlane32_swap_b32 v{PK+4*r+1}, v{PK+4*r+3}')
    a.vmem(f'buffer_store_dwordx4 {vr(PK,4)}, v5, s[{OUT}:{OUT+3}], s33 offen', 'st'); a.vmem(f'buffer_store_dwordx4 {vr(PK+4,4)}, v5, s[{OUT}:{OUT+3}], s33 offen offset:2048', 'st')
    stamp(a, 1)
    ACC = 80; WF = (96, 112)
    def reads(ks, buf):
        for nt in range(4):
            for rho in range(2):
                a(f'ds_read_b64_tr_b16 {vr(WF[buf]+4*nt+2*rho,2)}, v{11+nt} offset:{ks*4096 + rho*1024}')
    a.vm_wait('w0'); a('s_barrier'); reads(0, 0)
    for ks in range(16):
        buf = ks & 1
        if ks % 4 == 3 and ks < 15:
            a('s_waitcnt lgkmcnt(0)'); a.vm_wait(f'w{ks//4+1}'); a('s_barrier'); reads(ks + 1, buf ^ 1)
        elif ks < 15:
            reads(ks + 1, buf ^ 1); a('s_waitcnt lgkmcnt(8)')
        else:
            a('s_waitcnt lgkmcnt(0)')
        for nt in range(4):
            a(f'{M16} {vr(ACC+4*nt,4)}, {vr(WF[buf]+4*nt,4)}, {vr(OFR+4*ks,4)}, ' + ('0' if ks == 0 else vr(ACC+4*nt,4)))
    stamp(a, 2)
    a('v_and_b32 v7, 15, v3'); a('v_lshlrev_b32 v7, 11, v7'); a('v_lshrrev_b32 v8, 4, v3'); a('v_lshl_add_u32 v7, v8, 3, v7')
    a(f's_lshl_b32 s33, s{sTB}, 6'); a(f's_lshl_b32 s34, s{sW}, 4'); a('s_add_u32 s33, s33, s34'); a('s_lshl_b32 s33, s33, 11'); a(f's_lshl_b32 s34, s{sNB}, 7'); a('s_add_u32 s33, s33, s34')
    for nt in range(4):
        a(f'v_cvt_pk_bf16_f32 v{96+2*nt}, v{ACC+4*nt}, v{ACC+4*nt+1}'); a(f'v_cvt_pk_bf16_f32 v{97+2*nt}, v{ACC+4*nt+2}, v{ACC+4*nt+3}')
        a(f'buffer_store_dwordx2 {vr(96+2*nt,2)}, v7, s[{OUT}:{OUT+3}], s33 offen offset:{nt*32}')
    if STAMPS: a('s_waitcnt vmcnt(0)'); stamp(a, 7); stamp_flush(a, 4, 2)
    a.label('L_k3_end'); a('s_endpgm')
    return a
```

```python
import os, struct
from asmlib import *
from maps import *
DG = os.environ.get('DG', '').split(',')
UPTO = os.environ.get('UPTO', 'all')
M32 = 'v_mfma_f32_32x32x16_bf16'; M16 = 'v_mfma_f32_16x16x32_bf16'
QSCALE = 0x3eb8aa3b
SPIN_MAX = 1 << 17
GSLOT = 28672
B1X = 114688; WPR = 123904; EXC = 133120
WOL = 0
BEX = 65536; CNT = 159936
RING = 86016; SLOTB = 12288
AEX = 114688
T3L = 135168; ZL = 151552
LDS_BYTES = 160256
C_ATT, C_Q, C_H3B, C_H3A, C_O, C_Z = CNT, CNT + 4, CNT + 8, CNT + 12, CNT + 16, CNT + 20
D_H1, D_H3, D_TOK = 0, 4, 16
T3OFF = 63488
VGPRS = 240
def f32bits(x): return struct.unpack('<I', struct.pack('<f', x))[0]
def srd(a, d, ptr, size):
    a(f's_mov_b32 s{d}, s{ptr}'); a(f's_mov_b32 s{d+1}, s{ptr+1}'); a(f's_mov_b32 s{d+2}, {size}'); a(f's_mov_b32 s{d+3}, 0x20000')
X, WQ, BX, WSEL, WS, TB, WO, OUT, DBG = 4, 8, 12, 16, 20, 24, 28, 32, 36
sW, sR, sTOK, sTB, sHP, sH3, sPOS, sEXB, sSPIN = 40, 41, 42, 43, 44, 45, 46, 47, 71
uid = [0]
def L(name):
    uid[0] += 1
    return f'L_{name}_{uid[0]}'
def emit(a, Ls):
    for x in Ls:
        if isinstance(x, list): emit(a, x)
        else: a(x)
def spin_guard(a, out):
    a(f's_add_u32 s{sSPIN}, s{sSPIN}, 1'); a(f's_cmp_gt_u32 s{sSPIN}, {SPIN_MAX}'); a(f's_cbranch_scc1 {out}')
def get_token(a, v):
    again, ok = L('tok'), L('tokok')
    a.label(again)
    a('s_nop 0'); a(f'v_readfirstlane_b32 s{sTOK}, v{v}'); a('s_nop 0'); a(f's_cmp_lg_u32 s{sTOK}, 0'); a(f's_cbranch_scc1 {ok}')
    spin_guard(a, ok)
    a('s_sleep 2'); a(f'v_mov_b32 v{v}, {D_TOK}'); a(f'buffer_load_dword v{v}, v{v}, s[{DBG}:{DBG+3}], 0 offen sc1'); a('s_waitcnt vmcnt(0)'); a(f's_branch {again}')
    a.label(ok)
def poll_flags(a, soff, n, vt, vt2):
    again, ok = L('pf'), L('pfok')
    a(f's_mov_b32 exec_lo, {hex((1 << n) - 1)}'); a('s_mov_b32 exec_hi, 0'); a(f'v_lshlrev_b32 v{vt}, 2, v3')
    a.label(again)
    a(f'buffer_load_dword v{vt2}, v{vt}, s[{WS}:{WS+3}], {soff} offen sc1'); a('s_waitcnt vmcnt(0)')
    a(f'v_cmp_ne_u32 vcc, s{sTOK}, v{vt2}'); a('s_nop 1'); a(f's_cbranch_vccz {ok}')
    spin_guard(a, ok)
    a('s_sleep 1'); a(f's_branch {again}')
    a.label(ok); a('s_mov_b64 exec, -1')
def poll_counters(a, doff, first, rest, vt, vt2):
    again, ok = L('pc'), L('pcok')
    a('s_mov_b64 exec, 0xf'); a(f'v_lshlrev_b32 v{vt}, 6, v3'); a(f'v_cmp_eq_u32 vcc, 0, v3'); a(f'v_mov_b32 v{vt+1}, {rest}'); a(f'v_mov_b32 v{vt2}, {first}')
    a(f'v_cndmask_b32 v{vt+1}, v{vt+1}, v{vt2}, vcc')
    a.label(again)
    a(f'buffer_load_dword v{vt2}, v{vt}, s[{DBG}:{DBG+3}], 0 offen offset:{doff} sc1'); a('s_waitcnt vmcnt(0)')
    a(f'v_cmp_lt_u32 vcc, v{vt2}, v{vt+1}'); a('s_nop 1'); a(f's_cbranch_vccz {ok}')
    spin_guard(a, ok)
    a('s_sleep 1'); a(f's_branch {again}')
    a.label(ok); a('s_mov_b64 exec, -1')
def lds_arrive(a, caddr, n, action, vt, group_reg=None):
    skip = L('arr')
    a('s_mov_b64 exec, 1'); a(f'v_mov_b32 v{vt}, {caddr}' if group_reg is None else f'v_mov_b32 v{vt}, s{group_reg}'); a(f'v_mov_b32 v{vt+1}, 1')
    a(f'ds_add_rtn_u32 v{vt+1}, v{vt}, v{vt+1}'); a('s_waitcnt lgkmcnt(0)')
    a(f'v_readfirstlane_b32 s70, v{vt+1}'); a('s_nop 0'); a(f's_cmp_lg_u32 s70, {n-1}'); a(f's_cbranch_scc1 {skip}')
    action()
    a.label(skip); a('s_mov_b64 exec, -1')
def lds_wait(a, caddr, n, vt):
    again, ok = L('lw'), L('lwok')
    a(f'v_mov_b32 v{vt}, {caddr}')
    a.label(again)
    a(f'ds_read_b32 v{vt+1}, v{vt}'); a('s_waitcnt lgkmcnt(0)'); a(f'v_readfirstlane_b32 s70, v{vt+1}'); a('s_nop 0')
    a(f's_cmp_ge_u32 s70, {n}'); a(f's_cbranch_scc1 {ok}')
    spin_guard(a, ok)
    a(f's_branch {again}')
    a.label(ok)
def finish(a):
    if STAMPS: a('s_waitcnt vmcnt(0)'); stamp(a, 7); stamp_flush(a, 8, 0)
    a('s_endpgm')

def prologue(a):
    a('s_cmp_ge_u32 s2, 256'); a('s_cbranch_scc1 L_end')
    a('s_load_dwordx16 s[48:63], s[0:1], 0'); a('s_load_dwordx2 s[64:65], s[0:1], 64')
    a('s_getpc_b64 s[66:67]'); a.label('L_pc'); a('s_add_u32 s66, s66, tab23-L_pc'); a('s_addc_u32 s67, s67, 0')
    a('v_lshrrev_b32 v2, 6, v0'); a('v_and_b32 v3, 63, v0'); a('v_lshlrev_b32 v1, 4, v3')
    a(f'v_readfirstlane_b32 s{sW}, v2'); stamp(a, 0); stamp_wave(a, sW)
    a(f's_mov_b32 s{sSPIN}, 0'); a(f's_mov_b32 s{sH3}, 0')
    a('s_and_b32 s68, s2, 7'); a('s_lshr_b32 s69, s2, 3')
    a(f's_lshr_b32 s{sTB}, s68, 1'); a(f's_lshl_b32 s{sTB}, s{sTB}, 2'); a('s_and_b32 s70, s69, 3'); a(f's_add_u32 s{sTB}, s{sTB}, s70')
    a(f's_and_b32 s{sHP}, s68, 1'); a(f's_lshl_b32 s{sHP}, s{sHP}, 3'); a('s_lshr_b32 s70, s69, 2'); a(f's_add_u32 s{sHP}, s{sHP}, s70')
    a(f's_and_b32 s{sR}, s{sW}, 3'); a('v_and_b32 v2, 3, v2')
    a('s_waitcnt lgkmcnt(0)')
    srd(a, X, 48, 2048 * 512 * 2); srd(a, WQ, 50, 512 * 1536 * 2); srd(a, BX, 54, 2048 * 512 * 2)
    a(f's_cmp_lt_u32 s{sR}, 2'); a(f's_cselect_b32 s{WSEL}, s56, s58'); a(f's_cselect_b32 s{WSEL+1}, s57, s59')
    a(f's_mov_b32 s{WSEL+2}, {2048*257*2}'); a(f's_mov_b32 s{WSEL+3}, 0x20000')
    srd(a, WS, 64, WS_USED); srd(a, TB, 66, T3OFF + 16384); srd(a, WO, 52, 512 * 512 * 2); srd(a, OUT, 60, 2048 * 1024 * 2); srd(a, DBG, 62, 256)
    a(f's_cmp_ge_u32 s{sW}, 4'); a('s_cbranch_scc1 L_B_p1')

def phase1_A(a):
    a.vm_reset()
    a('s_lshr_b32 s48, s2, 6'); a('s_lshl_b32 s48, s48, 2'); a(f's_and_b32 s49, s{sR}, 1'); a('s_lshl_b32 s49, s49, 1')
    a(f's_lshr_b32 s50, s{sR}, 1'); a('s_lshl_b32 s50, s50, 4'); a('s_add_u32 s48, s48, s49'); a('s_add_u32 s48, s48, s50')
    a('s_lshl_b32 s48, s48, 6'); a('s_and_b32 s49, s2, 63'); a('s_add_u32 s48, s48, s49'); a('s_lshl_b32 s48, s48, 10')
    a(f's_mul_i32 s49, s{sR}, 2304'); a(f's_add_u32 s49, s49, {B1X}')
    a('s_mov_b32 m0, s49'); a('s_add_u32 s49, s49, 1152')
    a.vmem(f'buffer_load_dwordx4 v1, s[{BX}:{BX+3}], s48 offen lds', 'b1x')
    a('s_mov_b32 m0, s49'); a('s_add_u32 s48, s48, 65536')
    a.vmem(f'buffer_load_dwordx4 v1, s[{BX}:{BX+3}], s48 offen lds', 'b1x')
    FC, FS, F16, TWC, TWS = 112, 120, 128, 136, 144
    K1, H, A_, T = 6, 7, 8, 10
    a(f'v_and_b32 v{K1}, 31, v3'); a(f'v_lshrrev_b32 v{H}, 5, v3'); a(f'v_cvt_f32_u32 v{K1}, v{K1}'); a(f'v_cvt_f32_u32 v{H}, v{H}')
    a(f'v_mul_f32 v{A_}, {hex(f32bits(1/32))}, v{K1}')
    a(f'v_mul_f32 v9, 8.0, v{H}'.replace('8.0', hex(f32bits(8.0))))
    a(f'v_mul_f32 v9, v9, v{A_}')
    for kap in range(2):
        for p in range(4):
            for e in range(2):
                j = 2 * p + e
                a(f'v_mov_b32 v{T+e}, {hex(f32bits(16.0*kap + j))}'); a(f'v_fma_f32 v{T+e}, v{A_}, v{T+e}, v9')
                a(f'v_cos_f32 v{T+2+e}, v{T+e}'); a(f'v_sin_f32 v{T+4+e}, v{T+e}')
            a(f'v_cvt_pk_bf16_f32 v{FC+4*kap+p}, v{T+2}, v{T+3}'); a(f'v_cvt_pk_bf16_f32 v{FS+4*kap+p}, -v{T+4}, -v{T+5}')
    a('v_and_b32 v16, 31, v3'); a('v_lshrrev_b32 v17, 1, v16'); a('v_cvt_f32_u32 v17, v17'); a(f'v_mul_f32 v17, {hex(f32bits(1/16))}, v17')
    a('v_and_b32 v18, 1, v16'); a('v_cvt_f32_u32 v18, v18'); a('v_mul_f32 v18, 0.25, v18'.replace('0.25', hex(f32bits(0.25))))
    a(f'v_mul_f32 v19, 4.0, v{H}'); a('v_fma_f32 v18, v17, v19, v18')
    a('v_cmp_ge_u32 vcc, 16, v16'); a('v_mov_b32 v20, 1.0'); a('v_cndmask_b32 v20, 0, v20, vcc')
    for part in range(2):
        for p in range(4):
            for e in range(2):
                j = 2 * p + e; cj = 8 * (j >> 2) + (j & 3)
                a(f'v_mov_b32 v{T+e}, {hex(f32bits(float(cj)))}'); a(f'v_fma_f32 v{T+e}, v17, v{T+e}, v18')
                if part: a(f'v_add_f32 v{T+e}, {hex(f32bits(-0.25))}, v{T+e}')
                a(f'v_cos_f32 v{T+2+e}, v{T+e}')
            a(f'v_mul_f32 v{T+2}, v{T+2}, v20'); a(f'v_mul_f32 v{T+3}, v{T+3}, v20')
            a(f'v_cvt_pk_bf16_f32 v{F16+4*part+p}, v{T+2}, v{T+3}')
    a(f'v_mul_f32 v17, {hex(f32bits(1/512))}, v{K1}'); a('v_mul_f32 v18, v17, v19')
    for r in range(8):
        cj = 8 * (r >> 2) + (r & 3)
        a(f'v_mov_b32 v{T}, {hex(f32bits(float(cj)))}'); a(f'v_fma_f32 v{T}, v17, v{T}, v18')
        a(f'v_cos_f32 v{TWC+r}, v{T}'); a(f'v_sin_f32 v{TWS+r}, v{T}')
    a('v_and_b32 v4, 31, v3'); a('v_lshrrev_b32 v5, 5, v3'); a('v_bfe_u32 v6, v4, 1, 3'); a('v_xor_b32 v5, v5, v6')
    a('v_lshlrev_b32 v5, 4, v5'); a('v_lshl_add_u32 v5, v4, 7, v5'); a('v_lshl_add_u32 v5, v2, 12, v5')
    for ks in range(4):
        a(f'v_xor_b32 v{96+ks}, {32*ks}, v5'); a(f'v_add_u32 v{100+ks}, {2*GSLOT}, v{96+ks}')
    a('v_and_b32 v4, 15, v3'); a('v_lshrrev_b32 v5, 5, v3'); a('v_lshlrev_b32 v5, 3, v5'); a('v_lshrrev_b32 v6, 2, v4'); a('v_add_u32 v5, v5, v6')
    a('v_mul_u32_u24 v5, 192, v5'); a('v_bfe_u32 v6, v3, 4, 1'); a('v_lshlrev_b32 v6, 5, v6'); a('v_and_b32 v7, 3, v4'); a('v_lshlrev_b32 v7, 3, v7')
    a('v_add3_u32 v104, v5, v6, v7'); a(f'v_add_u32 v105, {2*GSLOT}, v104')
    a('v_lshrrev_b32 v5, 5, v3'); a('v_lshlrev_b32 v5, 3, v5'); a('v_lshrrev_b32 v6, 2, v4'); a('v_add_u32 v5, v5, v6'); a('v_lshlrev_b32 v5, 5, v5')
    a('v_bfe_u32 v6, v3, 4, 1'); a('v_mul_u32_u24 v6, 1152, v6'); a('v_add3_u32 v5, v5, v6, v7')
    a('v_mul_u32_u24 v6, 2304, v2'); a('v_add_u32 v5, v5, v6'); a(f'v_add_u32 v8, {B1X}, v5')
    a.vm_wait('b1x')
    for kap in range(2):
        for rho in range(2):
            a(f'ds_read_b64_tr_b16 {vr(152+4*kap+2*rho,2)}, v8 offset:{(16*kap+4*rho)*32}')
    a('s_waitcnt lgkmcnt(0)')
    DRE, DIM = 160, 176
    a(f'{M32} {vr(DRE,16)}, {vr(152,4)}, {vr(FC,4)}, 0'); a(f'{M32} {vr(DIM,16)}, {vr(152,4)}, {vr(FS,4)}, 0')
    a(f'{M32} {vr(DRE,16)}, {vr(156,4)}, {vr(FC+4,4)}, {vr(DRE,16)}'); a(f'{M32} {vr(DIM,16)}, {vr(156,4)}, {vr(FS+4,4)}, {vr(DIM,16)}')
    a('v_and_b32 v4, 31, v3'); a('v_lshlrev_b32 v5, 5, v4'); a('v_lshrrev_b32 v4, 3, v4'); a('v_lshl_add_u32 v5, v4, 4, v5')
    a('v_lshrrev_b32 v6, 5, v3'); a(f'v_mul_u32_u24 v6, {2*1088}, v6'); a('v_lshlrev_b32 v7, 2, v2'); a('v_add3_u32 v5, v5, v6, v7'); a(f'v_add_u32 v9, {EXC}, v5')
    for p in range(8):
        r0 = 2 * p; c = TWC + (r0 & 7); s = TWS + (r0 & 7)
        a(f'v_pk_mul_f32 v[10:11], {vr(DRE+r0,2)}, {vr(c,2)}'); a(f'v_pk_mul_f32 v[12:13], {vr(DIM+r0,2)}, {vr(c,2)}')
        a(f'v_pk_fma_f32 v[10:11], {vr(DIM+r0,2)}, {vr(s,2)}, v[10:11]')
        a(f'v_pk_fma_f32 v[12:13], {vr(DRE+r0,2)}, {vr(s,2)}, v[12:13] neg_lo:[0,1,0] neg_hi:[0,1,0]')
        a(f'v_cvt_pk_bf16_f32 v{192+p}, v10, v11'); a(f'v_cvt_pk_bf16_f32 v{200+p}, v12, v13')
    D2 = (208, 224)
    for r in range(2): a(f'{M32} {vr(D2[r],16)}, {vr(F16,4)}, {vr(192+4*r,4)}, 0')
    for r in range(2): a(f'{M32} {vr(D2[r],16)}, {vr(F16+4,4)}, {vr(200+4*r,4)}, {vr(D2[r],16)}')
    for rr in range(8):
        k2 = 4 * (rr >> 2) + ((rr >> 1) & 1)
        a(f'v_cvt_pk_bf16_f32 v{10+(rr&1)}, v{D2[0]+rr}, v{D2[1]+rr}')
        a(f'ds_write_b32 v9, v{10+(rr&1)} offset:{k2*1088 + 16*(rr&1)}')
    a('v_cvt_pk_bf16_f32 v10, v216, v232'); a('v_mov_b32 v11, 0'); a('v_lshlrev_b32 v12, 2, v2'); a(f'v_add_u32 v12, {EXC+8*1088}, v12')
    a('s_mov_b64 exec, 1')
    a('ds_write_b32 v12, v10'); a('ds_write_b32 v12, v11 offset:16')
    a('s_mov_b64 exec, 0xff'); a(f'v_lshlrev_b32 v12, 2, v3'); a(f'v_add_u32 v12, {CNT}, v12'); a('ds_write_b32 v12, v11')
    a('s_mov_b64 exec, -1')
    a('s_waitcnt lgkmcnt(0)'); a('s_barrier')
    stamp(a, 1)
    XF = (64, 68); WF = (72, 84); ACC = (16, 32, 48)
    def reads(st, ks, buf):
        slot = st % 4; hi = slot >= 2; so = (slot & 1) * GSLOT
        a(f'ds_read_b128 {vr(XF[buf],4)}, v{(100 if hi else 96)+ks} offset:{so}')
        for jb in range(3):
            for rho in range(2):
                a(f'ds_read_b64_tr_b16 {vr(WF[buf]+4*jb+2*rho,2)}, v{105 if hi else 104} offset:{so + 16384 + (16*ks+4*rho)*192 + jb*64}')
    def mfmas(buf, first):
        x = vr(XF[buf], 4)
        for jb in range(3):
            wv = vr(WF[buf] + 4 * jb, 4); d = vr(ACC[jb], 16); c = '0' if first else d
            if jb < 2: a(f'{M32} {d}, {wv}, {x}, {c}')
            else:      a(f'{M32} {d}, {x}, {wv}, {c}')
    reads(0, 0, 0)
    step = 0
    for st in range(8):
        for ks in range(4):
            buf = step & 1
            if ks < 3:
                reads(st, ks + 1, buf ^ 1); a('s_waitcnt lgkmcnt(7)'); mfmas(buf, step == 0)
            else:
                a('s_waitcnt lgkmcnt(0)')
                if st < 7:
                    a('s_barrier')
                    reads(st + 1, 0, buf ^ 1)
                if st == 4:
                    a(f'v_mov_b32 v4, {D_TOK}'); a.vmem(f'buffer_load_dword v4, v4, s[{DBG}:{DBG+3}], 0 offen sc1', 'tok')
                mfmas(buf, False)
            step += 1
    stamp(a, 2)
    a(f's_lshl_b32 s48, s{sTB}, 2'); a(f's_add_u32 s48, s48, s{sR}'); a('s_lshl_b32 s48, s48, 10')
    a(f's_lshl_b32 s49, s{sHP}, 17'); a('s_add_u32 s48, s48, s49')
    a(f's_add_u32 s49, s48, {QF}'); a(f's_add_u32 s50, s48, {QF+65536}')
    a(f's_add_u32 s51, s48, {KF}'); a(f's_add_u32 s52, s48, {KF+65536}'); a(f's_add_u32 s53, s48, {VF}')
    a('v_bfe_u32 v5, v3, 4, 1'); a('v_lshlrev_b32 v5, 16, v5'); a('v_lshrrev_b32 v6, 5, v3'); a('v_lshlrev_b32 v6, 8, v6')
    a('v_and_b32 v7, 15, v3'); a('v_lshlrev_b32 v7, 4, v7'); a('v_add3_u32 v5, v5, v6, v7')
    for p in range(16): a(f'v_mul_f32 v{ACC[0]+p}, {QSCALE}, v{ACC[0]+p}')
    for jb in (1, 2, 0):
        for p in range(8): a(f'v_cvt_pk_bf16_f32 v{64+8*jb+p}, v{ACC[jb]+2*p}, v{ACC[jb]+2*p+1}')
        if jb == 1:
            a(f'buffer_store_dwordx4 v[72:75], v1, s[{WS}:{WS+3}], s51 offen sc1'); a(f'buffer_store_dwordx4 v[76:79], v1, s[{WS}:{WS+3}], s52 offen sc1')
        elif jb == 2:
            a(f'buffer_store_dwordx4 v[80:83], v5, s[{WS}:{WS+3}], s53 offen sc1'); a(f'buffer_store_dwordx4 v[84:87], v5, s[{WS}:{WS+3}], s53 offen offset:512 sc1')
        else:
            a(f'buffer_store_dwordx4 v[64:67], v1, s[{WS}:{WS+3}], s49 offen sc1'); a(f'buffer_store_dwordx4 v[68:71], v1, s[{WS}:{WS+3}], s50 offen sc1')
    a('s_waitcnt vmcnt(0)')
    get_token(a, 4)
    def pub_q():
        a(f's_lshl_b32 s48, s{sHP}, 6'); a(f's_lshl_b32 s49, s{sTB}, 2'); a('s_add_u32 s48, s48, s49'); a(f's_add_u32 s48, s48, {FQ}')
        a('v_mov_b32 v6, 0'); a(f'v_mov_b32 v7, s{sTOK}'); a(f'buffer_store_dword v7, v6, s[{WS}:{WS+3}], s48 offen sc1')
    lds_arrive(a, C_Q, 4, pub_q, 8)
    a('s_lshr_b32 s48, s2, 5')
    a('v_lshrrev_b32 v7, 3, v3'); a('v_and_b32 v8, 6, v7'); a('v_and_b32 v9, 7, v3'); a('v_xor_b32 v8, v8, v9'); a('v_lshlrev_b32 v8, 4, v8'); a('v_lshl_add_u32 v10, v7, 10, v8')
    a(f's_lshl_b32 s49, s{sR}, 14'); a(f's_lshl_b32 s50, s{sR}, 17'); a('s_lshl_b32 s48, s48, 7'); a('s_add_u32 s50, s50, s48')
    for q in range(16):
        a(f's_add_u32 m0, s49, {WOL + q*1024}'); a(f's_add_u32 s51, s50, {q*8192}')
        a(f'buffer_load_dwordx4 v10, s[{WO}:{WO+3}], s51 offen lds')
    a(f's_lshl_b32 s49, s{sR}, 12'); a(f's_add_u32 s50, s49, {T3OFF}')
    for q in range(4):
        a(f's_add_u32 m0, s49, {T3L + q*1024}'); a(f's_add_u32 s51, s50, {q*1024}')
        a(f'buffer_load_dwordx4 v1, s[{TB}:{TB+3}], s51 offen lds')

def phase1_B(a):
    a.label('L_B_p1')
    a.vm_reset()
    skip = L('ntok')
    a('s_cmp_lg_u32 s2, 0'); a(f's_cbranch_scc1 {skip}'); a(f's_cmp_lg_u32 s{sR}, 0'); a(f's_cbranch_scc1 {skip}')
    a('s_memrealtime s[48:49]'); a('s_waitcnt lgkmcnt(0)'); a('s_or_b32 s48, s48, 1')
    a(f'v_mov_b32 v4, {D_TOK}'); a('v_mov_b32 v5, s48'); a('s_mov_b64 exec, 1'); a(f'buffer_store_dword v5, v4, s[{DBG}:{DBG+3}], 0 offen sc1'); a('s_mov_b64 exec, -1')
    a.label(skip)
    a('v_lshrrev_b32 v4, 3, v3'); a('v_lshlrev_b32 v4, 10, v4'); a('v_and_b32 v5, 7, v3'); a('v_lshrrev_b32 v6, 4, v3')
    a('v_xor_b32 v5, v5, v6'); a('v_lshlrev_b32 v5, 4, v5'); a('v_add_u32 v106, v4, v5'); a('v_xor_b32 v107, 64, v106')
    for u in range(3):
        a(f'v_add_u32 v4, {64*u}, v3'); a('v_mul_u32_u24 v5, 171, v4'); a('v_lshrrev_b32 v5, 11, v5')
        a('v_mul_u32_u24 v6, 12, v5'); a('v_sub_u32 v6, v4, v6')
        a('v_lshl_add_u32 v5, v2, 4, v5'); a('v_mul_u32_u24 v5, 3072, v5')
        a('v_lshrrev_b32 v7, 2, v6'); a('v_lshlrev_b32 v7, 10, v7'); a('v_and_b32 v6, 3, v6'); a('v_lshlrev_b32 v6, 4, v6')
        a(f'v_add3_u32 v{108+u}, v5, v6, v7')
    sXROW, sWOFF, sT2, sT3 = 48, 49, 50, 51
    a(f's_lshl_b32 s{sXROW}, s{sTB}, 7'); a(f's_lshl_b32 s52, s{sR}, 5'); a(f's_add_u32 s{sXROW}, s{sXROW}, s52'); a(f's_lshl_b32 s{sXROW}, s{sXROW}, 10')
    a(f's_lshl_b32 s{sWOFF}, s{sHP}, 6'); a(f's_lshl_b32 s{sT2}, s{sR}, 12'); a(f's_mul_i32 s{sT3}, s{sR}, 3072')
    def dma_stage(st):
        slot = (st % 4) * GSLOT
        for q in range(4):
            a(f's_add_u32 m0, s{sT2}, {slot + q*1024}'); a(f's_add_u32 s53, s{sXROW}, {q*8192 + st*128}')
            a.vmem(f'buffer_load_dwordx4 v{106 + (q&1)}, s[{X}:{X+3}], s53 offen lds', f'g{st}')
        a(f's_add_u32 s53, s{sWOFF}, {st*64*3072}')
        for u in range(3):
            a(f's_add_u32 m0, s{sT3}, {slot + 16384 + u*1024}'); a('s_nop 0')
            a.vmem(f'buffer_load_dwordx4 v{108+u}, s[{WQ}:{WQ+3}], s53 offen lds', f'g{st}')
    dma_stage(0); dma_stage(1)
    a('s_and_b32 s52, s2, 15'); a('s_lshr_b32 s53, s2, 4'); a('s_lshl_b32 s53, s53, 7'); a('s_add_u32 s52, s52, s53')
    a(f's_and_b32 s53, s{sR}, 1'); a('s_lshl_b32 s53, s53, 4'); a('s_add_u32 s52, s52, s53'); a('s_mul_i32 s52, s52, 514')
    a(f's_mul_i32 s53, s{sR}, {4*576}'); a(f's_add_u32 s53, s53, {WPR}')
    a('v_min_u32 v13, 498, v1')
    a('s_mov_b32 exec_hi, 1')
    for u in range(4):
        a('s_mov_b32 m0, s53'); a('s_add_u32 s53, s53, 576')
        a.vmem(f'buffer_load_dwordx4 v13, s[{WSEL}:{WSEL+3}], s52 offen lds', 'wp')
        if u < 3: a(f's_add_u32 s52, s52, {32*514}')
    a('s_mov_b64 exec, -1')
    dma_stage(2)
    a('v_lshl_add_u32 v14, v2, 6, v3')
    a('v_lshrrev_b32 v4, 1, v14'); a('v_lshlrev_b32 v5, 5, v4'); a('v_lshrrev_b32 v4, 3, v4'); a('v_lshl_add_u32 v5, v4, 4, v5')
    a('v_and_b32 v4, 1, v14'); a('v_lshl_add_u32 v5, v4, 4, v5'); a(f'v_add_u32 v15, {EXC}, v5')
    a('v_and_b32 v5, 15, v3'); a('v_lshrrev_b32 v6, 2, v5'); a('v_mul_u32_u24 v6, 576, v6'); a('v_and_b32 v5, 3, v5'); a('v_lshlrev_b32 v5, 3, v5')
    a('v_lshrrev_b32 v7, 4, v3'); a('v_lshlrev_b32 v7, 5, v7'); a('v_add3_u32 v5, v5, v6, v7'); a('v_lshl_add_u32 v5, v2, 7, v5'); a(f'v_add_u32 v16, {WPR}, v5')
    a(f's_mul_i32 s54, s2, {BLK}'); a(f's_add_u32 s55, s54, {U1}'); a(f's_add_u32 s56, s54, {WT}')
    a('v_lshlrev_b32 v17, 4, v14'); a('v_lshlrev_b32 v18, 5, v14')
    a.vm_wait('g0'); a('s_barrier')
    stamp(a, 1)
    a('ds_read_b128 v[20:23], v15'); a('ds_read_b128 v[24:27], v15 offset:4352')
    dma_stage(3)
    a('s_waitcnt lgkmcnt(0)')
    a.vmem(f'buffer_store_dwordx4 v[20:23], v17, s[{WS}:{WS+3}], s55 offen sc1', 'st'); a('s_add_u32 s57, s55, 4096')
    a.vmem(f'buffer_store_dwordx4 v[24:27], v17, s[{WS}:{WS+3}], s57 offen sc1', 'st')
    a.vm_wait('wp'); a('s_barrier')
    for rho in range(4): a(f'ds_read_b64_tr_b16 {vr(28+2*rho,2)}, v16 offset:{rho*2304}')
    dma_stage(4)
    a('s_waitcnt lgkmcnt(0)')
    a.vmem(f'buffer_store_dwordx4 v[28:31], v18, s[{WS}:{WS+3}], s56 offen sc1', 'st'); a.vmem(f'buffer_store_dwordx4 v[32:35], v18, s[{WS}:{WS+3}], s56 offen offset:16 sc1', 'st')
    skip = L('nyq')
    a(f's_cmp_lg_u32 s{sR}, 0'); a(f's_cbranch_scc1 {skip}')
    a('s_add_u32 s55, s55, 8192'); a('s_add_u32 s56, s56, 8192')
    a('s_mov_b64 exec, 0xffff')
    a('v_mul_u32_u24 v4, 576, v3'); a(f'v_add_u32 v4, {WPR+526}, v4'); a('ds_read_u16 v10, v4')
    a('v_lshlrev_b32 v5, 2, v3'); a(f'v_add_u32 v4, {EXC+8*1088}, v5'); a('ds_read_b32 v11, v4')
    a('v_lshlrev_b32 v4, 1, v3'); a('s_waitcnt lgkmcnt(0)')
    a(f'buffer_store_short v10, v4, s[{WS}:{WS+3}], s56 offen sc1')
    a('s_mov_b64 exec, 0xff')
    a(f'buffer_store_dword v11, v5, s[{WS}:{WS+3}], s55 offen sc1')
    a('s_mov_b64 exec, -1')
    a.label(skip)
    a.vm_wait('g2'); a('s_barrier')
    dma_stage(5)
    a.vm_wait('st'); a('s_barrier')
    skip = L('h1')
    a(f's_cmp_lg_u32 s{sR}, 0'); a(f's_cbranch_scc1 {skip}')
    a('s_and_b32 s52, s2, 3'); a('s_lshl_b32 s52, s52, 6'); a('v_mov_b32 v4, 0'); a('v_mov_b32 v5, 1'); a('s_mov_b64 exec, 1')
    a(f'buffer_atomic_add v5, v4, s[{DBG}:{DBG+3}], s52 offen offset:{D_H1} sc1'); a('s_mov_b64 exec, -1')
    a.label(skip)
    dma_stage(6)
    a.vm_wait('g4'); a('s_barrier')
    dma_stage(7)
    a(f'v_mov_b32 v4, {D_TOK}'); a.vmem(f'buffer_load_dword v4, v4, s[{DBG}:{DBG+3}], 0 offen sc1', 'tok')
    a.vm_wait('g5'); a('s_barrier')
    a.vm_wait('g6'); a('s_barrier')
    a.vm_wait('tok'); a('s_barrier')
    stamp(a, 2)
    get_token(a, 4)

def att_ids(a):
    sK, sV, sC, sLK, sLV = 48, 49, 50, 51, 52
    a('s_and_b32 s60, s2, 7'); a('s_lshl_b32 s60, s60, 2'); a('s_bfe_u32 s61, s2, 0x20003'); a('s_add_u32 s60, s60, s61')
    a('s_lshr_b32 s61, s2, 5'); a('s_lshl_b32 s61, s61, 3'); a(f's_add_u32 s61, s61, s{sW}')
    a('s_lshl_b32 s53, s60, 16')
    a(f's_lshr_b32 s62, s{sW}, 1'); a(f's_and_b32 s63, s{sW}, 1')
    a(f's_lshl_b32 s{sLK}, s62, 10'); a('s_lshl_b32 s64, s63, 9'); a(f's_add_u32 s{sLK}, s{sLK}, s64')
    a(f's_lshl_b32 s{sLV}, s62, 11'); a('s_lshl_b32 s64, s63, 10'); a(f's_add_u32 s{sLV}, s{sLV}, s64'); a(f's_add_u32 s{sLV}, s{sLV}, {RING + 4096}')
    a(f's_add_u32 s{sK}, s53, s{sLK}'); a(f's_add_u32 s{sV}, s{sK}, {VF}'); a(f's_add_u32 s{sK}, s{sK}, {KF}'); a(f's_add_u32 s{sLK}, s{sLK}, {RING}')
    a('s_lshl_b32 s64, s61, 10'); a('s_add_u32 s54, s53, s64'); a(f's_add_u32 s54, s54, {QF}')
    a('s_lshl_b32 s64, s61, 15'); a('s_lshl_b32 s65, s60, 10'); a('s_add_u32 s55, s64, s65'); a(f's_add_u32 s55, s55, {OF}')
    a('s_lshr_b32 s64, s60, 1'); a('s_lshl_b32 s64, s64, 6'); a(f's_add_u32 s56, s64, {FQ}')
    a('s_lshr_b32 s64, s2, 5'); a('s_lshl_b32 s64, s64, 7'); a('s_lshl_b32 s65, s60, 2'); a('s_add_u32 s57, s64, s65'); a(f's_add_u32 s57, s57, {FO}')
AQ, AKB, AVB, AS, AO, AP, AE, AvV, AT0, AvC, AvOne, AvF = 4, (8, 12), (16, 24), (32, 48), 64, 80, 88, 94, 95, 96, 97, 98
sK, sV, sC, sLK, sLV, sBIG, sVM, sKM, sIT, sEP = 48, 49, 50, 51, 52, 58, 60, 62, 64, 65
def att_consts(a):
    a(f's_mov_b32 s{sBIG}, 0x7ff00000'); a(f's_mov_b32 s{sVM}, 0xffff'); a(f's_mov_b32 s{sVM+1}, 0xffff'); a(f's_mov_b32 s{sKM}, -1'); a(f's_mov_b32 s{sKM+1}, 0')
    a(f's_mov_b32 s{sC}, 0')
def att_dma(slot, guard):
    Ls = []; ko, vo = f's{sK}', f's{sV}'
    if guard:
        Ls += [f's_cmp_lt_u32 s{sC}, 16', f's_cselect_b32 s66, s{sK}, s{sBIG}', f's_cselect_b32 s67, s{sV}, s{sBIG}']; ko, vo = 's66', 's67'
    Ls += [f's_add_u32 s68, s{sLV}, {slot*SLOTB}',
           [f's_add_u32 m0, s{sLK}, {slot*SLOTB}', f's_mov_b64 exec, s[{sKM}:{sKM+1}]', f'buffer_load_dwordx4 v1, s[{WS}:{WS+3}], {ko} offen sc1 lds',
            's_mov_b32 m0, s68', f's_mov_b64 exec, s[{sVM}:{sVM+1}]', f'buffer_load_dwordx4 v{AvV}, s[{WS}:{WS+3}], {vo} offen sc1 lds', 's_mov_b64 exec, -1'],
           f's_add_u32 s{sK}, s{sK}, 4096', f's_add_u32 s{sV}, s{sV}, 4096', f's_add_u32 s{sC}, s{sC}, 1']
    return Ls
def att_prefetch(a, vq):
    att_ids(a); att_consts(a)
    poll_flags(a, 's56', 16, vq, vq + 1)
    a(f'v_lshrrev_b32 v{AvV}, 5, v3'); a(f'v_lshlrev_b32 v{AvV}, 8, v{AvV}'); a(f'v_and_b32 v{vq}, 15, v3'); a(f'v_lshl_add_u32 v{AvV}, v{vq}, 4, v{AvV}')
    emit(a, att_dma(0, False))
    a(f'buffer_load_dwordx4 {vr(vq,4)}, v1, s[{WS}:{WS+3}], s54 offen sc1')
    emit(a, att_dma(1, False))

def gen_b2(a):
    G, I, VWR, VRD = 4, 5, 6, 7
    F32 = ((8, 12, 16), (20, 24, 28)); F64 = ((32, 36, 40), (44, 48, 52))
    ARE, AIM = 56, 60; WR, WI = 100, 104
    TW1C, TW1S, TW2C, TW2S = 64, 72, 110, 118
    ACC = 128; FR = 144; T = 176; QREG = 184
    a.label('L_b2')
    a.vm_reset()
    def tl(dst, soffreg, imm, tag): a.vmem(f'buffer_load_dwordx4 {vr(dst,4)}, v1, s[{TB}:{TB+3}], {soffreg} offen offset:{imm}', tag)
    a('s_mov_b32 s48, 4096')
    for q in range(6): tl(8 + 4 * q, '0' if q < 4 else 's48', (q % 4) * 1024, 'f32')
    a(f's_lshl_b32 s49, s{sR}, 12'); a(f's_add_u32 s50, s49, {T2_TW1}')
    for q in range(4): tl(TW1C + 4 * q, 's50', q * 1024, 'tw1')
    a(f's_mul_i32 s50, s{sR}, 6144'); a(f's_add_u32 s50, s50, {T2_F64}'); a('s_add_u32 s51, s50, 4096')
    for q in range(6): tl(32 + 4 * q, 's50' if q < 4 else 's51', (q % 4) * 1024, 'f64')
    a(f's_add_u32 s50, s49, {T2_TW2}')
    for q in range(4): tl(TW2C + 4 * q, 's50', q * 1024, 'tw2')
    a(f'v_lshrrev_b32 v{G}, 4, v3'); a(f'v_and_b32 v{I}, 15, v3'); a(f'v_lshl_add_u32 v{T+8}, v{G}, 6, v{I}'); a(f's_movk_i32 s48, {BLK}')
    a(f'v_mul_lo_u32 v{T+8}, v{T+8}, s48'); a(f'v_mul_lo_u32 v{T+9}, v3, s48')
    a(f'v_mul_u32_u24 v{VRD}, 144, v{I}'); a(f'v_lshl_add_u32 v{VWR}, v{G}, 3, v{VRD}'); a(f'v_lshl_add_u32 v{VWR}, v2, 5, v{VWR}'); a(f'v_lshl_add_u32 v{VRD}, v{G}, 4, v{VRD}')
    a(f'v_add_u32 v{VWR}, s{sEXB}, v{VWR}'); a(f'v_add_u32 v{VRD}, s{sEXB}, v{VRD}')
    a(f's_lshl_b32 s48, s{sPOS}, 5'); a(f's_mul_i32 s49, s{sR}, {16*BLK}'); a('s_add_u32 s49, s49, s48')
    a(f's_add_u32 s50, s49, {U1}'); a(f's_add_u32 s69, s49, {ZT}')
    a(f's_mul_i32 s51, s{sR}, {64*BLK}'); a('s_add_u32 s51, s51, s48'); a(f's_add_u32 s51, s51, {WT}')
    poll_counters(a, D_H1, 64, 64, T, T + 2)
    a.vm_reset()
    a.vmem(f'buffer_load_dwordx4 {vr(ARE,4)}, v{T+8}, s[{WS}:{WS+3}], s50 offen sc1', 'u'); a.vmem(f'buffer_load_dwordx4 {vr(AIM,4)}, v{T+8}, s[{WS}:{WS+3}], s50 offen offset:16 sc1', 'u')
    a.vmem(f'buffer_load_dwordx4 {vr(WR,4)}, v{T+9}, s[{WS}:{WS+3}], s51 offen sc1', 'w'); a.vmem(f'buffer_load_dwordx4 {vr(WI,4)}, v{T+9}, s[{WS}:{WS+3}], s51 offen offset:16 sc1', 'w')
    acc = lambda nt, c: ACC + 8 * nt + 4 * c
    def cmul(nt, cre, sim, sign):
        for hh in range(2):
            re = vr(acc(nt, 0) + 2 * hh, 2); im = vr(acc(nt, 1) + 2 * hh, 2); c = vr(cre + 4 * nt + 2 * hh, 2); s = vr(sim + 4 * nt + 2 * hh, 2)
            n1 = ' neg_lo:[0,1,0] neg_hi:[0,1,0]'
            a(f'v_pk_mul_f32 {vr(T,2)}, {re}, {c}'); a(f'v_pk_mul_f32 {vr(T+2,2)}, {im}, {c}')
            a(f'v_pk_fma_f32 {vr(T,2)}, {im}, {s}, {vr(T,2)}' + (n1 if sign > 0 else ''))
            a(f'v_pk_fma_f32 {vr(T+2,2)}, {re}, {s}, {vr(T+2,2)}' + (n1 if sign < 0 else ''))
            yield hh
    a.vm_wait('u')
    for nt in range(2):
        C, S_, nS = F32[nt]
        a(f'{M16} {vr(acc(nt,0),4)}, {vr(ARE,4)}, {vr(C,4)}, 0'); a(f'{M16} {vr(acc(nt,1),4)}, {vr(AIM,4)}, {vr(C,4)}, 0')
    for nt in range(2):
        C, S_, nS = F32[nt]
        a(f'{M16} {vr(acc(nt,0),4)}, {vr(AIM,4)}, {vr(S_,4)}, {vr(acc(nt,0),4)}'); a(f'{M16} {vr(acc(nt,1),4)}, {vr(ARE,4)}, {vr(nS,4)}, {vr(acc(nt,1),4)}')
    def twiddle_to_lds(cre, sim, sign, ldsbase):
        for nt in range(2):
            for hh in cmul(nt, cre, sim, sign):
                a(f'v_cvt_pk_bf16_f32 v{T+4+4*nt+hh}, v{T}, v{T+1}'); a(f'v_cvt_pk_bf16_f32 v{T+6+4*nt+hh}, v{T+2}, v{T+3}')
            a(f'ds_write_b64 v{VWR}, {vr(T+4+4*nt,2)} offset:{ldsbase + nt*2304}'); a(f'ds_write_b64 v{VWR}, {vr(T+6+4*nt,2)} offset:{ldsbase + 4608 + nt*2304}')
    a(f'v_mov_b32 v{QREG+8}, v{T+8}')
    twiddle_to_lds(TW1C, TW1S, -1, 0)
    a('s_waitcnt lgkmcnt(0)'); a('s_barrier')
    fr = lambda c, nt, kap: FR + 16 * c + 8 * nt + 4 * kap
    def read_frags(ldsbase):
        for nt in range(2):
            for kap in range(2):
                for c in range(2):
                    a(f'ds_read_b128 {vr(fr(c,nt,kap),4)}, v{VRD} offset:{ldsbase + c*4608 + nt*2304 + kap*64}')
    read_frags(0)
    a.vm_wait('w')
    for q in range(4):
        a(f'v_lshlrev_b32 v{TW1C+2*q}, 16, v{WR+q}'); a(f'v_and_b32 v{TW1C+2*q+1}, 0xffff0000, v{WR+q}')
        a(f'v_lshlrev_b32 v{TW1S+2*q}, 16, v{WI+q}'); a(f'v_and_b32 v{TW1S+2*q+1}, 0xffff0000, v{WI+q}')
    skip = L('half')
    a(f's_and_b32 s48, s{sPOS}, 255'); a('s_cmp_lg_u32 s48, 0'); a(f's_cbranch_scc1 {skip}')
    for q in range(16): a(f'v_mul_f32 v{TW1C+q}, 0.5, v{TW1C+q}')
    a.label(skip)
    a('s_waitcnt lgkmcnt(0)')
    for kap in range(2):
        C, S_, nS = F64[kap]
        for nt in range(2):
            a(f'{M16} {vr(acc(nt,0),4)}, {vr(C,4)}, {vr(fr(0,nt,kap),4)}, ' + ('0' if kap == 0 else vr(acc(nt,0),4)))
            a(f'{M16} {vr(acc(nt,1),4)}, {vr(C,4)}, {vr(fr(1,nt,kap),4)}, ' + ('0' if kap == 0 else vr(acc(nt,1),4)))
        for nt in range(2):
            a(f'{M16} {vr(acc(nt,0),4)}, {vr(S_,4)}, {vr(fr(1,nt,kap),4)}, {vr(acc(nt,0),4)}')
            a(f'{M16} {vr(acc(nt,1),4)}, {vr(nS,4)}, {vr(fr(0,nt,kap),4)}, {vr(acc(nt,1),4)}')
    twiddle_to_lds(TW1C, TW1S, +1, 9216)
    a('s_waitcnt lgkmcnt(0)'); a('s_barrier')
    read_frags(9216)
    att_prefetch(a, QREG)
    a('s_waitcnt lgkmcnt(0)')
    for kap in range(2):
        C, S_, nS = F64[kap]
        for nt in range(2):
            a(f'{M16} {vr(acc(nt,0),4)}, {vr(fr(0,nt,kap),4)}, {vr(C,4)}, ' + ('0' if kap == 0 else vr(acc(nt,0),4)))
            a(f'{M16} {vr(acc(nt,1),4)}, {vr(fr(1,nt,kap),4)}, {vr(C,4)}, ' + ('0' if kap == 0 else vr(acc(nt,1),4)))
        for nt in range(2):
            a(f'{M16} {vr(acc(nt,0),4)}, {vr(fr(1,nt,kap),4)}, {vr(nS,4)}, {vr(acc(nt,0),4)}')
            a(f'{M16} {vr(acc(nt,1),4)}, {vr(fr(0,nt,kap),4)}, {vr(S_,4)}, {vr(acc(nt,1),4)}')
    RRE, RIM = 56, 60
    for nt in range(2):
        for hh in cmul(nt, TW2C, TW2S, +1):
            a(f'v_cvt_pk_bf16_f32 v{RRE+2*nt+hh}, v{T}, v{T+1}'); a(f'v_cvt_pk_bf16_f32 v{RIM+2*nt+hh}, v{T+2}, v{T+3}')
    for mt in range(2):
        C, S_, nS = F32[mt]
        a(f'{M16} {vr(acc(mt,0),4)}, {vr(C,4)}, {vr(RRE,4)}, 0'); a(f'{M16} {vr(acc(mt,1),4)}, {vr(C,4)}, {vr(RIM,4)}, 0')
    for mt in range(2):
        C, S_, nS = F32[mt]
        a(f'{M16} {vr(acc(mt,0),4)}, {vr(nS,4)}, {vr(RIM,4)}, {vr(acc(mt,0),4)}'); a(f'{M16} {vr(acc(mt,1),4)}, {vr(S_,4)}, {vr(RRE,4)}, {vr(acc(mt,1),4)}')
    for c in range(2):
        for mt in range(2):
            for hh in range(2):
                a(f'v_cvt_pk_bf16_f32 v{FR+4*c+2*mt+hh}, v{acc(mt,c)+2*hh}, v{acc(mt,c)+2*hh+1}')
    a(f'buffer_store_dwordx4 {vr(FR,4)}, v{QREG+8}, s[{WS}:{WS+3}], s69 offen sc1'); a(f'buffer_store_dwordx4 {vr(FR+4,4)}, v{QREG+8}, s[{WS}:{WS+3}], s69 offen offset:16 sc1')
    a(f's_mov_b32 s{sH3}, 1')
    return QREG

def gen_attention(a, QREG):
    Q, KB, VB, S, O, P, E, vV, T0, vC, vOne, vF = AQ, AKB, AVB, AS, AO, AP, AE, AvV, AT0, AvC, AvOne, AvF
    a.label('L_att_entry')
    a(f'v_and_b32 v{T0}, 27, v3'); a(f'v_cmp_eq_u32 vcc, 16, v{T0}'); a(f'v_mov_b32 v{E}, 0x3f803f80'); a(f'v_cndmask_b32 v{P}, 0, v{E}, vcc')
    for i in range(1, 4): a(f'v_mov_b32 v{P+i}, v{P}')
    a(f'v_add_u32 v{T0}, s{sLV}, v1')
    a(f's_not_b64 exec, s[{sVM}:{sVM+1}]')
    for slot in range(2): a(f'ds_write_b128 v{T0}, {vr(P,4)} offset:{slot*SLOTB}')
    a('s_mov_b64 exec, -1')
    a(f'v_mov_b32 v{vC}, {C_ATT}'); a(f'v_mov_b32 v{vOne}, 1'); a(f's_mov_b32 s{sEP}, 0')
    l1, l2 = L('w2'), L('w4')
    a(f's_cmp_eq_u32 s{sH3}, 0'); a(f's_cbranch_scc1 {l1}')
    a('s_waitcnt vmcnt(4) lgkmcnt(0)'); a(f's_branch {l2}')
    a.label(l1); a('s_waitcnt vmcnt(2) lgkmcnt(0)')
    a.label(l2)
    a('s_barrier')
    stamp(a, 3)
    emit(a, att_dma(2, False))
    a(f's_not_b64 exec, s[{sVM}:{sVM+1}]')
    for slot in range(2, 4): a(f'ds_write_b128 v{T0}, {vr(P,4)} offset:{slot*SLOTB}')
    a('s_mov_b64 exec, -1')
    vR = 99
    a(f'v_add_u32 v{vR}, {RING}, v1')
    rdK = lambda t, buf: f'ds_read_b128 {vr(KB[buf],4)}, v{vR} offset:{((t>>2)&3)*SLOTB + (t&3)*1024}'
    rdV = lambda t, buf, j2: f'ds_read_b128 {vr(VB[buf]+4*j2,4)}, v{vR} offset:{((t>>2)&3)*SLOTB + 4096 + (t&3)*2048 + j2*1024}'
    a(rdK(0, 0)); a(rdV(0, 0, 0)); a(rdV(0, 0, 1)); a(rdK(1, 1))
    for i in range(4): a(f'v_mov_b32 v{Q+i}, v{QREG+i}')
    for i in range(8): a(f'v_mov_b32 v{VB[1]+i}, 0')
    for i in range(16): a(f'v_mov_b32 v{O+i}, 0')
    for i in range(8): a(f'v_mov_b32 v{P+i}, 0')
    for i in range(6): a(f'v_mov_b32 v{E+i}, 0')
    a('s_waitcnt lgkmcnt(3)')
    a(f'{M32} {vr(S[0],16)}, {vr(KB[0],4)}, {vr(Q,4)}, 0')
    a('s_nop 7'); a('s_nop 3')
    a(f's_mov_b32 s{sIT}, {64 // 16}'); stamp(a, 4)
    def body(t):
        cur = t & 1; nxt = cur ^ 1; s = S[cur]
        q = [rdK(t + 2, cur), rdV(t + 1, nxt, 0), rdV(t + 1, nxt, 1)]
        pre = [f's_setprio {3 - ((t + 2) & 3)}', 's_waitcnt lgkmcnt(0)']
        if t % 4 == 0:
            q = q + ['s_waitcnt vmcnt(2)', ['s_mov_b64 exec, 1', f'ds_add_u32 v{vC}, v{vOne}', 's_mov_b64 exec, -1'], f's_add_u32 s{sEP}, s{sEP}, 8']
        if t % 4 == 1:
            q = q + [f'ds_read_b32 v{vF}, v{vC}']
        if t % 4 == 2:
            lab = f'L_att_spin{t}'; ok = f'L_att_go{t}'
            pre = pre + [f'v_readfirstlane_b32 s70, v{vF}', f's_cmp_ge_u32 s70, s{sEP}', f's_cbranch_scc1 {ok}', f'{lab}:',
                         f's_add_u32 s{sSPIN}, s{sSPIN}, 1', f's_cmp_gt_u32 s{sSPIN}, {SPIN_MAX * 8}', f's_cbranch_scc1 {ok}',
                         f'ds_read_b32 v{vF}, v{vC}', 's_waitcnt lgkmcnt(0)',
                         f'v_readfirstlane_b32 s70, v{vF}', f's_cmp_ge_u32 s70, s{sEP}', f's_cbranch_scc0 {lab}', f'{ok}:']
            q = q + att_dma(((t + 2) // 4 + 2) % 4, True)
        def e(i):
            a(f'v_exp_f32 v{E + i % 6}, v{s+i}')
            if i >= 3 and q:
                x = q.pop(0); emit(a, [x])
        c = lambda i: a(f'v_cvt_pk_bf16_f32 v{P+i}, v{E + (2*i) % 6}, v{E + (2*i+1) % 6}')
        emit(a, pre)
        a(f'{M32} {vr(S[nxt],16)}, {vr(KB[nxt],4)}, {vr(Q,4)}, 0')
        c(7)
        e(0); e(1); e(2)
        a(f'{M32} {vr(O,16)}, {vr(VB[nxt]+4,4)}, {vr(P+4,4)}, {vr(O,16)}')
        e(3); c(0); e(4); c(1); e(5); e(6); c(2); e(7); e(8); c(3); e(9); e(10)
        a(f'{M32} {vr(O,16)}, {vr(VB[cur],4)}, {vr(P,4)}, {vr(O,16)}')
        c(4); e(11); e(12); c(5); e(13); e(14); c(6); e(15)
        emit(a, q)
        if t == 1:
            skip = L('h3')
            a(f's_cmp_eq_u32 s{sH3}, 0'); a(f's_cbranch_scc1 {skip}')
            a(f's_mov_b32 s{sH3}, 0'); a(f's_cmp_ge_u32 s{sW}, 4'); a(f's_cselect_b32 s69, 0, 4'); a(f's_add_u32 s69, s69, {C_H3B}')
            def act():
                a('s_and_b32 s69, s2, 3'); a('s_lshl_b32 s69, s69, 6'); a(f'v_mov_b32 v{T0}, 0'); a('v_mov_b32 v100, 1')
                a(f'buffer_atomic_add v100, v{T0}, s[{DBG}:{DBG+3}], s69 offen offset:{D_H3} sc1')
            lds_arrive(a, None, 4, act, 101, group_reg=69)
            a.label(skip)
    a.label('L_att_loop')
    start = len(a.lines)
    for t in range(16): body(t)
    tail = [f's_sub_u32 s{sIT}, s{sIT}, 1', f's_cmp_lg_u32 s{sIT}, 0', 's_cbranch_scc1 L_att_loop']
    bodyl = a.lines[start:]
    emit(a, tail)
    extra = check_loop(bodyl + tail)
    assert extra == 0, extra
    stamp(a, 5)
    a('s_setprio 0')
    a(f'v_cvt_pk_bf16_f32 v{P+7}, v{E + 14 % 6}, v{E + 15 % 6}'); a('s_nop 1')
    a(f'{M32} {vr(O,16)}, {vr(VB[1]+4,4)}, {vr(P+4,4)}, {vr(O,16)}')
    a('s_waitcnt vmcnt(0) lgkmcnt(0)')
    a('s_nop 7'); a('s_nop 3')
    o = O
    a(f'v_mul_f32 v{T0}, 0, v{o}')
    for i in range(1, 8): a(f'v_fma_f32 v{T0}, v{o+i}, 0, v{T0}')
    a(f'v_cmp_eq_f32 s[66:67], 0, v{T0}')
    a(f'v_mov_b32 v{E}, 0x21800000'); a(f'v_cmp_le_f32 s[68:69], v{E}, v{o+8}')
    a('s_nop 1'); a('s_and_b64 s[66:67], s[66:67], s[68:69]')
    a(f'v_mov_b32 v{E}, 0x5d800000'); a(f'v_cmp_ge_f32 s[68:69], v{E}, v{o+8}')
    a('s_nop 1'); a('s_and_b64 s[66:67], s[66:67], s[68:69]')
    a('s_cmp_eq_u64 s[66:67], -1'); a('s_cbranch_scc0 L_att_fallback')
    a.label('L_att_fin')
    a(f'v_rcp_f32 v{T0}, v{o+8}')
    for i in range(8): a(f'v_mul_f32 v{o+i}, v{o+i}, v{T0}')
    for i in range(4): a(f'v_cvt_pk_bf16_f32 v{P+i}, v{o+2*i}, v{o+2*i+1}')
    a(f'buffer_store_dwordx4 {vr(P,4)}, v1, s[{WS}:{WS+3}], s55 offen sc1')
    a('s_waitcnt vmcnt(0)')
    def pub_o():
        a('v_mov_b32 v6, 0'); a(f'v_mov_b32 v7, s{sTOK}'); a(f'buffer_store_dword v7, v6, s[{WS}:{WS+3}], s57 offen sc1')
    lds_arrive(a, C_O, 8, pub_o, 8)

def gen_fallback(a):
    Q, KB, VB, S, O, P, E, vV = AQ, AKB, AVB, AS, AO, AP, AE, AvV
    q = Q; m = E; o = O
    a.label('L_att_fallback')
    a('s_nop 7'); a('s_nop 7')
    a(f's_add_u32 s66, s53, {KF}'); a(f's_add_u32 s67, s53, {VF}')
    a(f'v_mov_b32 v{m}, 0xff800000')
    a(f's_mov_b32 s{sIT}, 64'); a('s_mov_b32 s68, s66')
    a.label('L_fb_max')
    a(f'buffer_load_dwordx4 {vr(KB[0],4)}, v1, s[{WS}:{WS+3}], s68 offen sc1'); a('s_waitcnt vmcnt(0)')
    a(f'{M32} {vr(S[0],16)}, {vr(KB[0],4)}, {vr(q,4)}, 0')
    a('s_nop 7'); a('s_nop 7')
    for i in range(8): a(f'v_max3_f32 v{m}, v{m}, v{S[0]+2*i}, v{S[0]+2*i+1}')
    a('s_add_u32 s68, s68, 1024'); a(f's_sub_u32 s{sIT}, s{sIT}, 1'); a(f's_cmp_lg_u32 s{sIT}, 0'); a('s_cbranch_scc1 L_fb_max')
    a(f'v_mov_b32 v{m+1}, v{m}'); a('s_nop 1'); a(f'v_permlane32_swap_b32 v{m}, v{m+1}'); a('s_nop 1'); a(f'v_max_f32 v{m}, v{m}, v{m+1}')
    for i in range(16): a(f'v_sub_f32 v{S[1]+i}, 0, v{m}')
    for i in range(16): a(f'v_mov_b32 v{o+i}, 0')
    a(f'v_and_b32 v{m}, 27, v3'); a(f'v_cmp_eq_u32 vcc, 16, v{m}'); a(f'v_mov_b32 v{m+1}, 0x3f803f80'); a('s_nop 1'); a(f'v_cndmask_b32 v{m}, 0, v{m+1}, vcc')
    for i in range(8): a(f'v_mov_b32 v{VB[0]+i}, v{m}')
    a(f's_mov_b32 s{sIT}, 64')
    a.label('L_fb_pv')
    a(f'buffer_load_dwordx4 {vr(KB[0],4)}, v1, s[{WS}:{WS+3}], s66 offen sc1')
    a(f's_mov_b64 exec, s[{sVM}:{sVM+1}]')
    a(f'buffer_load_dwordx4 {vr(VB[0],4)}, v{vV}, s[{WS}:{WS+3}], s67 offen sc1'); a(f'buffer_load_dwordx4 {vr(VB[0]+4,4)}, v{vV}, s[{WS}:{WS+3}], s67 offen offset:512 sc1')
    a('s_mov_b64 exec, -1')
    a('s_waitcnt vmcnt(0)'); a('s_nop 7')
    a(f'{M32} {vr(S[0],16)}, {vr(KB[0],4)}, {vr(q,4)}, {vr(S[1],16)}')
    a('s_nop 7'); a('s_nop 7')
    for i in range(16): a(f'v_exp_f32 v{S[0]+i}, v{S[0]+i}')
    a('s_nop 1')
    for i in range(8): a(f'v_cvt_pk_bf16_f32 v{P+i}, v{S[0]+2*i}, v{S[0]+2*i+1}')
    a('s_nop 1')
    a(f'{M32} {vr(o,16)}, {vr(VB[0],4)}, {vr(P,4)}, {vr(o,16)}'); a(f'{M32} {vr(o,16)}, {vr(VB[0]+4,4)}, {vr(P+4,4)}, {vr(o,16)}')
    a('s_nop 7'); a('s_nop 7')
    a('s_add_u32 s66, s66, 1024'); a('s_add_u32 s67, s67, 1024'); a(f's_sub_u32 s{sIT}, s{sIT}, 1'); a(f's_cmp_lg_u32 s{sIT}, 0'); a('s_cbranch_scc1 L_fb_pv')
    a('s_nop 7'); a('s_nop 7')
    a('s_branch L_att_fin')

def phase3_A(a):
    a.vm_reset()
    a('s_and_b32 s48, s2, 7'); a('s_lshr_b32 s49, s2, 3'); a('s_lshl_b32 s50, s48, 2'); a('s_and_b32 s51, s49, 3'); a('s_add_u32 s50, s50, s51')
    a('s_lshr_b32 s51, s49, 2')
    a('s_lshl_b32 s52, s48, 7'); a(f's_add_u32 s52, s52, {FO}')
    a('v_lshrrev_b32 v7, 5, v3'); a('v_lshlrev_b32 v7, 10, v7'); a('v_bfe_u32 v8, v3, 4, 1'); a('v_lshlrev_b32 v8, 9, v8'); a('v_and_b32 v9, 15, v3'); a('v_lshlrev_b32 v9, 4, v9')
    a('v_add3_u32 v6, v7, v8, v9'); a('v_and_b32 v7, 1, v2'); a('v_lshl_add_u32 v6, v7, 8, v6')
    a('s_lshl_b32 s53, s50, 1'); a(f's_lshr_b32 s54, s{sR}, 1'); a('s_add_u32 s53, s53, s54'); a('s_lshl_b32 s53, s53, 15'); a(f's_add_u32 s53, s53, {OF}')
    a('v_lshrrev_b32 v7, 5, v3'); a('v_lshlrev_b32 v7, 4, v7'); a('v_bfe_u32 v8, v3, 4, 1'); a('v_lshl_add_u32 v7, v8, 2, v7'); a('v_bfe_u32 v9, v3, 2, 2'); a('v_add_u32 v7, v7, v9')
    a('v_lshlrev_b32 v7, 7, v7'); a('v_and_b32 v9, 2, v9'); a('v_lshl_add_u32 v9, v8, 2, v9')
    a('v_bfe_u32 v8, v3, 1, 1'); a('v_lshl_add_u32 v7, v8, 4, v7'); a('v_and_b32 v8, 1, v3'); a('v_lshl_add_u32 v7, v8, 3, v7')
    for nt in range(4):
        a(f'v_xor_b32 v8, {2*nt}, v9'); a(f'v_lshl_add_u32 v{11+nt}, v8, 4, v7')
    OFR = 16; ACC = 80; WF = (96, 112)
    def reads(ks, buf):
        for nt in range(4):
            for rho in range(2):
                a(f'ds_read_b64_tr_b16 {vr(WF[buf]+4*nt+2*rho,2)}, v{11+nt} offset:{WOL + ks*4096 + rho*1024}')
    reads(0, 0)
    poll_flags(a, 's52', 32, 8, 9)
    stamp(a, 6)
    a.vm_reset()
    for ks in range(16):
        if ks % 2 == 0: a(f's_add_u32 s54, s53, {(ks>>1)*4096}')
        a.vmem(f'buffer_load_dwordx4 {vr(OFR+4*ks,4)}, v6, s[{WS}:{WS+3}], s54 offen offset:{(ks&1)*2048} sc1', f'o{ks}')
    a('v_and_b32 v7, 15, v3'); a('v_lshlrev_b32 v7, 11, v7'); a('v_lshrrev_b32 v8, 4, v3'); a('v_lshl_add_u32 v7, v8, 3, v7')
    a('s_lshl_b32 s53, s50, 6'); a(f's_lshl_b32 s54, s{sR}, 4'); a('s_add_u32 s53, s53, s54'); a('s_lshl_b32 s53, s53, 11'); a('s_lshl_b32 s54, s51, 7'); a('s_add_u32 s53, s53, s54')
    for ks in range(16):
        buf = ks & 1
        if ks < 15: reads(ks + 1, buf ^ 1); a('s_waitcnt lgkmcnt(8)')
        else: a('s_waitcnt lgkmcnt(0)')
        a.vm_wait(f'o{ks}')
        for nt in range(4):
            a(f'{M16} {vr(ACC+4*nt,4)}, {vr(WF[buf]+4*nt,4)}, {vr(OFR+4*ks,4)}, ' + ('0' if ks == 0 else vr(ACC+4*nt,4)))
    for nt in range(4):
        a(f'v_cvt_pk_bf16_f32 v{96+2*nt}, v{ACC+4*nt}, v{ACC+4*nt+1}'); a(f'v_cvt_pk_bf16_f32 v{97+2*nt}, v{ACC+4*nt+2}, v{ACC+4*nt+3}')
        a(f'buffer_store_dwordx2 {vr(96+2*nt,2)}, v7, s[{OUT}:{OUT+3}], s53 offen offset:{nt*32}')
    finish(a)

def phase3_B(a):
    a.vm_reset()
    poll_counters(a, D_H3, 65, 64, 4, 6)
    stamp(a, 6)
    a(f's_mul_i32 s48, s2, {BLK}'); a(f's_add_u32 s48, s48, {ZT}'); a(f's_lshl_b32 s49, s{sR}, 11'); a('s_add_u32 s50, s48, s49')
    a(f's_add_u32 m0, s49, {ZL}'); a('s_add_u32 s51, s50, 1024')
    a(f'buffer_load_dwordx4 v1, s[{WS}:{WS+3}], s50 offen sc1 lds')
    a(f's_add_u32 m0, s49, {ZL + 1024}'); a('s_nop 0')
    a(f'buffer_load_dwordx4 v1, s[{WS}:{WS+3}], s51 offen sc1 lds')
    skip = L('zn')
    a(f's_cmp_lg_u32 s{sR}, 0'); a(f's_cbranch_scc1 {skip}')
    a(f's_mov_b32 m0, {ZL + 8192}'); a('s_add_u32 s51, s48, 8192'); a('s_mov_b64 exec, 3')
    a(f'buffer_load_dwordx4 v1, s[{WS}:{WS+3}], s51 offen sc1 lds'); a('s_mov_b64 exec, -1')
    a.label(skip)
    A0, A1, B1T, B2T, TWC, TWS, DRE, DIM, PK, RAW = 128, 132, 136, 152, 168, 184, 200, 216, 104, 120
    a(f'v_add_u32 v4, {T3L}, v1')
    for q in range(16): a(f'ds_read_b128 {vr(B1T+4*q,4)}, v4 offset:{q*1024}')
    a('v_and_b32 v5, 31, v3'); a('v_lshlrev_b32 v5, 5, v5'); a('v_lshrrev_b32 v6, 5, v3'); a('v_lshl_add_u32 v5, v6, 12, v5'); a('v_lshl_add_u32 v5, v2, 2, v5'); a(f'v_add_u32 v5, {ZL}, v5')
    a('v_lshlrev_b32 v6, 2, v2'); a(f'v_add_u32 v6, {ZL + 8192}, v6')
    a('v_and_b32 v8, 1, v3'); a('v_lshlrev_b32 v8, 31, v8'); a('v_or_b32 v8, 0x36000000, v8'); a('v_cmp_gt_u32 vcc, 32, v3'); a('v_cndmask_b32 v7, 0, v8, vcc')
    a('s_waitcnt vmcnt(0) lgkmcnt(0)')
    lds_arrive(a, C_Z, 4, lambda: None, 8); lds_wait(a, C_Z, 4, 8)
    for jj in range(8): a(f'ds_read_b32 v{RAW+jj}, v5 offset:{(jj>>1)*1024 + (jj&1)*16}')
    a('ds_read_b32 v9, v6')
    a('s_mov_b32 s48, 0x05040100'); a('s_mov_b32 s49, 0x07060302')
    a('s_waitcnt lgkmcnt(0)')
    for q in range(4):
        a(f'v_perm_b32 v{A0+q}, v{RAW+2*q+1}, v{RAW+2*q}, s48'); a(f'v_perm_b32 v{A1+q}, v{RAW+2*q+1}, v{RAW+2*q}, s49')
    a('v_lshlrev_b32 v10, 16, v9'); a('v_and_b32 v9, 0xffff0000, v9'); a('v_bfe_u32 v8, v3, 4, 1'); a('v_cmp_eq_u32 vcc, 0, v8'); a('v_cndmask_b32 v9, v9, v10, vcc')
    a(f'{M32} {vr(DRE,16)}, {vr(A0,4)}, {vr(B1T,4)}, 0'); a(f'{M32} {vr(DIM,16)}, {vr(A0,4)}, {vr(B1T+8,4)}, 0')
    a(f'{M32} {vr(DRE,16)}, {vr(A1,4)}, {vr(B1T+4,4)}, {vr(DRE,16)}'); a(f'{M32} {vr(DIM,16)}, {vr(A1,4)}, {vr(B1T+12,4)}, {vr(DIM,16)}')
    a(f'v_fma_f32 v{DRE}, v9, v7, v{DRE}')
    n1 = ' neg_lo:[0,1,0] neg_hi:[0,1,0]'
    for p in range(8):
        re = vr(DRE + 2 * p, 2); im = vr(DIM + 2 * p, 2); c = vr(TWC + 2 * p, 2); s = vr(TWS + 2 * p, 2)
        a(f'v_pk_mul_f32 v[128:129], {re}, {c}'); a(f'v_pk_mul_f32 v[130:131], {im}, {c}')
        a(f'v_pk_fma_f32 v[128:129], {im}, {s}, v[128:129]' + n1); a(f'v_pk_fma_f32 v[130:131], {re}, {s}, v[130:131]')
        a(f'v_cvt_pk_bf16_f32 v{PK+p}, v128, v129'); a(f'v_cvt_pk_bf16_f32 v{PK+8+p}, v130, v131')
    a(f'{M32} {vr(DRE,16)}, {vr(PK,4)}, {vr(B2T,4)}, 0'); a(f'{M32} {vr(DRE,16)}, {vr(PK+4,4)}, {vr(B2T+4,4)}, {vr(DRE,16)}')
    a(f'{M32} {vr(DRE,16)}, {vr(PK+8,4)}, {vr(B2T+8,4)}, {vr(DRE,16)}'); a(f'{M32} {vr(DRE,16)}, {vr(PK+12,4)}, {vr(B2T+12,4)}, {vr(DRE,16)}')
    a('v_and_b32 v7, 31, v3'); a('v_lshlrev_b32 v7, 5, v7'); a('v_lshrrev_b32 v8, 5, v3'); a('v_lshl_add_u32 v5, v8, 4, v7')
    a('s_lshr_b32 s48, s2, 6'); a('s_lshl_b32 s48, s48, 2'); a(f's_and_b32 s49, s{sR}, 1'); a('s_lshl_b32 s49, s49, 1')
    a(f's_lshr_b32 s50, s{sR}, 1'); a('s_lshl_b32 s50, s50, 4'); a('s_add_u32 s48, s48, s49'); a('s_add_u32 s48, s48, s50')
    a('s_lshl_b32 s48, s48, 6'); a('s_and_b32 s49, s2, 63'); a('s_add_u32 s48, s48, s49'); a('s_lshl_b32 s48, s48, 11'); a('s_add_u32 s48, s48, 1024')
    a(f's_add_u32 s49, s48, {64*2048}')
    for r in range(2):
        for p in range(4): a(f'v_cvt_pk_bf16_f32 v{PK+4*r+p}, v{DRE+8*r+2*p}, v{DRE+8*r+2*p+1}')
        a(f'v_permlane32_swap_b32 v{PK+4*r}, v{PK+4*r+2}'); a(f'v_permlane32_swap_b32 v{PK+4*r+1}, v{PK+4*r+3}')
    a(f'buffer_store_dwordx4 {vr(PK,4)}, v5, s[{OUT}:{OUT+3}], s48 offen'); a(f'buffer_store_dwordx4 {vr(PK+4,4)}, v5, s[{OUT}:{OUT+3}], s49 offen')
    finish(a)

def gen_fused():
    a = Asm()
    prologue(a)
    phase1_A(a)
    if UPTO == 'p1': finish(a)
    QREG = 184
    a('s_cmp_lg_u32 s2, 0'); a('s_cbranch_scc1 L_A_stub')
    a(f's_mov_b32 s{sPOS}, 256'); a(f's_mov_b32 s{sEXB}, {AEX}'); a('s_branch L_b2')
    a.label('L_A_stub')
    a('s_barrier'); a('s_barrier')
    att_prefetch(a, QREG)
    a('s_branch L_att_entry')
    phase1_B(a)
    if UPTO == 'p1': finish(a)
    a('s_and_b32 s48, s2, 7'); a('s_lshl_b32 s48, s48, 5'); a('s_lshr_b32 s49, s2, 3'); a(f's_add_u32 s{sPOS}, s48, s49'); a(f's_mov_b32 s{sEXB}, {BEX}')
    q = gen_b2(a); assert q == QREG
    gen_attention(a, QREG)
    if UPTO == 'att': finish(a)
    a(f's_cmp_ge_u32 s{sW}, 4'); a('s_cbranch_scc1 L_B_p3')
    phase3_A(a)
    a.label('L_B_p3')
    phase3_B(a)
    gen_fallback(a)
    a.label('L_end'); a('s_endpgm')
    return a
```

```python
import numpy as np
QF = 0x000000; KF = 0x200000; VF = 0x400000; OF = 0x600000
U1 = 0x800000; WT = 0xB00000; ZT = 0xE00000; ZN = 0x1080000; FQ = 0x10C0000; FO = 0x1100000; FOS = 4352; CW = 0x10C2000
BLK = 8320
WS_USED = 0x1180000
def bf16_bits(x):
    x = np.ascontiguousarray(x, np.float32); u = x.view(np.uint32).astype(np.uint64)
    return ((u + 0x7fff + ((u >> 16) & 1)) >> 16).astype(np.uint16)
def bf16_to_f32(b):
    return (b.astype(np.uint32) << 16).view(np.float32)
def slot8(h, j):
    return 8 * (j >> 2) + 4 * h + (j & 3)
def s1_of(g, j):
    return 4 * g + j if j < 4 else 16 + 4 * g + (j - 4)
import os
FUSED = os.environ.get('FUSED', '1') == '1'
def pos_of_k(k):
    if FUSED or k == 256: return k
    k1 = k & 31; k2 = k >> 5
    return 128 * (k2 >> 2) + 4 * k1 + (k2 & 3)
def k_of_pos(p):
    if FUSED or p == 256: return p
    k2 = 4 * (p >> 7) + (p & 3); k1 = (p >> 2) & 31
    return k1 + 32 * k2
def b1_rows(b):
    g = b >> 6; s2 = b & 63
    return [64 * s1_of(g, j) + s2 for j in range(8)]
def wt_rows(b):
    w = b >> 6; g = (b >> 4) & 3; i = b & 15
    return [(16 * (jj >> 2) + i) + 32 * (16 * w + 4 * g + (jj & 3)) for jj in range(8)]
def frag_bf16(fn):
    a = np.array([[fn(l, j) for j in range(8)] for l in range(64)], np.float64)
    return bf16_bits(a.astype(np.float32)).reshape(64, 8).view(np.uint32).reshape(-1)
def tab_f32(fn, n):
    a = np.array([[fn(l, i) for i in range(n)] for l in range(64)], np.float64).astype(np.float32)
    return a.reshape(64, n // 4, 4).transpose(1, 0, 2).reshape(-1).view(np.uint32)
c2 = lambda num, den: np.cos(2 * np.pi * (num % den) / den)
s2_ = lambda num, den: np.sin(2 * np.pi * (num % den) / den)
def table1():
    T = []
    for fn in (c2, lambda a, b: -s2_(a, b)):
        for kap in range(2):
            T.append(frag_bf16(lambda l, j: fn((16 * kap + 8 * (l >> 5) + j) * (l & 31), 32)))
    def f16(l, j, part):
        m = l & 31; d2 = slot8(l >> 5, j)
        if m < 16:
            k2 = m >> 1; c = m & 1
            if c == 0: return c2(d2 * k2, 16) if part == 0 else s2_(d2 * k2, 16)
            else:      return -s2_(d2 * k2, 16) if part == 0 else c2(d2 * k2, 16)
        if m == 16: return c2(d2 * 8, 16) if part == 0 else s2_(d2 * 8, 16)
        return 0.0
    T.append(frag_bf16(lambda l, j: f16(l, j, 0)))
    T.append(frag_bf16(lambda l, j: f16(l, j, 1)))
    T.append(tab_f32(lambda l, i: (c2 if i < 8 else s2_)(slot8(l >> 5, i & 7) * (l & 31), 512), 16))
    return np.concatenate(T)
def table2():
    T = []
    for nt in range(2):
        for fn in (c2, s2_, lambda a, b: -s2_(a, b)):
            T.append(frag_bf16(lambda l, j: fn(s1_of(l >> 4, j) * (16 * nt + (l & 15)), 32)))
    for w in range(4):
        for kap in range(2):
            for fn in (c2, s2_, lambda a, b: -s2_(a, b)):
                T.append(frag_bf16(lambda l, j: fn((16 * w + (l & 15)) * (32 * kap + 8 * (l >> 4) + j), 64)))
    for w in range(4):
        T.append(tab_f32(lambda l, x: (c2 if x < 8 else s2_)((16 * w + 4 * (l >> 4) + (x & 3)) * (16 * ((x & 7) >> 2) + (l & 15)), 2048), 16))
    for w in range(4):
        T.append(tab_f32(lambda l, x: (c2 if x < 8 else s2_)((16 * ((x & 7) >> 2) + 4 * (l >> 4) + (x & 3)) * (16 * w + (l & 15)), 2048), 16))
    return np.concatenate(T)
T2_F32 = 0; T2_F64 = 6 * 1024; T2_TW1 = 30 * 1024; T2_TW2 = 46 * 1024
def table3():
    T = []
    sc = 2.0 ** -19
    def b1(l, jj, c, r):
        n = l & 31; h = l >> 5
        if (n >> 4) != r: return 0.0
        d2 = n & 15; k2 = 4 * h + (jj >> 1); cp = jj & 1
        if c == 0: v = c2(k2 * d2, 16) if cp == 0 else -s2_(k2 * d2, 16)
        else:      v = s2_(k2 * d2, 16) if cp == 0 else c2(k2 * d2, 16)
        return v * sc
    for c in range(2):
        for r in range(2):
            T.append(frag_bf16(lambda l, j: b1(l, j, c, r)))
    for c in range(2):
        for kap in range(2):
            T.append(frag_bf16(lambda l, j: (c2 if c == 0 else (lambda a, b: -s2_(a, b)))((16 * kap + slot8(l >> 5, j)) * (l & 31), 32)))
    T.append(tab_f32(lambda l, x: (c2 if x < 16 else s2_)((8 * ((x & 15) >> 2) + 4 * (l >> 5) + (x & 3)) * (l & 15), 512), 32))
    return np.concatenate(T)
```

```python
import sys, numpy as np
from asmlib import *
from maps import *
import k1
NAME = 'concat_heads__mha_block__spectral_gfnet__prompt'
HEADER = open('cdna_kernels/' + NAME + '.s.ref').read().split('; Override launch')[0]
def kd(name, vgpr, sgpr):
    acc = (vgpr + 3) // 4 * 4
    return f""".amdhsa_kernel {name}
  .amdhsa_next_free_vgpr {vgpr}
  .amdhsa_next_free_sgpr {sgpr}
  .amdhsa_accum_offset {acc}
  .amdhsa_group_segment_fixed_size 0
  .amdhsa_kernarg_size 72
  .amdhsa_user_sgpr_count 2
  .amdhsa_user_sgpr_kernarg_segment_ptr 1
  .amdhsa_system_sgpr_workgroup_id_x 1
.end_amdhsa_kernel
"""
def table_text(label, words):
    out = ['.p2align 8', f'.type {label},@object', f'{label}:']
    for i in range(0, len(words), 8):
        out.append('.long ' + ','.join('0x%x' % int(w) for w in words[i:i + 8]))
    out.append(f'.size {label}, {4*len(words)}')
    return '\n'.join(out)
def func(name, a):
    lines, n = hazard_pass(a.lines)
    body = '\n'.join(('  ' + l) if not l.endswith(':') else l for l in lines)
    return f'.globl {name}\n.p2align 8\n.type {name},@function\n{name}:\n{body}\n', n
def build(which=('k1', 'k2', 'k3')):
    ks = []; text = []; kds = []; tabs = []
    if 'k1' in which:
        a = k1.gen_k1('k1_kernel', 'tab1'); t, n = func('k1_kernel', a); text.append(t); print('k1 nops inserted', n, file=sys.stderr)
        ks.append(f'; @launch kernel=k1_kernel grid=(256,1,1) block=(256,1,1) lds={k1.K1_LDS}'); kds.append(kd('k1_kernel', 240, 100)); tabs.append(table_text('tab1', table1()))
    if 'k2' in which:
        import k2
        a = k2.gen_k2('k2_kernel', 'tab2'); t, n = func('k2_kernel', a); text.append(t); print('k2 nops inserted', n, file=sys.stderr)
        ks.append(f'; @launch kernel=k2_kernel grid=({k2.K2_GRID},1,1) block=({k2.K2_BLOCK},1,1) lds={k2.K2_LDS}'); kds.append(kd('k2_kernel', k2.K2_VGPR, 100 if STAMPS else 48)); tabs.append(table_text('tab2', table2()))
    if 'k3' in which:
        import k3
        a = k3.gen_k3('k3_kernel', 'tab3'); t, n = func('k3_kernel', a); text.append(t); print('k3 nops inserted', n, file=sys.stderr)
        ks.append(f'; @launch kernel=k3_kernel grid=(256,1,1) block=(256,1,1) lds={k3.K3_LDS}'); kds.append(kd('k3_kernel', k3.K3_VGPR, 100)); tabs.append(table_text('tab3', table3()))
    s = HEADER + '\n'.join(ks) + '\n.amdgcn_target "amdgcn-amd-amdhsa--gfx950"\n.text\n' + '\n'.join(text) + '\n' + '\n'.join(tabs) + '\n.section .rodata,"a"\n.p2align 6\n' + '\n.p2align 6\n'.join(kds)
    return s
def build_fused():
    import fused
    name = NAME + '_kernel'
    a = fused.gen_fused(); t, n = func(name, a); print('fused nops inserted', n, 'instr lines', len(a.lines), file=sys.stderr)
    tab = ''
    return (HEADER + f'; @launch grid=(256,1,1) block=({fused.BLOCK},1,1) lds={fused.LDS_BYTES}\n.amdgcn_target "amdgcn-amd-amdhsa--gfx950"\n.text\n' + t + '\n' + tab +
            '\n.section .rodata,"a"\n.p2align 6\n' + kd(name, fused.VGPRS, 100 if STAMPS else 80))
if __name__ == '__main__':
    if len(sys.argv) > 2 and sys.argv[2] == 'fused':
        open(sys.argv[1], 'w').write(build_fused()); sys.exit(0)
    which = sys.argv[2].split(',') if len(sys.argv) > 2 else ('k1', 'k2', 'k3')
    open(sys.argv[1], 'w').write(build(which))
```

```python
import os, struct
from asmlib import *
from maps import *
DG = os.environ.get('DG', '').split(',')
UPTO = os.environ.get('UPTO', 'all')
M32 = 'v_mfma_f32_32x32x16_bf16'; M16 = 'v_mfma_f32_16x16x32_bf16'
QSCALE = 0x3eb8aa3b
SPIN_MAX = 1 << 19
XL = 0
WL = 65536; WSLOT = 24576
B1X = 0
WPR = 139264; EXC = 148480
WOL = 0
BEX0 = 114688; BEX1 = 123904
CNT = 159936
RING = 65536; SLOTB = 12288
ZL = 148480
LDS_BYTES = 160256
_names = 'ATT Q H3 O Z TOK FAST H1 FQ FO H3W CX U X WO A0 DONE'.split()
for _i, _n in enumerate(_names): globals()['C_' + _n] = CNT + 4 * _i
D_TOK = 16
W_H1, W_H3, W_XG, W_TOP, W_GO1, W_GO3 = CW, CW + 1024, CW + 2048, CW + 3072, CW + 4096, CW + 5120
VGPRS = 168; BLOCK = 768
def f32bits(x): return struct.unpack('<I', struct.pack('<f', x))[0]
def srd(a, d, ptr, size):
    a(f's_mov_b32 s{d}, s{ptr}'); a(f's_mov_b32 s{d+1}, s{ptr+1}'); a(f's_mov_b32 s{d+2}, {size}'); a(f's_mov_b32 s{d+3}, 0x20000')
X, WQ, BX, WSEL, WS, TB, WO, OUT, DBG = 4, 8, 12, 16, 20, 24, 28, 32, 36
sW, sR, sTOK, sTB, sHP, sH3, sPOS, sXT, sSPIN = 40, 41, 42, 43, 44, 45, 46, 47, 71
uid = [0]
def L(name):
    uid[0] += 1
    return f'L_{name}_{uid[0]}'
def emit(a, Ls):
    for x in Ls:
        if isinstance(x, list): emit(a, x)
        else: a(x)
def spin_guard(a, out):
    a(f's_add_u32 s{sSPIN}, s{sSPIN}, 1'); a(f's_cmp_gt_u32 s{sSPIN}, {SPIN_MAX}'); a(f's_cbranch_scc1 {out}')
def get_token(a, v):
    again, ok = L('tok'), L('tokok')
    a.label(again)
    a('s_nop 0'); a(f'v_readfirstlane_b32 s{sTOK}, v{v}'); a('s_nop 0'); a(f's_cmp_lg_u32 s{sTOK}, 0'); a(f's_cbranch_scc1 {ok}')
    spin_guard(a, ok)
    a('s_sleep 2'); a(f'v_mov_b32 v{v}, {D_TOK}'); a(f'buffer_load_dword v{v}, v{v}, s[{DBG}:{DBG+3}], 0 offen sc1'); a('s_waitcnt vmcnt(0)'); a(f's_branch {again}')
    a.label(ok)
def poll_flags(a, soff, n, vt, vt2):
    again, ok = L('pf'), L('pfok')
    a(f's_mov_b32 exec_lo, {hex((1 << n) - 1)}'); a('s_mov_b32 exec_hi, 0'); a(f'v_lshlrev_b32 v{vt}, 2, v3')
    a.label(again)
    a(f'buffer_load_dword v{vt2}, v{vt}, s[{WS}:{WS+3}], {soff} offen sc1'); a('s_waitcnt vmcnt(0)')
    a(f'v_cmp_ne_u32 vcc, s{sTOK}, v{vt2}'); a('s_nop 1'); a(f's_cbranch_vccz {ok}')
    spin_guard(a, ok)
    a('s_sleep 1'); a(f's_branch {again}')
    a.label(ok); a('s_mov_b64 exec, -1')
def tree_arrive(a, woff, top, go, first, va):
    done = L('tree')
    a('s_and_b32 s70, s2, 7'); a(f's_cmp_eq_u32 s70, 0'); a(f's_cselect_b32 s69, {first}, 32'); a('s_lshl_b32 s70, s70, 7'); a(f's_add_u32 s70, s70, {woff}')
    a(f'v_mov_b32 v{va}, 0'); a(f'v_mov_b32 v{va+1}, 1'); a('s_mov_b64 exec, 1')
    a(f'buffer_atomic_add v{va+1}, v{va}, s[{WS}:{WS+3}], s70 offen sc0 sc1'); a('s_waitcnt vmcnt(0)')
    a(f'v_readfirstlane_b32 s70, v{va+1}'); a('s_nop 0'); a('s_add_u32 s70, s70, 1'); a('s_cmp_lg_u32 s70, s69'); a(f's_cbranch_scc1 {done}')
    a(f's_mov_b32 s70, {top}'); a(f'v_mov_b32 v{va+1}, 1')
    a(f'buffer_atomic_add v{va+1}, v{va}, s[{WS}:{WS+3}], s70 offen sc0 sc1'); a('s_waitcnt vmcnt(0)')
    a(f'v_readfirstlane_b32 s70, v{va+1}'); a('s_nop 0'); a('s_cmp_lg_u32 s70, 7'); a(f's_cbranch_scc1 {done}')
    a('s_mov_b64 exec, 0xff'); a(f'v_lshlrev_b32 v{va}, 7, v3'); a(f'v_mov_b32 v{va+1}, s{sTOK}'); a(f's_mov_b32 s70, {go}')
    a(f'buffer_store_dword v{va+1}, v{va}, s[{WS}:{WS+3}], s70 offen sc1')
    a.label(done); a('s_mov_b64 exec, -1')
def poll_go(a, go, vt, sleep=4):
    again, ok = L('pg'), L('pgok')
    a('s_and_b32 s69, s2, 7'); a('s_lshl_b32 s69, s69, 7'); a(f's_add_u32 s69, s69, {go}'); a(f'v_mov_b32 v{vt}, 0')
    a.label(again)
    a(f'buffer_load_dword v{vt+1}, v{vt}, s[{WS}:{WS+3}], s69 offen sc1'); a('s_waitcnt vmcnt(0)')
    a(f'v_readfirstlane_b32 s70, v{vt+1}'); a('s_nop 0'); a(f's_cmp_eq_u32 s70, s{sTOK}'); a(f's_cbranch_scc1 {ok}')
    spin_guard(a, ok)
    a(f's_sleep {sleep}'); a(f's_branch {again}')
    a.label(ok)
def lds_arrive(a, caddr, n, action, vt, group_reg=None, mod4=False):
    skip = L('arr')
    a('s_mov_b64 exec, 1'); a(f'v_mov_b32 v{vt}, {caddr}' if group_reg is None else f'v_mov_b32 v{vt}, s{group_reg}'); a(f'v_mov_b32 v{vt+1}, 1')
    a(f'ds_add_rtn_u32 v{vt+1}, v{vt}, v{vt+1}'); a('s_waitcnt lgkmcnt(0)')
    a(f'v_readfirstlane_b32 s70, v{vt+1}'); a('s_nop 0')
    if mod4: a('s_and_b32 s70, s70, 3')
    a(f's_cmp_lg_u32 s70, {n-1}'); a(f's_cbranch_scc1 {skip}')
    action()
    a.label(skip); a('s_mov_b64 exec, -1')
def lds_set(a, caddr, src, vt):
    a('s_mov_b64 exec, 1'); a(f'v_mov_b32 v{vt}, {caddr}'); a(f'v_mov_b32 v{vt+1}, {src}'); a(f'ds_write_b32 v{vt}, v{vt+1}'); a('s_mov_b64 exec, -1')
def lds_get(a, caddr, sdst, vt):
    a(f'v_mov_b32 v{vt}, {caddr}'); a(f'ds_read_b32 v{vt+1}, v{vt}'); a('s_waitcnt lgkmcnt(0)'); a(f'v_readfirstlane_b32 s{sdst}, v{vt+1}')
def one_wave(a, wave, poll, caddr, vt, sel=None, sleep=1):
    other, done = L('ow'), L('owd')
    a(f's_cmp_lg_u32 s{sW if sel is None else sel}, {wave}'); a(f's_cbranch_scc1 {other}')
    poll(); lds_set(a, caddr, 1, vt); a(f's_branch {done}')
    a.label(other); lds_wait(a, caddr, 1, vt, sleep=sleep)
    a.label(done)
def lds_wait(a, caddr, n, vt, sleep=0):
    again, ok = L('lw'), L('lwok')
    a(f'v_mov_b32 v{vt}, {caddr}')
    a.label(again)
    a(f'ds_read_b32 v{vt+1}, v{vt}'); a('s_waitcnt lgkmcnt(0)'); a(f'v_readfirstlane_b32 s70, v{vt+1}'); a('s_nop 0')
    a(f's_cmp_ge_u32 s70, {n}'); a(f's_cbranch_scc1 {ok}')
    spin_guard(a, ok)
    if sleep: a(f's_sleep {sleep}')
    a(f's_branch {again}')
    a.label(ok)
def lds_add(a, caddr, vt):
    a('s_mov_b64 exec, 1'); a(f'v_mov_b32 v{vt}, {caddr}'); a(f'v_mov_b32 v{vt+1}, 1'); a(f'ds_add_u32 v{vt}, v{vt+1}'); a('s_mov_b64 exec, -1')
SSET = os.environ.get('SSET', 'main')
def stp(a, name, idx):
    if name == SSET: stamp(a, idx)
def finish(a):
    if STAMPS: a('s_waitcnt vmcnt(0)'); stamp(a, 7); stamp_flush(a, 8, 0)
    a('s_endpgm')


def fl(x): return hex(f32bits(float(x)))
def trig_pair(a, ang, dc, ds_):
    a(f'v_cos_f32 v{dc}, v{ang}'); a(f'v_sin_f32 v{ds_}, v{ang}')
def prologue(a):
    a('s_cmp_ge_u32 s2, 256'); a('s_cbranch_scc1 L_end')
    a('s_load_dwordx16 s[48:63], s[0:1], 0'); a('s_load_dwordx2 s[64:65], s[0:1], 64')
    a('v_lshrrev_b32 v2, 6, v0'); a('v_and_b32 v3, 63, v0'); a('v_lshlrev_b32 v1, 4, v3')
    a(f'v_readfirstlane_b32 s{sW}, v2'); stamp(a, 0); stamp_wave(a, sW)
    a(f's_mov_b32 s{sSPIN}, 0'); a(f's_mov_b32 s{sH3}, 0')
    a(f's_lshr_b32 s{sTB}, s2, 3'); a(f's_and_b32 s{sHP}, s2, 7')
    a(f's_and_b32 s{sR}, s{sW}, 3'); a('v_and_b32 v2, 3, v2')
    a('s_waitcnt lgkmcnt(0)')
    srd(a, X, 48, 2048 * 512 * 2); srd(a, WQ, 50, 512 * 1536 * 2); srd(a, BX, 54, 2048 * 512 * 2)
    a(f's_cmp_lt_u32 s{sR}, 2'); a(f's_cselect_b32 s{WSEL}, s56, s58'); a(f's_cselect_b32 s{WSEL+1}, s57, s59')
    a(f's_mov_b32 s{WSEL+2}, {2048*257*2}'); a(f's_mov_b32 s{WSEL+3}, 0x20000')
    srd(a, WS, 64, WS_USED); srd(a, WO, 52, 512 * 512 * 2); srd(a, OUT, 60, 2048 * 1024 * 2); srd(a, DBG, 62, 256)
    a(f's_cmp_ge_u32 s{sW}, 8'); a('s_cbranch_scc1 L_B_p1')
    a(f's_cmp_ge_u32 s{sW}, 4'); a('s_cbranch_scc1 L_C_p1')

def b1_row0(a, d):
    a(f's_lshr_b32 s{d}, s2, 6'); a(f's_lshl_b32 s{d}, s{d}, 2'); a(f's_and_b32 s{d+1}, s{sR}, 1'); a(f's_lshl_b32 s{d+1}, s{d+1}, 1'); a(f's_add_u32 s{d}, s{d}, s{d+1}')
    a(f's_lshr_b32 s{d+1}, s{sR}, 1'); a(f's_lshl_b32 s{d+1}, s{d+1}, 4'); a(f's_add_u32 s{d}, s{d}, s{d+1}')
    a(f's_lshl_b32 s{d}, s{d}, 6'); a(f's_and_b32 s{d+1}, s2, 63'); a(f's_add_u32 s{d}, s{d}, s{d+1}')

def phase1_A(a):
    a.vm_reset()
    skip = L('w0')
    a(f's_cmp_lg_u32 s{sW}, 0'); a(f's_cbranch_scc1 {skip}')
    a('v_mov_b32 v5, 0'); a('s_mov_b32 exec_lo, -1'); a('s_mov_b32 exec_hi, 0'); a('v_lshlrev_b32 v4, 2, v3'); a(f'v_add_u32 v4, {CNT}, v4'); a('ds_write_b32 v4, v5'); a('s_mov_b64 exec, -1')
    other, have = L('oth'), L('have')
    a('s_cmp_lg_u32 s2, 0'); a(f's_cbranch_scc1 {other}')
    a('s_memrealtime s[48:49]')
    for q in range(4): a(f'v_mov_b32 v{4+q}, 0')
    for q in range(4):
        a(f's_mov_b32 s50, {CW + 1024*q}'); a(f'buffer_store_dwordx4 v[4:7], v1, s[{WS}:{WS+3}], s50 offen sc1')
    a('s_waitcnt vmcnt(0) lgkmcnt(0)'); a(f's_or_b32 s{sTOK}, s48, 1')
    a(f'v_mov_b32 v4, {D_TOK}'); a(f'v_mov_b32 v5, s{sTOK}'); a('s_mov_b64 exec, 1'); a(f'buffer_store_dword v5, v4, s[{DBG}:{DBG+3}], 0 offen sc1'); a('s_mov_b64 exec, -1')
    a(f's_branch {have}')
    a.label(other)
    a('v_mov_b32 v6, 0'); get_token(a, 6)
    a.label(have)
    a('s_getreg_b32 s59, hwreg(HW_REG_XCC_ID)'); a('s_and_b32 s59, s59, 7'); a('s_lshl_b32 s59, s59, 3'); a('s_lshl_b64 s[60:61], 1, s59')
    a('s_and_b32 s62, s2, 7'); a('s_lshl_b32 s62, s62, 7'); a(f's_add_u32 s62, s62, {W_XG}')
    a('v_mov_b32 v4, 0'); a('v_mov_b32 v6, s60'); a('v_mov_b32 v7, s61'); a('s_mov_b64 exec, 1')
    a(f'buffer_atomic_add_x2 v[6:7], v4, s[{WS}:{WS+3}], s62 offen sc1'); a('s_mov_b64 exec, -1')
    lds_set(a, C_TOK, f's{sTOK}', 8)
    a.label(skip)
    a('v_and_b32 v4, 31, v3'); a('v_lshrrev_b32 v5, 5, v3'); a('v_bfe_u32 v6, v4, 1, 3'); a('v_xor_b32 v5, v5, v6')
    a('v_lshlrev_b32 v5, 4, v5'); a('v_lshl_add_u32 v5, v4, 7, v5'); a('v_and_b32 v6, 1, v2'); a('v_lshl_add_u32 v5, v6, 12, v5')
    for ks in range(4): a(f'v_xor_b32 v{96+ks}, {32*ks}, v5')
    a('v_and_b32 v4, 15, v3'); a('v_lshrrev_b32 v5, 5, v3'); a('v_lshlrev_b32 v5, 3, v5'); a('v_lshrrev_b32 v6, 2, v4'); a('v_add_u32 v5, v5, v6')
    a('v_mul_u32_u24 v5, 384, v5'); a('v_bfe_u32 v6, v3, 4, 1'); a('v_lshlrev_b32 v6, 5, v6'); a('v_and_b32 v7, 3, v4'); a('v_lshlrev_b32 v7, 3, v7')
    a('v_add3_u32 v5, v5, v6, v7'); a('v_lshrrev_b32 v6, 1, v2'); a('v_bfe_u32 v9, v3, 3, 1'); a('v_xor_b32 v6, v6, v9'); a('v_lshl_add_u32 v104, v6, 6, v5')
    a(f'v_add_u32 v104, {WL}, v104'); a('v_add_u32 v105, 49152, v104')
    a('s_waitcnt lgkmcnt(0)'); a('s_barrier')
    stp(a, 'main', 1); stp(a, 'p1', 1)
    XF = (64, 68); WF = (72, 84); ACC = (16, 32, 48)
    def reads(st, ks, buf):
        a(f'ds_read_b128 {vr(XF[buf],4)}, v{96+ks} offset:{XL + st*8192}')
        so = (st % 3) * WSLOT
        for jb in range(3):
            for rho in range(2):
                off = so + (16*ks+4*rho)*384 + jb*128
                a(f'ds_read_b64_tr_b16 {vr(WF[buf]+4*jb+2*rho,2)}, v{104 if off < 49152 else 105} offset:{off if off < 49152 else off - 49152}')
    def mfmas(buf, first):
        x = vr(XF[buf], 4)
        for jb in range(3):
            wv = vr(WF[buf] + 4 * jb, 4); d = vr(ACC[jb], 16); c = '0' if first else d
            if jb < 2: a(f'{M32} {d}, {wv}, {x}, {c}')
            else:      a(f'{M32} {d}, {x}, {wv}, {c}')
    reads(0, 0, 0)
    step = 0
    for st in range(8):
        for ks in range(4):
            buf = step & 1
            if ks < 3:
                reads(st, ks + 1, buf ^ 1); a('s_waitcnt lgkmcnt(7)'); mfmas(buf, step == 0)
            else:
                a('s_waitcnt lgkmcnt(0)')
                if st < 7:
                    a('s_barrier')
                    reads(st + 1, 0, buf ^ 1)
                if st in (0, 1, 2, 3): stp(a, 'p1', 2 + st)
                if st in (4, 5):
                    skip = L('cz')
                    a(f's_cmp_lg_u32 s{sW}, 0'); a(f's_cbranch_scc1 {skip}')
                    if st == 4:
                        a('v_mov_b32 v106, 0'); a(f'buffer_load_dwordx2 v[108:109], v106, s[{WS}:{WS+3}], s62 offen sc1')
                    else:
                        a('s_waitcnt vmcnt(0)'); a('s_lshl_b64 s[60:61], s[60:61], 5')
                        a('v_readfirstlane_b32 s56, v108'); a('v_readfirstlane_b32 s57, v109'); a('s_nop 0')
                        a('s_cmp_eq_u64 s[56:57], s[60:61]'); a('s_cselect_b32 s56, 1, 0')
                        if 'nofast' in DG: a('s_mov_b32 s56, 0')
                        lds_set(a, C_FAST, 's56', 110)
                    a.label(skip)
                mfmas(buf, False)
            step += 1
    stp(a, 'main', 2); stp(a, 'mid', 1); stp(a, 'p1', 6)
    a(f's_lshl_b32 s48, s{sTB}, 1'); a(f's_and_b32 s49, s{sR}, 1'); a('s_add_u32 s48, s48, s49'); a('s_lshl_b32 s48, s48, 10')
    a(f's_lshl_b32 s49, s{sHP}, 1'); a(f's_lshr_b32 s50, s{sR}, 1'); a('s_add_u32 s49, s49, s50'); a('s_lshl_b32 s49, s49, 17'); a('s_add_u32 s48, s48, s49')
    a(f's_add_u32 s49, s48, {QF}'); a(f's_add_u32 s50, s48, {QF+65536}')
    a(f's_add_u32 s51, s48, {KF}'); a(f's_add_u32 s52, s48, {KF+65536}'); a(f's_add_u32 s53, s48, {VF}')
    a('v_bfe_u32 v5, v3, 4, 1'); a('v_lshlrev_b32 v5, 16, v5'); a('v_lshrrev_b32 v6, 5, v3'); a('v_lshlrev_b32 v6, 8, v6')
    a('v_and_b32 v7, 15, v3'); a('v_lshlrev_b32 v7, 4, v7'); a('v_add3_u32 v5, v5, v6, v7')
    lds_get(a, C_TOK, sTOK, 8); lds_get(a, C_FAST, 54, 8)
    for jb in (1, 2):
        for p in range(8): a(f'v_cvt_pk_bf16_f32 v{64+8*jb+p}, v{ACC[jb]+2*p}, v{ACC[jb]+2*p+1}')
    for p in range(16): a(f'v_mul_f32 v{ACC[0]+p}, {QSCALE}, v{ACC[0]+p}')
    for p in range(8): a(f'v_cvt_pk_bf16_f32 v{64+p}, v{ACC[0]+2*p}, v{ACC[0]+2*p+1}')
    def stores(mod):
        a(f'buffer_store_dwordx4 v[72:75], v1, s[{WS}:{WS+3}], s51 offen{mod}'); a(f'buffer_store_dwordx4 v[76:79], v1, s[{WS}:{WS+3}], s52 offen{mod}')
        a(f'buffer_store_dwordx4 v[80:83], v5, s[{WS}:{WS+3}], s53 offen{mod}'); a(f'buffer_store_dwordx4 v[84:87], v5, s[{WS}:{WS+3}], s53 offen offset:512{mod}')
        a(f'buffer_store_dwordx4 v[64:67], v1, s[{WS}:{WS+3}], s49 offen{mod}'); a(f'buffer_store_dwordx4 v[68:71], v1, s[{WS}:{WS+3}], s50 offen{mod}')
    slow, join = L('slow'), L('join')
    a('s_cmp_eq_u32 s54, 0'); a(f's_cbranch_scc1 {slow}')
    stores(''); a(f's_branch {join}')
    a.label(slow); stores(' sc1')
    a.label(join)
    a('s_waitcnt vmcnt(0)')
    stp(a, 'mid', 2)
    def pub_q():
        a(f's_lshl_b32 s48, s{sHP}, 7'); a(f's_lshl_b32 s49, s{sTB}, 2'); a('s_add_u32 s48, s48, s49'); a(f's_add_u32 s48, s48, {FQ}')
        a('v_mov_b32 v6, 0'); a(f'v_mov_b32 v7, s{sTOK}')
        sl, jn = L('fs'), L('fj')
        a('s_cmp_eq_u32 s54, 0'); a(f's_cbranch_scc1 {sl}')
        a(f'buffer_store_dword v7, v6, s[{WS}:{WS+3}], s48 offen'); a(f's_branch {jn}')
        a.label(sl); a(f'buffer_store_dword v7, v6, s[{WS}:{WS+3}], s48 offen sc1')
        a.label(jn)
    lds_arrive(a, C_Q, 4, pub_q, 8)
    stp(a, 'mid', 3)

def phase1_C(a):
    a.label('L_C_p1')
    a.vm_reset()
    if 'nopf' not in DG:
        skip = L('pf')
        a(f's_cmp_lg_u32 s{sW}, 4'); a(f's_cbranch_scc1 {skip}')
        a('s_getpc_b64 s[24:25]'); a.label('L_pf_base'); a('s_mov_b32 s26, L_code_end-L_pf_base'); a('s_mov_b32 s27, 0x20000')
        a('s_lshr_b32 s48, s2, 3'); a('s_lshl_b32 s48, s48, 11')
        a('buffer_load_dwordx4 v[148:151], v1, s[24:27], s48 offen'); a('buffer_load_dwordx4 v[152:155], v1, s[24:27], s48 offen offset:1024')
        a.label(skip)
    FC, FS, F16, TWC, TWS = 16, 24, 32, 40, 48
    K1, H, A_, T = 6, 7, 8, 10
    a(f'v_and_b32 v{K1}, 31, v3'); a(f'v_lshrrev_b32 v{H}, 5, v3'); a(f'v_cvt_f32_u32 v{K1}, v{K1}'); a(f'v_cvt_f32_u32 v{H}, v{H}')
    a(f'v_mul_f32 v{A_}, {fl(1/32)}, v{K1}'); a(f'v_mul_f32 v9, {fl(8)}, v{H}'); a(f'v_mul_f32 v9, v9, v{A_}')
    for kap in range(2):
        for p in range(4):
            for e in range(2):
                j = 2 * p + e
                a(f'v_mov_b32 v{T+e}, {fl(16*kap + j)}'); a(f'v_fma_f32 v{T+e}, v{A_}, v{T+e}, v9'); trig_pair(a, T + e, T + 2 + e, T + 4 + e)
            a(f'v_cvt_pk_bf16_f32 v{FC+4*kap+p}, v{T+2}, v{T+3}'); a(f'v_cvt_pk_bf16_f32 v{FS+4*kap+p}, -v{T+4}, -v{T+5}')
    a('v_and_b32 v56, 31, v3'); a('v_lshrrev_b32 v57, 1, v56'); a('v_cvt_f32_u32 v57, v57'); a(f'v_mul_f32 v57, {fl(1/16)}, v57')
    a('v_and_b32 v58, 1, v56'); a('v_cvt_f32_u32 v58, v58'); a(f'v_mul_f32 v58, {fl(0.25)}, v58')
    a(f'v_mul_f32 v59, 4.0, v{H}'); a('v_fma_f32 v58, v57, v59, v58')
    a('v_cmp_ge_u32 vcc, 16, v56'); a('v_mov_b32 v60, 1.0'); a('v_cndmask_b32 v60, 0, v60, vcc')
    for part in range(2):
        for p in range(4):
            for e in range(2):
                j = 2 * p + e; cj = 8 * (j >> 2) + (j & 3)
                a(f'v_mov_b32 v{T+e}, {fl(cj)}'); a(f'v_fma_f32 v{T+e}, v57, v{T+e}, v58')
                if part: a(f'v_add_f32 v{T+e}, {fl(-0.25)}, v{T+e}')
                a(f'v_cos_f32 v{T+2+e}, v{T+e}')
            a(f'v_mul_f32 v{T+2}, v{T+2}, v60'); a(f'v_mul_f32 v{T+3}, v{T+3}, v60')
            a(f'v_cvt_pk_bf16_f32 v{F16+4*part+p}, v{T+2}, v{T+3}')
    a(f'v_mul_f32 v57, {fl(1/512)}, v{K1}'); a('v_mul_f32 v58, v57, v59')
    for r in range(8):
        cj = 8 * (r >> 2) + (r & 3)
        a(f'v_mov_b32 v{T}, {fl(cj)}'); a(f'v_fma_f32 v{T}, v57, v{T}, v58'); trig_pair(a, T, TWC + r, TWS + r)
    a('s_barrier')
    stp(a, 'main', 1)
    a('s_barrier'); a('s_barrier')
    b1_row0(a, 48); a('s_lshl_b32 s48, s48, 10')
    a(f's_mul_i32 s49, s{sR}, 2304'); a(f's_add_u32 s49, s49, {B1X}')
    a('s_mov_b32 m0, s49'); a('s_add_u32 s49, s49, 1152')
    a.vmem(f'buffer_load_dwordx4 v1, s[{BX}:{BX+3}], s48 offen lds', 'rows')
    a('s_mov_b32 m0, s49'); a('s_add_u32 s48, s48, 65536')
    a.vmem(f'buffer_load_dwordx4 v1, s[{BX}:{BX+3}], s48 offen lds', 'rows')
    sSH = 57
    a(f's_and_b32 s{sSH}, s2, 1')
    a('s_and_b32 s52, s2, 15'); a('s_lshr_b32 s53, s2, 4'); a('s_lshl_b32 s53, s53, 7'); a('s_add_u32 s52, s52, s53')
    a(f's_and_b32 s53, s{sR}, 1'); a('s_lshl_b32 s53, s53, 4'); a('s_add_u32 s52, s52, s53'); a('s_mul_i32 s52, s52, 514')
    a(f's_lshl_b32 s53, s{sSH}, 1'); a('s_sub_u32 s52, s52, s53')
    a(f's_mul_i32 s53, s{sR}, {4*576}'); a(f's_add_u32 s53, s53, {WPR}')
    a('s_mov_b32 exec_hi, 1')
    for u in range(4):
        a('s_mov_b32 m0, s53'); a('s_add_u32 s53, s53, 576')
        a.vmem(f'buffer_load_dwordx4 v1, s[{WSEL}:{WSEL+3}], s52 offen lds', 'rows')
        if u < 3: a(f's_add_u32 s52, s52, {32*514}')
    a('s_mov_b64 exec, -1')
    a('v_and_b32 v4, 15, v3'); a('v_and_b32 v7, 3, v4'); a('v_lshlrev_b32 v7, 3, v7')
    a('v_lshrrev_b32 v5, 5, v3'); a('v_lshlrev_b32 v5, 3, v5'); a('v_lshrrev_b32 v6, 2, v4'); a('v_add_u32 v5, v5, v6'); a('v_lshlrev_b32 v5, 5, v5')
    a('v_bfe_u32 v6, v3, 4, 1'); a('v_mul_u32_u24 v6, 1152, v6'); a('v_add3_u32 v5, v5, v6, v7')
    a('v_mul_u32_u24 v6, 2304, v2'); a('v_add_u32 v5, v5, v6'); a(f'v_add_u32 v8, {B1X}, v5')
    a('v_and_b32 v4, 31, v3'); a('v_lshlrev_b32 v5, 5, v4'); a('v_lshrrev_b32 v4, 3, v4'); a('v_lshl_add_u32 v5, v4, 4, v5')
    a('v_lshrrev_b32 v6, 5, v3'); a(f'v_mul_u32_u24 v6, {2*1088}, v6'); a('v_lshlrev_b32 v7, 2, v2'); a('v_add3_u32 v5, v5, v6, v7'); a(f'v_add_u32 v9, {EXC}, v5')
    for st in range(3, 8): a('s_barrier')
    stp(a, 'main', 2); stp(a, 'mid', 1)
    a('s_waitcnt vmcnt(0)'); lds_add(a, C_CX, 4)
    AF, DRE, DIM, PK, D2 = 56, 64, 80, 96, (64, 80)
    for kap in range(2):
        for rho in range(2):
            a(f'ds_read_b64_tr_b16 {vr(AF+4*kap+2*rho,2)}, v8 offset:{(16*kap+4*rho)*32}')
    a('s_waitcnt lgkmcnt(0)')
    a(f'{M32} {vr(DRE,16)}, {vr(AF,4)}, {vr(FC,4)}, 0'); a(f'{M32} {vr(DIM,16)}, {vr(AF,4)}, {vr(FS,4)}, 0')
    a(f'{M32} {vr(DRE,16)}, {vr(AF+4,4)}, {vr(FC+4,4)}, {vr(DRE,16)}'); a(f'{M32} {vr(DIM,16)}, {vr(AF+4,4)}, {vr(FS+4,4)}, {vr(DIM,16)}')
    for p in range(8):
        r0 = 2 * p; c = TWC + (r0 & 7); s = TWS + (r0 & 7)
        a(f'v_pk_mul_f32 v[10:11], {vr(DRE+r0,2)}, {vr(c,2)}'); a(f'v_pk_mul_f32 v[12:13], {vr(DIM+r0,2)}, {vr(c,2)}')
        a(f'v_pk_fma_f32 v[10:11], {vr(DIM+r0,2)}, {vr(s,2)}, v[10:11]')
        a(f'v_pk_fma_f32 v[12:13], {vr(DRE+r0,2)}, {vr(s,2)}, v[12:13] neg_lo:[0,1,0] neg_hi:[0,1,0]')
        a(f'v_cvt_pk_bf16_f32 v{PK+p}, v10, v11'); a(f'v_cvt_pk_bf16_f32 v{PK+8+p}, v12, v13')
    for r in range(2): a(f'{M32} {vr(D2[r],16)}, {vr(F16,4)}, {vr(PK+4*r,4)}, 0')
    for r in range(2): a(f'{M32} {vr(D2[r],16)}, {vr(F16+4,4)}, {vr(PK+8+4*r,4)}, {vr(D2[r],16)}')
    a('s_nop 7'); a('s_nop 3'); a('s_mov_b64 exec, 1')
    for r in range(2): a(f'v_mov_b32 v{D2[r]+1}, v{D2[r]+8}')
    a('s_mov_b64 exec, -1')
    for rr in range(8):
        k2 = 4 * (rr >> 2) + ((rr >> 1) & 1)
        a(f'v_cvt_pk_bf16_f32 v{10+(rr&1)}, v{D2[0]+rr}, v{D2[1]+rr}')
        a(f'ds_write_b32 v9, v{10+(rr&1)} offset:{k2*1088 + 16*(rr&1)}')
    a('s_waitcnt lgkmcnt(0)'); lds_add(a, C_CX, 4)
    stp(a, 'mid', 2)
    lds_get(a, C_TOK, sTOK, 4)
    stp(a, 'mid', 3)
B2_F32, B2_F64, B2_TW1, B2_TW2 = 88, 112, 136, 152
def b2_consts(a, part, half, t=4):
    I, G, T = t, t + 1, t + 4
    a(f'v_and_b32 v{I}, 15, v3'); a(f'v_lshrrev_b32 v{G}, 4, v3'); a(f'v_cvt_f32_u32 v{I}, v{I}'); a(f'v_cvt_f32_u32 v{G}, v{G}')
    if part == 0:
        nt = half
        a(f'v_add_f32 v{t+2}, {fl(16*nt)}, v{I}'); a(f'v_mul_f32 v{t+2}, {fl(1/32)}, v{t+2}')
        a(f'v_mul_f32 v{t+3}, 4.0, v{G}'); a(f'v_mul_f32 v{t+3}, v{t+3}, v{t+2}')
        for p in range(4):
            for e in range(2):
                j = 2 * p + e; cj = (j & 3) + 16 * (j >> 2)
                a(f'v_mov_b32 v{T+e}, {fl(cj)}'); a(f'v_fma_f32 v{T+e}, v{t+2}, v{T+e}, v{t+3}'); trig_pair(a, T + e, T + 2 + e, T + 4 + e)
            d = B2_F32 + 12 * nt + p
            a(f'v_cvt_pk_bf16_f32 v{d}, v{T+2}, v{T+3}'); a(f'v_cvt_pk_bf16_f32 v{d+4}, v{T+4}, v{T+5}'); a(f'v_cvt_pk_bf16_f32 v{d+8}, -v{T+4}, -v{T+5}')
    elif part == 1:
        kap = half
        a(f'v_cvt_f32_u32 v{t+2}, v2'); a(f'v_mul_f32 v{t+2}, {fl(16)}, v{t+2}'); a(f'v_add_f32 v{t+2}, v{t+2}, v{I}'); a(f'v_mul_f32 v{t+2}, {fl(1/64)}, v{t+2}')
        a(f'v_mul_f32 v{t+3}, {fl(8)}, v{G}'); a(f'v_mul_f32 v{t+3}, v{t+3}, v{t+2}')
        for p in range(4):
            for e in range(2):
                j = 2 * p + e
                a(f'v_mov_b32 v{T+e}, {fl(32*kap + j)}'); a(f'v_fma_f32 v{T+e}, v{t+2}, v{T+e}, v{t+3}'); a(f'v_fract_f32 v{T+e}, v{T+e}'); trig_pair(a, T + e, T + 2 + e, T + 4 + e)
            d = B2_F64 + 12 * kap + p
            a(f'v_cvt_pk_bf16_f32 v{d}, v{T+2}, v{T+3}'); a(f'v_cvt_pk_bf16_f32 v{d+4}, v{T+4}, v{T+5}'); a(f'v_cvt_pk_bf16_f32 v{d+8}, -v{T+4}, -v{T+5}')
    else:
        nt = half
        a(f'v_cvt_f32_u32 v{t+2}, v2'); a(f'v_mul_f32 v{t+2}, {fl(16)}, v{t+2}'); a(f'v_mul_f32 v{t+3}, 4.0, v{G}')
        a(f'v_add_f32 v{T}, {fl(16*nt)}, v{I}'); a(f'v_mul_f32 v{T}, {fl(1/2048)}, v{T}'); a(f'v_add_f32 v{T+1}, v{t+2}, v{t+3}')
        for r in range(4):
            a(f'v_add_f32 v{T+2}, {fl(r)}, v{T+1}'); a(f'v_mul_f32 v{T+2}, v{T+2}, v{T}'); trig_pair(a, T + 2, B2_TW1 + 4 * nt + r, B2_TW1 + 8 + 4 * nt + r)
        a(f'v_add_f32 v{T}, v{t+2}, v{I}'); a(f'v_mul_f32 v{T}, {fl(1/2048)}, v{T}'); a(f'v_add_f32 v{T+1}, {fl(16*nt)}, v{t+3}')
        for r in range(4):
            a(f'v_add_f32 v{T+2}, {fl(r)}, v{T+1}'); a(f'v_mul_f32 v{T+2}, v{T+2}, v{T}'); trig_pair(a, T + 2, B2_TW2 + 4 * nt + r, B2_TW2 + 8 + 4 * nt + r)

def phase1_B(a):
    a.label('L_B_p1')
    a.vm_reset()
    a('s_setprio 3')
    a('v_lshrrev_b32 v4, 3, v3'); a('v_lshlrev_b32 v4, 10, v4'); a('v_and_b32 v5, 7, v3'); a('v_lshrrev_b32 v6, 4, v3')
    a('v_xor_b32 v5, v5, v6'); a('v_lshlrev_b32 v5, 4, v5'); a('v_add_u32 v16, v4, v5'); a('v_xor_b32 v17, 64, v16'); a('v_add_u32 v17, 8192, v17')
    for u in range(6):
        a(f'v_add_u32 v4, {64*u}, v3'); a('v_mul_u32_u24 v5, 171, v4'); a('v_lshrrev_b32 v5, 12, v5')
        a('v_mul_u32_u24 v6, 24, v5'); a('v_sub_u32 v6, v4, v6')
        a('v_bfe_u32 v7, v5, 1, 1'); a('v_lshlrev_b32 v7, 2, v7'); a('v_and_b32 v8, 7, v6'); a('v_xor_b32 v7, v7, v8'); a('v_lshlrev_b32 v7, 4, v7')
        a('v_lshrrev_b32 v6, 3, v6'); a('v_lshl_add_u32 v7, v6, 10, v7')
        a('v_lshl_add_u32 v5, v2, 4, v5'); a('v_mul_u32_u24 v5, 3072, v5'); a(f'v_add_u32 v{18+u}, v5, v7')
    sXROW, sWOFF, sT2, sT3, sROT = 48, 49, 50, 51, 58
    a(f's_lshl_b32 s{sXROW}, s{sTB}, 6'); a(f's_lshl_b32 s52, s{sR}, 4'); a(f's_add_u32 s{sXROW}, s{sXROW}, s52'); a(f's_lshl_b32 s{sXROW}, s{sXROW}, 10')
    a(f's_lshl_b32 s{sWOFF}, s{sHP}, 7'); a(f's_lshl_b32 s{sT2}, s{sR}, 11'); a(f's_mul_i32 s{sT3}, s{sR}, 6144')
    if 'norot' in DG: a(f's_mov_b32 s{sROT}, 0')
    else: a(f's_lshr_b32 s{sROT}, s2, 3')
    def koff(st):
        a(f's_add_u32 s52, s{sROT}, {st}'); a('s_and_b32 s52, s52, 7')
    def dma_x(st):
        koff(st); a('s_lshl_b32 s53, s52, 7'); a(f's_add_u32 s53, s53, s{sXROW}')
        for q in range(2):
            a(f's_add_u32 m0, s{sT2}, {XL + st*8192 + q*1024}'); a('s_nop 0')
            a.vmem(f'buffer_load_dwordx4 v{16+q}, s[{X}:{X+3}], s53 offen lds', f'x{st}')
    def dma_w(st):
        koff(st); a(f's_mul_i32 s52, s52, {64*3072}'); a(f's_add_u32 s52, s52, s{sWOFF}')
        for u in range(6):
            a(f's_add_u32 m0, s{sT3}, {WL + (st % 3)*WSLOT + u*1024}'); a('s_nop 0')
            a.vmem(f'buffer_load_dwordx4 v{18+u}, s[{WQ}:{WQ+3}], s52 offen lds', f'w{st}')
    dma_x(0); dma_w(0); dma_x(1); dma_w(1)
    for st in range(8):
        a.vm_wait(f'w{st}'); a('s_barrier')
        if st == 0:
            stp(a, 'main', 1); dma_x(2); dma_x(3); dma_w(2)
            for x in range(4, 8): dma_x(x)
        if 1 <= st <= 5: dma_w(st + 2)
    a('s_setprio 0')
    for part in range(3):
        for half in range(2): b2_consts(a, part, half)
    stp(a, 'main', 2); stp(a, 'mid', 1)
    lds_get(a, C_TOK, sTOK, 4)

def gen_b2(a):
    G, I, VWR, VRD = 4, 5, 6, 7
    F32 = tuple((B2_F32 + 12 * nt, B2_F32 + 12 * nt + 4, B2_F32 + 12 * nt + 8) for nt in range(2))
    F64 = tuple((B2_F64 + 12 * k, B2_F64 + 12 * k + 4, B2_F64 + 12 * k + 8) for k in range(2))
    TW1C, TW1S, TW2C, TW2S = B2_TW1, B2_TW1 + 8, B2_TW2, B2_TW2 + 8
    VU, VW, T = 8, 9, 10

    FR = 16; ACC = 48; ARE, AIM = 64, 68; WR, WI = 72, 76; WC, WS_ = 16, 24; PK = 80
    bp = int(os.environ.get('B2PRIO', '3'))
    a('s_and_b32 s48, s2, 7'); a('s_lshl_b32 s48, s48, 5'); a('s_lshr_b32 s49, s2, 3'); a(f's_add_u32 s{sPOS}, s48, s49'); a(f's_mov_b32 s{sXT}, 0')
    a(f'v_lshrrev_b32 v{G}, 4, v3'); a(f'v_and_b32 v{I}, 15, v3'); a(f'v_lshl_add_u32 v{VU}, v{G}, 6, v{I}'); a(f's_movk_i32 s48, {BLK}')
    a(f'v_mul_lo_u32 v{VU}, v{VU}, s48'); a(f'v_mul_lo_u32 v{VW}, v3, s48')
    a(f'v_mul_u32_u24 v{VRD}, 144, v{I}'); a(f'v_lshl_add_u32 v{VWR}, v{G}, 3, v{VRD}'); a(f'v_lshl_add_u32 v{VWR}, v2, 5, v{VWR}'); a(f'v_lshl_add_u32 v{VRD}, v{G}, 4, v{VRD}')
    if 'nob2' in DG:
        lds_wait(a, C_DONE, 8, 8, sleep=16); finish(a)
    sSH = 57
    a(f's_and_b32 s{sSH}, s2, 1')
    a('v_lshl_add_u32 v14, v2, 6, v3')
    a('v_lshrrev_b32 v10, 1, v14'); a('v_lshlrev_b32 v11, 5, v10'); a('v_lshrrev_b32 v10, 3, v10'); a('v_lshl_add_u32 v11, v10, 4, v11')
    a('v_and_b32 v10, 1, v14'); a('v_lshl_add_u32 v11, v10, 4, v11'); a(f'v_add_u32 v15, {EXC}, v11')
    a('v_and_b32 v11, 15, v3'); a('v_lshrrev_b32 v12, 2, v11'); a('v_mul_u32_u24 v12, 576, v12'); a('v_and_b32 v11, 3, v11'); a('v_lshlrev_b32 v11, 3, v11')
    a('v_lshrrev_b32 v13, 4, v3'); a('v_lshlrev_b32 v13, 5, v13'); a('v_add3_u32 v11, v11, v12, v13'); a('v_lshl_add_u32 v11, v2, 7, v11'); a(f'v_add_u32 v16, {WPR}, v11')
    a('v_lshlrev_b32 v17, 4, v14'); a(f'v_subrev_u32 v18, s{sSH}, v14'); a('v_lshlrev_b32 v18, 5, v18')
    a(f's_mul_i32 s54, s2, {BLK}'); a(f's_add_u32 s55, s54, {U1}'); a(f's_add_u32 s56, s54, {WT}')
    lds_wait(a, C_CX, 8, 10, sleep=1)
    lds_wait(a, C_A0, 8, 10, sleep=2)
    a('s_setprio 3')
    a('ds_read_b128 v[20:23], v15'); a('ds_read_b128 v[24:27], v15 offset:4352')
    for rho in range(4): a(f'ds_read_b64_tr_b16 {vr(28+2*rho,2)}, v16 offset:{rho*2304}')
    a('s_waitcnt lgkmcnt(0)')
    a(f'buffer_store_dwordx4 v[20:23], v17, s[{WS}:{WS+3}], s55 offen sc1'); a('s_add_u32 s53, s55, 4096')
    a(f'buffer_store_dwordx4 v[24:27], v17, s[{WS}:{WS+3}], s53 offen sc1')
    skip = L('sh')
    a(f's_cmp_eq_u32 s{sSH}, 0'); a(f's_cbranch_scc1 {skip}'); a(f's_cmp_lg_u32 s{sR}, 0'); a(f's_cbranch_scc1 {skip}'); a('s_mov_b32 exec_lo, 0xfffffffe')
    a.label(skip)
    a(f'buffer_store_dwordx4 v[28:31], v18, s[{WS}:{WS+3}], s56 offen sc1'); a(f'buffer_store_dwordx4 v[32:35], v18, s[{WS}:{WS+3}], s56 offen offset:16 sc1')
    a('s_mov_b64 exec, -1')
    skip = L('nyq')
    a(f's_cmp_lg_u32 s{sR}, 0'); a(f's_cbranch_scc1 {skip}')
    a(f's_cmp_eq_u32 s{sSH}, 0'); a('s_cselect_b32 exec_lo, 0xffff, -1'); a('s_mov_b32 exec_hi, 0')
    a('v_and_b32 v10, 15, v3'); a('v_lshrrev_b32 v12, 4, v3'); a('v_mul_u32_u24 v11, 576, v10'); a('v_lshl_add_u32 v11, v12, 1, v11'); a(f'v_add_u32 v11, {WPR+512}, v11'); a('ds_read_u16 v36, v11')
    a(f'v_add_u32 v12, 256, v12'); a(f'v_subrev_u32 v12, s{sSH}, v12'); a('v_lshlrev_b32 v12, 5, v12'); a('v_lshl_add_u32 v12, v10, 1, v12')
    a('s_waitcnt lgkmcnt(0)')
    a(f'buffer_store_short v36, v12, s[{WS}:{WS+3}], s56 offen sc1')
    a('s_mov_b64 exec, -1')
    a.label(skip)
    a('s_waitcnt vmcnt(0)')
    def pub_u():
        tree_arrive(a, W_H1, W_TOP, W_GO1, 32, 12); a('s_mov_b64 exec, 1')
    lds_arrive(a, C_U, 4, pub_u, 10)
    a('s_setprio 0')
    a('v_lshrrev_b32 v10, 3, v3'); a('v_and_b32 v11, 6, v10'); a('v_and_b32 v12, 7, v3'); a('v_xor_b32 v11, v11, v12'); a('v_lshlrev_b32 v11, 4, v11'); a('v_lshl_add_u32 v13, v10, 10, v11')
    a('s_lshr_b32 s48, s2, 5'); a('s_lshl_b32 s48, s48, 7'); a(f's_lshl_b32 s49, s{sR}, 17'); a('s_add_u32 s48, s48, s49'); a(f's_lshl_b32 s49, s{sR}, 14')
    WOB = int(os.environ.get('WOB', '2'))
    for q in range(16):
        a(f's_add_u32 m0, s49, {WOL + q*1024}'); a(f's_add_u32 s50, s48, {q*8192}')
        a(f'buffer_load_dwordx4 v13, s[{WO}:{WO+3}], s50 offen lds')
        if q % WOB == WOB - 1: a('s_waitcnt vmcnt(0)')
    a('s_waitcnt vmcnt(0)'); lds_add(a, C_WO, 10)
    one_wave(a, 8, lambda: poll_go(a, W_GO1, T), C_H1, T, sleep=4)
    lds_wait(a, C_Q, 4, T)
    stp(a, 'mid', 2); stp(a, 'b2', 1)
    a.label('L_b2')
    a.vm_reset()
    a(f's_lshl_b32 s48, s{sPOS}, 5'); a(f's_mul_i32 s49, s{sR}, {16*BLK}'); a('s_add_u32 s49, s49, s48')
    a(f's_add_u32 s50, s49, {U1}'); a(f's_add_u32 s52, s49, {ZT}')
    a(f's_mul_i32 s51, s{sR}, {64*BLK}'); a('s_add_u32 s51, s51, s48'); a(f's_add_u32 s51, s51, {WT}')
    a.vmem(f'buffer_load_dwordx4 {vr(ARE,4)}, v{VU}, s[{WS}:{WS+3}], s50 offen sc1', 'u'); a.vmem(f'buffer_load_dwordx4 {vr(AIM,4)}, v{VU}, s[{WS}:{WS+3}], s50 offen offset:16 sc1', 'u')
    a.vmem(f'buffer_load_dwordx4 {vr(WR,4)}, v{VW}, s[{WS}:{WS+3}], s51 offen sc1', 'w'); a.vmem(f'buffer_load_dwordx4 {vr(WI,4)}, v{VW}, s[{WS}:{WS+3}], s51 offen offset:16 sc1', 'w')
    acc = lambda nt, c: ACC + 8 * nt + 4 * c
    def cmul(nt, cre, sim, sign):
        for hh in range(2):
            for e in range(2):
                re = acc(nt, 0) + 2 * hh + e; im = acc(nt, 1) + 2 * hh + e; c = cre + 4 * nt + 2 * hh + e; s = sim + 4 * nt + 2 * hh + e
                a(f'v_mul_f32 v{T+e}, v{re}, v{c}'); a(f'v_mul_f32 v{T+2+e}, v{im}, v{c}')
                a(f'v_fma_f32 v{T+e}, ' + ('-' if sign > 0 else '') + f'v{im}, v{s}, v{T+e}')
                a(f'v_fma_f32 v{T+2+e}, ' + ('-' if sign < 0 else '') + f'v{re}, v{s}, v{T+2+e}')
            yield hh
    def group_sync():
        a('s_waitcnt lgkmcnt(0)'); lds_add(a, C_X, 12); a('s_setprio 0'); a(f's_add_u32 s{sXT}, s{sXT}, 4'); lds_wait(a, C_X, f's{sXT}', 12, sleep=1)
        if bp: a(f's_setprio {bp}')
    def twiddle_to_lds(cre, sim, sign, ldsbase):
        a(f'v_add_u32 v14, {ldsbase}, v{VWR}')
        for nt in range(2):
            for hh in cmul(nt, cre, sim, sign):
                a(f'v_cvt_pk_bf16_f32 v{PK+4*nt+hh}, v{T}, v{T+1}'); a(f'v_cvt_pk_bf16_f32 v{PK+4*nt+2+hh}, v{T+2}, v{T+3}')
            a(f'ds_write_b64 v14, {vr(PK+4*nt,2)} offset:{nt*2304}'); a(f'ds_write_b64 v14, {vr(PK+4*nt+2,2)} offset:{4608 + nt*2304}')
    fr = lambda c, nt, kap: FR + 16 * c + 8 * nt + 4 * kap
    def read_frags(ldsbase):
        a(f'v_add_u32 v15, {ldsbase}, v{VRD}')
        for nt in range(2):
            for kap in range(2):
                for c in range(2):
                    a(f'ds_read_b128 {vr(fr(c,nt,kap),4)}, v15 offset:{c*4608 + nt*2304 + kap*64}')
    a.vm_wait('u')
    stp(a, 'mid', 3); stp(a, 'b2', 2)
    if bp: a(f's_setprio {bp}')
    for nt in range(2):
        C, S_, nS = F32[nt]
        a(f'{M16} {vr(acc(nt,0),4)}, {vr(ARE,4)}, {vr(C,4)}, 0'); a(f'{M16} {vr(acc(nt,1),4)}, {vr(AIM,4)}, {vr(C,4)}, 0')
    for nt in range(2):
        C, S_, nS = F32[nt]
        a(f'{M16} {vr(acc(nt,0),4)}, {vr(AIM,4)}, {vr(S_,4)}, {vr(acc(nt,0),4)}'); a(f'{M16} {vr(acc(nt,1),4)}, {vr(ARE,4)}, {vr(nS,4)}, {vr(acc(nt,1),4)}')
    twiddle_to_lds(TW1C, TW1S, -1, BEX0)
    group_sync()
    stp(a, 'b2', 3)
    read_frags(BEX0)
    a('s_waitcnt lgkmcnt(0)')
    for kap in range(2):
        C, S_, nS = F64[kap]
        for nt in range(2):
            a(f'{M16} {vr(acc(nt,0),4)}, {vr(C,4)}, {vr(fr(0,nt,kap),4)}, ' + ('0' if kap == 0 else vr(acc(nt,0),4)))
            a(f'{M16} {vr(acc(nt,1),4)}, {vr(C,4)}, {vr(fr(1,nt,kap),4)}, ' + ('0' if kap == 0 else vr(acc(nt,1),4)))
        for nt in range(2):
            a(f'{M16} {vr(acc(nt,0),4)}, {vr(S_,4)}, {vr(fr(1,nt,kap),4)}, {vr(acc(nt,0),4)}')
            a(f'{M16} {vr(acc(nt,1),4)}, {vr(nS,4)}, {vr(fr(0,nt,kap),4)}, {vr(acc(nt,1),4)}')
    a.vm_wait('w'); a('s_nop 3')
    for q in range(4):
        a(f'v_lshlrev_b32 v{WC+2*q}, 16, v{WR+q}'); a(f'v_and_b32 v{WC+2*q+1}, 0xffff0000, v{WR+q}')
        a(f'v_lshlrev_b32 v{WS_+2*q}, 16, v{WI+q}'); a(f'v_and_b32 v{WS_+2*q+1}, 0xffff0000, v{WI+q}')
    special, joined = L('pk0'), L('pk0j')
    a(f's_cmp_eq_u32 s{sPOS}, 0'); a(f's_cbranch_scc1 {special}')
    twiddle_to_lds(WC, WS_, +1, BEX1)
    a(f's_branch {joined}')
    a.label(special)
    W2 = PK; M = 32
    a('s_add_u32 s51, s51, 8192')
    a(f'buffer_load_dwordx4 {vr(W2,4)}, v{VW}, s[{WS}:{WS+3}], s51 offen sc1'); a(f'buffer_load_dwordx4 {vr(W2+4,4)}, v{VW}, s[{WS}:{WS+3}], s51 offen offset:16 sc1')
    a(f'v_lshlrev_b32 v14, 2, v{I}'); a('v_lshl_add_u32 v14, v2, 11, v14'); a(f'v_lshl_add_u32 v14, v{G}, 9, v14')
    a(f'v_add_u32 v15, {BEX1}, v14')
    a('s_mov_b32 s48, 0x05040100'); a('s_mov_b32 s49, 0x07060302')
    a('s_waitcnt vmcnt(0)')
    for nt in range(2):
        for r in range(4):
            jj = 4 * nt + r; q = jj >> 1; sel = 's49' if jj & 1 else 's48'; off = 64 * nt + 128 * r
            a(f'v_cvt_pk_bf16_f32 v{M}, v{acc(nt,0)+r}, v{acc(nt,1)+r}'); a(f'v_perm_b32 v{M+1}, v{WI+q}, v{WR+q}, {sel}'); a(f'v_perm_b32 v{M+2}, v{W2+4+q}, v{W2+q}, {sel}')
            a(f'ds_write_b32 v15, v{M} offset:{WPR - BEX1 + off}'); a(f'ds_write_b32 v15, v{M+1} offset:{EXC - BEX1 + off}'); a(f'ds_write_b32 v15, v{M+2} offset:{off}')
            a('s_nop 0')
    group_sync()
    for nt in range(2):
        for r in range(4):
            jj = 4 * nt + r; q = jj >> 1; off = 64 * nt + 128 * r
            xr, xi = acc(nt, 0) + r, acc(nt, 1) + r; a0, b0 = WC + jj, WS_ + jj
            a(f'v_sub_u32 v{M}, {8192 - off}, v14'); a(f'v_and_b32 v{M}, 8191, v{M}'); a(f'v_add_u32 v{M}, {BEX1}, v{M}')
            a(f'ds_read_b32 v{M+1}, v{M} offset:{WPR - BEX1}'); a(f'ds_read_b32 v{M+2}, v{M} offset:{EXC - BEX1}'); a(f'ds_read_b32 v{M+3}, v{M}')
            if jj & 1: a(f'v_and_b32 v{M+4}, 0xffff0000, v{W2+q}'); a(f'v_and_b32 v{M+5}, 0xffff0000, v{W2+4+q}')
            else:      a(f'v_lshlrev_b32 v{M+4}, 16, v{W2+q}'); a(f'v_lshlrev_b32 v{M+5}, 16, v{W2+4+q}')
            a('s_waitcnt lgkmcnt(0)')
            a(f'v_lshlrev_b32 v{M+6}, 16, v{M+1}'); a(f'v_and_b32 v{M+7}, 0xffff0000, v{M+1}')
            a(f'v_lshlrev_b32 v{M+8}, 16, v{M+2}'); a(f'v_and_b32 v{M+9}, 0xffff0000, v{M+2}')
            a(f'v_lshlrev_b32 v{M+10}, 16, v{M+3}'); a(f'v_and_b32 v{M+11}, 0xffff0000, v{M+3}')
            a(f'v_add_f32 v{M+8}, v{a0}, v{M+8}'); a(f'v_sub_f32 v{M+9}, v{b0}, v{M+9}')
            a(f'v_add_f32 v{M+10}, v{M+4}, v{M+10}'); a(f'v_sub_f32 v{M+11}, v{M+5}, v{M+11}')
            a(f'v_add_f32 v{M+1}, v{M+8}, v{M+10}'); a(f'v_add_f32 v{M+2}, v{M+9}, v{M+11}')
            a(f'v_sub_f32 v{M+3}, v{M+8}, v{M+10}'); a(f'v_sub_f32 v{M+4}, v{M+9}, v{M+11}')
            a(f'v_mul_f32 v{M+8}, v{M+1}, v{xr}'); a(f'v_mul_f32 v{M+9}, v{M+1}, v{xi}')
            a(f'v_fma_f32 v{M+8}, -v{M+2}, v{xi}, v{M+8}'); a(f'v_fma_f32 v{M+9}, v{M+2}, v{xr}, v{M+9}')
            a(f'v_fma_f32 v{M+8}, v{M+3}, v{M+6}, v{M+8}'); a(f'v_fma_f32 v{M+9}, v{M+4}, v{M+6}, v{M+9}')
            a(f'v_fma_f32 v{M+8}, v{M+4}, v{M+7}, v{M+8}'); a(f'v_fma_f32 v{M+9}, -v{M+3}, v{M+7}, v{M+9}')
            a(f'v_mul_f32 v{xr}, {fl(0.125)}, v{M+8}'); a(f'v_mul_f32 v{xi}, {fl(0.125)}, v{M+9}')
    group_sync()
    a(f'v_add_u32 v14, {BEX1}, v{VWR}')
    for nt in range(2):
        for hh in range(2):
            a(f'v_cvt_pk_bf16_f32 v{PK+4*nt+hh}, v{acc(nt,0)+2*hh}, v{acc(nt,0)+2*hh+1}'); a(f'v_cvt_pk_bf16_f32 v{PK+4*nt+2+hh}, v{acc(nt,1)+2*hh}, v{acc(nt,1)+2*hh+1}')
        a(f'ds_write_b64 v14, {vr(PK+4*nt,2)} offset:{nt*2304}'); a(f'ds_write_b64 v14, {vr(PK+4*nt+2,2)} offset:{4608 + nt*2304}')
    a.label(joined)
    group_sync()
    stp(a, 'b2', 4)
    read_frags(BEX1)
    a('s_waitcnt lgkmcnt(0)')
    for kap in range(2):
        C, S_, nS = F64[kap]
        for nt in range(2):
            a(f'{M16} {vr(acc(nt,0),4)}, {vr(fr(0,nt,kap),4)}, {vr(C,4)}, ' + ('0' if kap == 0 else vr(acc(nt,0),4)))
            a(f'{M16} {vr(acc(nt,1),4)}, {vr(fr(1,nt,kap),4)}, {vr(C,4)}, ' + ('0' if kap == 0 else vr(acc(nt,1),4)))
        for nt in range(2):
            a(f'{M16} {vr(acc(nt,0),4)}, {vr(fr(1,nt,kap),4)}, {vr(nS,4)}, {vr(acc(nt,0),4)}')
            a(f'{M16} {vr(acc(nt,1),4)}, {vr(fr(0,nt,kap),4)}, {vr(S_,4)}, {vr(acc(nt,1),4)}')
    RRE, RIM = ARE, AIM
    for nt in range(2):
        for hh in cmul(nt, TW2C, TW2S, +1):
            a(f'v_cvt_pk_bf16_f32 v{RRE+2*nt+hh}, v{T}, v{T+1}'); a(f'v_cvt_pk_bf16_f32 v{RIM+2*nt+hh}, v{T+2}, v{T+3}')
    for mt in range(2):
        C, S_, nS = F32[mt]
        a(f'{M16} {vr(acc(mt,0),4)}, {vr(C,4)}, {vr(RRE,4)}, 0'); a(f'{M16} {vr(acc(mt,1),4)}, {vr(C,4)}, {vr(RIM,4)}, 0')
    for mt in range(2):
        C, S_, nS = F32[mt]
        a(f'{M16} {vr(acc(mt,0),4)}, {vr(nS,4)}, {vr(RIM,4)}, {vr(acc(mt,0),4)}'); a(f'{M16} {vr(acc(mt,1),4)}, {vr(S_,4)}, {vr(RRE,4)}, {vr(acc(mt,1),4)}')
    for c in range(2):
        for mt in range(2):
            for hh in range(2):
                a(f'v_cvt_pk_bf16_f32 v{PK+4*c+2*mt+hh}, v{acc(mt,c)+2*hh}, v{acc(mt,c)+2*hh+1}')
    a('s_setprio 0')
    a(f'buffer_store_dwordx4 {vr(PK,4)}, v{VU}, s[{WS}:{WS+3}], s52 offen sc1'); a(f'buffer_store_dwordx4 {vr(PK+4,4)}, v{VU}, s[{WS}:{WS+3}], s52 offen offset:16 sc1')
    a('s_waitcnt vmcnt(0)')
    stp(a, 'b2', 5)
    def pub_z():
        tree_arrive(a, W_H3, W_TOP + 128, W_GO3, 32, 12); a('s_mov_b64 exec, 1')
    lds_arrive(a, C_H3, 4, pub_z, 10, mod4=True)
    stp(a, 'main', 3); stp(a, 'b2', 6)

AQ, AKB, AVB, AS, AO, AP, AE, AvV, AT0, AvC, AvOne, AvF, AvR = 4, (8, 12), (16, 24), (32, 48), 64, 80, 88, 94, 95, 96, 97, 98, 99
sK, sV, sC, sLK, sLV, sBIG, sVM, sKM, sIT, sEP = 48, 49, 50, 51, 52, 58, 60, 62, 64, 65
def att_ids(a):
    a('s_and_b32 s60, s2, 7'); a('s_lshl_b32 s60, s60, 2'); a('s_bfe_u32 s61, s2, 0x20003'); a('s_add_u32 s60, s60, s61')
    a('s_lshr_b32 s61, s2, 5'); a('s_lshl_b32 s61, s61, 3'); a(f's_add_u32 s61, s61, s{sW}')
    a('s_lshl_b32 s53, s60, 16')
    a(f's_lshr_b32 s62, s{sW}, 1'); a(f's_and_b32 s63, s{sW}, 1')
    a(f's_lshl_b32 s{sLK}, s62, 10'); a('s_lshl_b32 s64, s63, 9'); a(f's_add_u32 s{sLK}, s{sLK}, s64')
    a(f's_lshl_b32 s{sLV}, s62, 11'); a('s_lshl_b32 s64, s63, 10'); a(f's_add_u32 s{sLV}, s{sLV}, s64'); a(f's_add_u32 s{sLV}, s{sLV}, {RING + 4096}')
    a(f's_add_u32 s{sK}, s53, s{sLK}'); a(f's_add_u32 s{sV}, s{sK}, {VF}'); a(f's_add_u32 s{sK}, s{sK}, {KF}'); a(f's_add_u32 s{sLK}, s{sLK}, {RING}')
    a('s_lshl_b32 s64, s61, 10'); a('s_add_u32 s54, s53, s64'); a(f's_add_u32 s54, s54, {QF}')
    a('s_lshl_b32 s64, s61, 15'); a('s_lshl_b32 s65, s60, 10'); a('s_add_u32 s55, s64, s65'); a(f's_add_u32 s55, s55, {OF}')
    a('s_lshr_b32 s64, s60, 2'); a('s_lshl_b32 s64, s64, 7'); a(f's_add_u32 s56, s64, {FQ}')
    a('s_lshr_b32 s64, s2, 5'); a('s_lshl_b32 s64, s64, 7'); a('s_lshl_b32 s65, s60, 2'); a('s_add_u32 s57, s64, s65'); a(f's_add_u32 s57, s57, {FO}')
    a(f's_mov_b32 s{sBIG}, 0x7ff00000'); a(f's_mov_b32 s{sVM}, 0xffff'); a(f's_mov_b32 s{sVM+1}, 0xffff'); a(f's_mov_b32 s{sKM}, -1'); a(f's_mov_b32 s{sKM+1}, 0')
    a(f's_mov_b32 s{sC}, 0')
def att_dma(slot, guard):
    SC = '' if 'nosc1' in DG else ' sc1'
    Ls = []; ko, vo = f's{sK}', f's{sV}'
    if guard:
        Ls += [f's_cmp_lt_u32 s{sC}, 16', f's_cselect_b32 s66, s{sK}, s{sBIG}', f's_cselect_b32 s67, s{sV}, s{sBIG}']; ko, vo = 's66', 's67'
    Ls += [f's_add_u32 s68, s{sLV}, {slot*SLOTB}',
           [f's_add_u32 m0, s{sLK}, {slot*SLOTB}', f's_mov_b64 exec, s[{sKM}:{sKM+1}]', f'buffer_load_dwordx4 v1, s[{WS}:{WS+3}], {ko} offen{SC} lds',
            's_mov_b32 m0, s68', f's_mov_b64 exec, s[{sVM}:{sVM+1}]', f'buffer_load_dwordx4 v{AvV}, s[{WS}:{WS+3}], {vo} offen{SC} lds', 's_mov_b64 exec, -1'],
           f's_add_u32 s{sK}, s{sK}, 4096', f's_add_u32 s{sV}, s{sV}, 4096', f's_add_u32 s{sC}, s{sC}, 1']
    return Ls

def gen_attention(a):
    Q, KB, VB, S, O, P, E, vV, T0, vC, vOne, vF, vR = AQ, AKB, AVB, AS, AO, AP, AE, AvV, AT0, AvC, AvOne, AvF, AvR
    a.label('L_att_entry')
    att_ids(a)
    a(f'v_lshrrev_b32 v{vV}, 5, v3'); a(f'v_lshlrev_b32 v{vV}, 8, v{vV}'); a(f'v_and_b32 v{T0}, 15, v3'); a(f'v_lshl_add_u32 v{vV}, v{T0}, 4, v{vV}')
    a(f'v_and_b32 v{T0}, 27, v3'); a(f'v_cmp_eq_u32 vcc, 16, v{T0}'); a(f'v_mov_b32 v{E}, 0x3f803f80'); a(f'v_cndmask_b32 v100, 0, v{E}, vcc')
    for i in range(1, 4): a(f'v_mov_b32 v{100+i}, v100')
    a(f'v_add_u32 v{T0}, s{sLV}, v1')
    a(f's_not_b64 exec, s[{sVM}:{sVM+1}]')
    for slot in range(2): a(f'ds_write_b128 v{T0}, v[100:103] offset:{slot*SLOTB}')
    a('s_mov_b64 exec, -1')
    a(f'v_mov_b32 v{vC}, {C_ATT}'); a(f'v_mov_b32 v{vOne}, 1'); a(f's_mov_b32 s{sEP}, 0'); a(f'v_add_u32 v{vR}, {RING}, v1')
    for i in range(8): a(f'v_mov_b32 v{VB[1]+i}, 0')
    for i in range(16): a(f'v_mov_b32 v{O+i}, 0')
    for i in range(8): a(f'v_mov_b32 v{P+i}, 0')
    for i in range(6): a(f'v_mov_b32 v{E+i}, 0')
    one_wave(a, 0, lambda: poll_flags(a, 's56', 32, 104, 105), C_FQ, 104)
    stp(a, 'mid', 4); stp(a, 'ent', 1)
    emit(a, att_dma(0, False))
    a(f'buffer_load_dwordx4 {vr(Q,4)}, v1, s[{WS}:{WS+3}], s54 offen' + ('' if 'nosc1' in DG else ' sc1'))
    emit(a, att_dma(1, False))
    stp(a, 'ent', 2)
    a('s_waitcnt vmcnt(2) lgkmcnt(0)')
    stp(a, 'ent', 3)
    lds_add(a, C_A0, 104); lds_wait(a, C_A0, 8, 104)
    stp(a, 'mid', 5); stp(a, 'ent', 4)
    emit(a, att_dma(2, False))
    a(f's_not_b64 exec, s[{sVM}:{sVM+1}]')
    for slot in range(2, 4): a(f'ds_write_b128 v{T0}, v[100:103] offset:{slot*SLOTB}')
    a('s_mov_b64 exec, -1')
    rdK = lambda t, buf: f'ds_read_b128 {vr(KB[buf],4)}, v{vR} offset:{((t>>2)&3)*SLOTB + (t&3)*1024}'
    rdV = lambda t, buf, j2: f'ds_read_b128 {vr(VB[buf]+4*j2,4)}, v{vR} offset:{((t>>2)&3)*SLOTB + 4096 + (t&3)*2048 + j2*1024}'
    a(rdK(0, 0)); a(rdV(0, 0, 0)); a(rdV(0, 0, 1)); a(rdK(1, 1))
    a('s_waitcnt lgkmcnt(3)')
    a(f'{M32} {vr(S[0],16)}, {vr(KB[0],4)}, {vr(Q,4)}, 0')
    a('s_nop 7'); a('s_nop 3')
    stp(a, 'main', 4); stp(a, 'mid', 6); stp(a, 'ent', 5)
    def body(t, first):
        cur = t & 1; nxt = cur ^ 1; s = S[cur]
        q = [rdK(t + 2, cur), rdV(t + 1, nxt, 0), rdV(t + 1, nxt, 1)]
        pre = [f's_setprio {3 - ((t + 2) & 3)}', 's_waitcnt lgkmcnt(0)']
        if t % 4 == 0:
            w = ['s_waitcnt vmcnt(2)']
            q = q + [w, ['s_mov_b64 exec, 1', f'ds_add_u32 v{vC}, v{vOne}', 's_mov_b64 exec, -1'], f's_add_u32 s{sEP}, s{sEP}, 8']
        if t % 4 == 1:
            q = q + [f'ds_read_b32 v{vF}, v{vC}']
        if t % 4 == 2:
            lab = L('spin'); ok = L('go')
            pre = pre + [f'v_readfirstlane_b32 s70, v{vF}', f's_cmp_ge_u32 s70, s{sEP}', f's_cbranch_scc1 {ok}', f'{lab}:',
                         f's_add_u32 s{sSPIN}, s{sSPIN}, 1', f's_cmp_gt_u32 s{sSPIN}, {SPIN_MAX}', f's_cbranch_scc1 {ok}',
                         f'ds_read_b32 v{vF}, v{vC}', 's_waitcnt lgkmcnt(0)',
                         f'v_readfirstlane_b32 s70, v{vF}', f's_cmp_ge_u32 s70, s{sEP}', f's_cbranch_scc0 {lab}', f'{ok}:']
            q = q + att_dma(((t + 2) // 4 + 2) % 4, not first)
        def e(i):
            a(f'v_exp_f32 v{E + i % 6}, v{s+i}')
            if i >= 3 and q:
                x = q.pop(0); emit(a, [x])
        c = lambda i: a(f'v_cvt_pk_bf16_f32 v{P+i}, v{E + (2*i) % 6}, v{E + (2*i+1) % 6}')
        emit(a, pre)
        a(f'{M32} {vr(S[nxt],16)}, {vr(KB[nxt],4)}, {vr(Q,4)}, 0')
        c(7)
        e(0); e(1); e(2)
        a(f'{M32} {vr(O,16)}, {vr(VB[nxt]+4,4)}, {vr(P+4,4)}, {vr(O,16)}')
        e(3); c(0); e(4); c(1); e(5); e(6); c(2); e(7); e(8); c(3); e(9); e(10)
        a(f'{M32} {vr(O,16)}, {vr(VB[cur],4)}, {vr(P,4)}, {vr(O,16)}')
        c(4); e(11); e(12); c(5); e(13); e(14); c(6); e(15)
        emit(a, q)
    stp(a, 'att', 1); stp(a, 'att2', 1)
    for t in range(16):
        body(t, True)
        if t in (3, 7, 11): stp(a, 'att', 2 + t // 4)
    stp(a, 'att', 5); stp(a, 'att2', 2)
    if SSET == 'att2':
        for it in range(3):
            for t in range(16):
                body(t, False)
                if t == 7 and it < 2: stp(a, 'att2', 3 + 2 * it)
            if it < 2: stp(a, 'att2', 4 + 2 * it)
    else:
        a(f's_mov_b32 s{sIT}, 3')
        a.label('L_att_loop')
        start = len(a.lines)
        for t in range(16): body(t, False)
        tail = [f's_sub_u32 s{sIT}, s{sIT}, 1', f's_cmp_lg_u32 s{sIT}, 0', 's_cbranch_scc1 L_att_loop']
        bodyl = a.lines[start:]
        emit(a, tail)
        extra = check_loop(bodyl + tail)
        assert extra == 0, extra
    stp(a, 'main', 5); stp(a, 'att', 6); stp(a, 'tail', 1)
    a('s_setprio 0')
    lds_add(a, C_DONE, 104)
    a(f'v_cvt_pk_bf16_f32 v{P+7}, v{E + 14 % 6}, v{E + 15 % 6}'); a('s_nop 1')
    a(f'{M32} {vr(O,16)}, {vr(VB[1]+4,4)}, {vr(P+4,4)}, {vr(O,16)}')
    a('s_waitcnt vmcnt(0) lgkmcnt(0)')
    a('s_nop 7'); a('s_nop 3')
    o = O
    a(f'v_mul_f32 v{T0}, 0, v{o}')
    for i in range(1, 8): a(f'v_fma_f32 v{T0}, v{o+i}, 0, v{T0}')
    a(f'v_cmp_eq_f32 s[66:67], 0, v{T0}')
    a(f'v_mov_b32 v{E}, 0x21800000'); a(f'v_cmp_le_f32 s[68:69], v{E}, v{o+8}')
    a('s_nop 1'); a('s_and_b64 s[66:67], s[66:67], s[68:69]')
    a(f'v_mov_b32 v{E}, 0x5d800000'); a(f'v_cmp_ge_f32 s[68:69], v{E}, v{o+8}')
    a('s_nop 1'); a('s_and_b64 s[66:67], s[66:67], s[68:69]')
    a('s_cmp_eq_u64 s[66:67], -1'); a('s_cbranch_scc0 L_att_fallback')
    a.label('L_att_fin')
    a(f'v_rcp_f32 v{T0}, v{o+8}')
    for i in range(8): a(f'v_mul_f32 v{o+i}, v{o+i}, v{T0}')
    for i in range(4): a(f'v_cvt_pk_bf16_f32 v{P+i}, v{o+2*i}, v{o+2*i+1}')
    a(f'buffer_store_dwordx4 {vr(P,4)}, v1, s[{WS}:{WS+3}], s55 offen sc1')
    stp(a, 'tail', 2)
    a('s_waitcnt vmcnt(0)')
    stp(a, 'tail', 3)
    def pub_o():
        a('v_mov_b32 v6, 0'); a(f'v_mov_b32 v7, s{sTOK}'); a(f'buffer_store_dword v7, v6, s[{WS}:{WS+3}], s57 offen sc1')
    lds_arrive(a, C_O, 8, pub_o, 8)
    stp(a, 'tail', 4)
def gen_fallback(a):
    Q, KB, VB, S, O, P, E, vV = AQ, AKB, AVB, AS, AO, AP, AE, AvV
    q = Q; m = E; o = O
    a.label('L_att_fallback')
    a('s_nop 7'); a('s_nop 7')
    a(f's_add_u32 s66, s53, {KF}'); a(f's_add_u32 s67, s53, {VF}')
    a(f'v_mov_b32 v{m}, 0xff800000')
    a(f's_mov_b32 s{sIT}, 64'); a('s_mov_b32 s68, s66')
    a.label('L_fb_max')
    a(f'buffer_load_dwordx4 {vr(KB[0],4)}, v1, s[{WS}:{WS+3}], s68 offen sc1'); a('s_waitcnt vmcnt(0)')
    a(f'{M32} {vr(S[0],16)}, {vr(KB[0],4)}, {vr(q,4)}, 0')
    a('s_nop 7'); a('s_nop 7')
    for i in range(8): a(f'v_max3_f32 v{m}, v{m}, v{S[0]+2*i}, v{S[0]+2*i+1}')
    a('s_add_u32 s68, s68, 1024'); a(f's_sub_u32 s{sIT}, s{sIT}, 1'); a(f's_cmp_lg_u32 s{sIT}, 0'); a('s_cbranch_scc1 L_fb_max')
    a(f'v_mov_b32 v{m+1}, v{m}'); a('s_nop 1'); a(f'v_permlane32_swap_b32 v{m}, v{m+1}'); a('s_nop 1'); a(f'v_max_f32 v{m}, v{m}, v{m+1}')
    for i in range(16): a(f'v_sub_f32 v{S[1]+i}, 0, v{m}')
    for i in range(16): a(f'v_mov_b32 v{o+i}, 0')
    a(f'v_and_b32 v{m}, 27, v3'); a(f'v_cmp_eq_u32 vcc, 16, v{m}'); a(f'v_mov_b32 v{m+1}, 0x3f803f80'); a('s_nop 1'); a(f'v_cndmask_b32 v{m}, 0, v{m+1}, vcc')
    for i in range(8): a(f'v_mov_b32 v{VB[0]+i}, v{m}')
    a(f's_mov_b32 s{sIT}, 64')
    a.label('L_fb_pv')
    a(f'buffer_load_dwordx4 {vr(KB[0],4)}, v1, s[{WS}:{WS+3}], s66 offen sc1')
    a(f's_mov_b64 exec, s[{sVM}:{sVM+1}]')
    a(f'buffer_load_dwordx4 {vr(VB[0],4)}, v{vV}, s[{WS}:{WS+3}], s67 offen sc1'); a(f'buffer_load_dwordx4 {vr(VB[0]+4,4)}, v{vV}, s[{WS}:{WS+3}], s67 offen offset:512 sc1')
    a('s_mov_b64 exec, -1')
    a('s_waitcnt vmcnt(0)'); a('s_nop 7')
    a(f'{M32} {vr(S[0],16)}, {vr(KB[0],4)}, {vr(q,4)}, {vr(S[1],16)}')
    a('s_nop 7'); a('s_nop 7')
    for i in range(16): a(f'v_exp_f32 v{S[0]+i}, v{S[0]+i}')
    a('s_nop 1')
    for i in range(8): a(f'v_cvt_pk_bf16_f32 v{P+i}, v{S[0]+2*i}, v{S[0]+2*i+1}')
    a('s_nop 1')
    a(f'{M32} {vr(o,16)}, {vr(VB[0],4)}, {vr(P,4)}, {vr(o,16)}'); a(f'{M32} {vr(o,16)}, {vr(VB[0]+4,4)}, {vr(P+4,4)}, {vr(o,16)}')
    a('s_nop 7'); a('s_nop 7')
    a('s_add_u32 s66, s66, 1024'); a('s_add_u32 s67, s67, 1024'); a(f's_sub_u32 s{sIT}, s{sIT}, 1'); a(f's_cmp_lg_u32 s{sIT}, 0'); a('s_cbranch_scc1 L_fb_pv')
    a('s_nop 7'); a('s_nop 7')
    a('s_branch L_att_fin')

def phase3_A(a):
    a.vm_reset()
    a('s_and_b32 s48, s2, 7'); a('s_lshr_b32 s49, s2, 3'); a('s_lshl_b32 s50, s48, 2'); a('s_and_b32 s51, s49, 3'); a('s_add_u32 s50, s50, s51')
    a('s_lshr_b32 s51, s49, 2')
    a('s_lshl_b32 s52, s48, 7'); a(f's_add_u32 s52, s52, {FO}')
    a('v_lshrrev_b32 v7, 5, v3'); a('v_lshlrev_b32 v7, 10, v7'); a('v_bfe_u32 v8, v3, 4, 1'); a('v_lshlrev_b32 v8, 9, v8'); a('v_and_b32 v9, 15, v3'); a('v_lshlrev_b32 v9, 4, v9')
    a('v_add3_u32 v6, v7, v8, v9'); a('v_and_b32 v7, 1, v2'); a('v_lshl_add_u32 v6, v7, 8, v6')
    a('s_lshl_b32 s53, s50, 1'); a(f's_lshr_b32 s54, s{sR}, 1'); a('s_add_u32 s53, s53, s54'); a('s_lshl_b32 s53, s53, 15'); a(f's_add_u32 s53, s53, {OF}')
    a('v_lshrrev_b32 v7, 5, v3'); a('v_lshlrev_b32 v7, 4, v7'); a('v_bfe_u32 v8, v3, 4, 1'); a('v_lshl_add_u32 v7, v8, 2, v7'); a('v_bfe_u32 v9, v3, 2, 2'); a('v_add_u32 v7, v7, v9')
    a('v_lshlrev_b32 v7, 7, v7'); a('v_and_b32 v9, 2, v9'); a('v_lshl_add_u32 v9, v8, 2, v9')
    a('v_bfe_u32 v8, v3, 1, 1'); a('v_lshl_add_u32 v7, v8, 4, v7'); a('v_and_b32 v8, 1, v3'); a('v_lshl_add_u32 v7, v8, 3, v7')
    for nt in range(4):
        a(f'v_xor_b32 v8, {2*nt}, v9'); a(f'v_lshl_add_u32 v{11+nt}, v8, 4, v7')
    OFR = 16; ACC = 80; WF = (96, 112)
    def reads(ks, buf):
        for nt in range(4):
            for rho in range(2):
                a(f'ds_read_b64_tr_b16 {vr(WF[buf]+4*nt+2*rho,2)}, v{11+nt} offset:{WOL + ks*4096 + rho*1024}')
    if 'nob2' in DG: finish(a)
    lds_wait(a, C_WO, 4, 8, sleep=1)
    reads(0, 0)
    one_wave(a, 0, lambda: poll_flags(a, 's52', 32, 8, 9), C_FO, 8)
    stp(a, 'tail', 5)
    stp(a, 'main', 6)
    a.vm_reset()
    for ks in range(16):
        if ks % 2 == 0: a(f's_add_u32 s54, s53, {(ks>>1)*4096}')
        a.vmem(f'buffer_load_dwordx4 {vr(OFR+4*ks,4)}, v6, s[{WS}:{WS+3}], s54 offen offset:{(ks&1)*2048} sc1', f'o{ks}')
    a('v_and_b32 v7, 15, v3'); a('v_lshlrev_b32 v7, 11, v7'); a('v_lshrrev_b32 v8, 4, v3'); a('v_lshl_add_u32 v7, v8, 3, v7')
    a('s_lshl_b32 s53, s50, 6'); a(f's_lshl_b32 s54, s{sR}, 4'); a('s_add_u32 s53, s53, s54'); a('s_lshl_b32 s53, s53, 11'); a('s_lshl_b32 s54, s51, 7'); a('s_add_u32 s53, s53, s54')
    for ks in range(16):
        buf = ks & 1
        if ks < 15: reads(ks + 1, buf ^ 1); a('s_waitcnt lgkmcnt(8)')
        else: a('s_waitcnt lgkmcnt(0)')
        a.vm_wait(f'o{ks}')
        for nt in range(4):
            a(f'{M16} {vr(ACC+4*nt,4)}, {vr(WF[buf]+4*nt,4)}, {vr(OFR+4*ks,4)}, ' + ('0' if ks == 0 else vr(ACC+4*nt,4)))
    stp(a, 'tail', 6)
    for nt in range(4):
        a(f'v_cvt_pk_bf16_f32 v{96+2*nt}, v{ACC+4*nt}, v{ACC+4*nt+1}'); a(f'v_cvt_pk_bf16_f32 v{97+2*nt}, v{ACC+4*nt+2}, v{ACC+4*nt+3}')
        a(f'buffer_store_dwordx2 {vr(96+2*nt,2)}, v7, s[{OUT}:{OUT+3}], s53 offen offset:{nt*32}')
    finish(a)

def phase3_B(a):
    a.vm_reset()
    one_wave(a, 8, lambda: poll_go(a, W_GO3, 4, sleep=8), C_H3W, 4, sleep=8)
    stp(a, 'tail', 5)
    stp(a, 'main', 6)
    a(f's_mul_i32 s48, s2, {BLK}'); a(f's_add_u32 s48, s48, {ZT}'); a(f's_lshl_b32 s49, s{sR}, 11'); a('s_add_u32 s50, s48, s49')
    a(f's_add_u32 m0, s49, {ZL}'); a('s_add_u32 s51, s50, 1024')
    a(f'buffer_load_dwordx4 v1, s[{WS}:{WS+3}], s50 offen sc1 lds')
    a(f's_add_u32 m0, s49, {ZL + 1024}'); a('s_nop 0')
    a(f'buffer_load_dwordx4 v1, s[{WS}:{WS+3}], s51 offen sc1 lds')
    A0, A1, B1T, B2T, TWC, TWS, DRE, DIM, PK, RAW = 16, 20, 32, 48, 64, 80, 96, 112, 128, 24
    lds_wait(a, C_DONE, 8, 8, sleep=16)
    stp(a, 'main', 5)
    T = 12
    a('v_and_b32 v8, 15, v3'); a('v_cvt_f32_u32 v8, v8'); a('v_lshrrev_b32 v9, 5, v3'); a('v_cvt_f32_u32 v9, v9')
    a('v_and_b32 v10, 31, v3'); a('v_cvt_f32_u32 v10, v10')
    a('v_bfe_u32 v11, v3, 4, 1'); a('v_cmp_eq_u32 vcc, 0, v11'); a('v_cndmask_b32 v20, 0, -1, vcc'); a('v_not_b32 v21, v20')
    sc = fl(2.0 ** -19)
    a(f'v_mul_f32 v18, {fl(1/16)}, v8'); a('v_mul_f32 v19, 4.0, v9'); a('v_mul_f32 v19, v19, v18')
    for q in range(4):
        a(f'v_mov_b32 v{T}, {fl(q)}'); a(f'v_fma_f32 v{T}, v18, v{T}, v19'); trig_pair(a, T, T + 1, T + 2)
        a(f'v_mul_f32 v{T+1}, {sc}, v{T+1}'); a(f'v_mul_f32 v{T+2}, {sc}, v{T+2}')
        a(f'v_cvt_pk_bf16_f32 v{T+3}, v{T+1}, -v{T+2}'); a(f'v_cvt_pk_bf16_f32 v{T+4}, v{T+2}, v{T+1}')
        a(f'v_and_b32 v{B1T+q}, v{T+3}, v20'); a(f'v_and_b32 v{B1T+4+q}, v{T+3}, v21'); a(f'v_and_b32 v{B1T+8+q}, v{T+4}, v20'); a(f'v_and_b32 v{B1T+12+q}, v{T+4}, v21')
    a(f'v_mul_f32 v18, {fl(1/32)}, v10'); a('v_mul_f32 v19, 4.0, v9'); a('v_mul_f32 v22, v19, v18')
    for kap in range(2):
        for p in range(4):
            for e in range(2):
                j2 = 2 * p + e; cj = 16 * kap + 8 * (j2 >> 2) + (j2 & 3)
                a(f'v_mov_b32 v{T+e}, {fl(cj)}'); a(f'v_fma_f32 v{T+e}, v18, v{T+e}, v22'); trig_pair(a, T + e, T + 2 + e, T + 4 + e)
            a(f'v_cvt_pk_bf16_f32 v{B2T+4*kap+p}, v{T+2}, v{T+3}'); a(f'v_cvt_pk_bf16_f32 v{B2T+8+4*kap+p}, -v{T+4}, -v{T+5}')
    a(f'v_mul_f32 v18, {fl(1/512)}, v8'); a('v_mul_f32 v22, v19, v18')
    for rho in range(16):
        a(f'v_mov_b32 v{T}, {fl(8*(rho>>2) + (rho&3))}'); a(f'v_fma_f32 v{T}, v18, v{T}, v22'); trig_pair(a, T, TWC + rho, TWS + rho)
    a('v_and_b32 v5, 31, v3'); a('v_lshlrev_b32 v5, 5, v5'); a('v_lshrrev_b32 v6, 5, v3'); a('v_lshl_add_u32 v5, v6, 12, v5'); a('v_lshl_add_u32 v5, v2, 2, v5'); a(f'v_add_u32 v5, {ZL}, v5')
    a('v_lshlrev_b32 v6, 2, v2'); a(f'v_add_u32 v6, {ZL + 16}, v6')
    a('v_and_b32 v8, 1, v3'); a('v_lshlrev_b32 v8, 31, v8'); a('v_or_b32 v8, 0x36000000, v8'); a('v_cmp_gt_u32 vcc, 32, v3'); a('v_cndmask_b32 v7, 0, v8, vcc')
    a('s_waitcnt vmcnt(0) lgkmcnt(0)')
    lds_arrive(a, C_Z, 4, lambda: None, 12); lds_wait(a, C_Z, 4, 12)
    for jj in range(8): a(f'ds_read_b32 v{RAW+jj}, v5 offset:{(jj>>1)*1024 + (jj&1)*16}')
    a('ds_read_b32 v9, v6')
    a('s_mov_b32 s48, 0x05040100'); a('s_mov_b32 s49, 0x07060302')
    a('s_waitcnt lgkmcnt(0)')
    for q in range(4):
        a(f'v_perm_b32 v{A0+q}, v{RAW+2*q+1}, v{RAW+2*q}, s48'); a(f'v_perm_b32 v{A1+q}, v{RAW+2*q+1}, v{RAW+2*q}, s49')
    a('v_lshlrev_b32 v10, 16, v9'); a('v_and_b32 v9, 0xffff0000, v9'); a('v_bfe_u32 v8, v3, 4, 1'); a('v_cmp_eq_u32 vcc, 0, v8'); a('v_cndmask_b32 v9, v9, v10, vcc')
    a(f'{M32} {vr(DRE,16)}, {vr(A0,4)}, {vr(B1T,4)}, 0'); a(f'{M32} {vr(DIM,16)}, {vr(A0,4)}, {vr(B1T+8,4)}, 0')
    a(f'{M32} {vr(DRE,16)}, {vr(A1,4)}, {vr(B1T+4,4)}, {vr(DRE,16)}'); a(f'{M32} {vr(DIM,16)}, {vr(A1,4)}, {vr(B1T+12,4)}, {vr(DIM,16)}')
    a(f'v_fma_f32 v{DRE}, v9, v7, v{DRE}')
    n1 = ' neg_lo:[0,1,0] neg_hi:[0,1,0]'
    for p in range(8):
        re = vr(DRE + 2 * p, 2); im = vr(DIM + 2 * p, 2); c = vr(TWC + 2 * p, 2); s = vr(TWS + 2 * p, 2)
        a(f'v_pk_mul_f32 v[16:17], {re}, {c}'); a(f'v_pk_mul_f32 v[18:19], {im}, {c}')
        a(f'v_pk_fma_f32 v[16:17], {im}, {s}, v[16:17]' + n1); a(f'v_pk_fma_f32 v[18:19], {re}, {s}, v[18:19]')
        a(f'v_cvt_pk_bf16_f32 v{PK+p}, v16, v17'); a(f'v_cvt_pk_bf16_f32 v{PK+8+p}, v18, v19')
    a(f'{M32} {vr(DRE,16)}, {vr(PK,4)}, {vr(B2T,4)}, 0'); a(f'{M32} {vr(DRE,16)}, {vr(PK+4,4)}, {vr(B2T+4,4)}, {vr(DRE,16)}')
    a(f'{M32} {vr(DRE,16)}, {vr(PK+8,4)}, {vr(B2T+8,4)}, {vr(DRE,16)}'); a(f'{M32} {vr(DRE,16)}, {vr(PK+12,4)}, {vr(B2T+12,4)}, {vr(DRE,16)}')
    a('v_and_b32 v7, 31, v3'); a('v_lshlrev_b32 v7, 5, v7'); a('v_lshrrev_b32 v8, 5, v3'); a('v_lshl_add_u32 v5, v8, 4, v7')
    a('s_lshr_b32 s48, s2, 6'); a('s_lshl_b32 s48, s48, 2'); a(f's_and_b32 s49, s{sR}, 1'); a('s_lshl_b32 s49, s49, 1')
    a(f's_lshr_b32 s50, s{sR}, 1'); a('s_lshl_b32 s50, s50, 4'); a('s_add_u32 s48, s48, s49'); a('s_add_u32 s48, s48, s50')
    a('s_lshl_b32 s48, s48, 6'); a('s_and_b32 s49, s2, 63'); a('s_add_u32 s48, s48, s49'); a('s_lshl_b32 s48, s48, 11'); a('s_add_u32 s48, s48, 1024')
    a(f's_add_u32 s49, s48, {64*2048}')
    for r in range(2):
        for p in range(4): a(f'v_cvt_pk_bf16_f32 v{PK+4*r+p}, v{DRE+8*r+2*p}, v{DRE+8*r+2*p+1}')
        a(f'v_permlane32_swap_b32 v{PK+4*r}, v{PK+4*r+2}'); a(f'v_permlane32_swap_b32 v{PK+4*r+1}, v{PK+4*r+3}')
    a(f'buffer_store_dwordx4 {vr(PK,4)}, v5, s[{OUT}:{OUT+3}], s48 offen'); a(f'buffer_store_dwordx4 {vr(PK+4,4)}, v5, s[{OUT}:{OUT+3}], s49 offen')
    finish(a)

def gen_fused():
    a = Asm()
    prologue(a)
    phase1_A(a)
    a('s_branch L_att_entry')
    phase1_C(a)
    gen_attention(a)
    skip = L('cend')
    a(f's_cmp_lt_u32 s{sW}, 4'); a(f's_cbranch_scc1 {skip}')
    finish(a)
    a.label(skip)
    phase3_A(a)
    phase1_B(a)
    gen_b2(a)
    phase3_B(a)
    gen_fallback(a)
    a.label('L_end'); a('s_endpgm')
    a.label('L_code_end')
    return a
```

```python
import os, struct
from asmlib import *
from maps import *
DG = os.environ.get('DG', '').split(',')
UPTO = os.environ.get('UPTO', 'all')
M32 = 'v_mfma_f32_32x32x16_bf16'; M16 = 'v_mfma_f32_16x16x32_bf16'
QSCALE = 0x3eb8aa3b
SPIN_MAX = 1 << 17
XL = 0
WL = 65536; WSLOT = 16384
B1X = 131072
WPR = 139520; EXC = 148736
WOL = 0
BEX0 = 114688; BEX1 = 123904
CNT = 159936
RING = 65536; SLOTB = 12288
ZL = 148736
LDS_BYTES = 160256
_names = 'ATT Q H3 O Z TOK FAST H1 FQ FO H3W CX U X WO A0 DONE KV FKV'.split()
for _i, _n in enumerate(_names): globals()['C_' + _n] = CNT + 4 * _i
D_TOK = 16
FKVF = FQ + 0x400
W_H1, W_H3, W_XG, W_TOP, W_GO1, W_GO3 = CW, CW + 1024, CW + 2048, CW + 3072, CW + 4096, CW + 5120
VGPRS = 168; BLOCK = 768
OSC = ' sc1' if 'osc1' in DG else (' nt' if 'ont' in DG else '')
def f32bits(x): return struct.unpack('<I', struct.pack('<f', x))[0]
def srd(a, d, ptr, size):
    a(f's_mov_b32 s{d}, s{ptr}'); a(f's_mov_b32 s{d+1}, s{ptr+1}'); a(f's_mov_b32 s{d+2}, {size}'); a(f's_mov_b32 s{d+3}, 0x20000')
X, WQ, BX, WSEL, WS, TB, WO, OUT, DBG = 4, 8, 12, 16, 20, 24, 28, 32, 36
sW, sR, sTOK, sTB, sHP, sH3, sPOS, sXT, sSPIN = 40, 41, 42, 43, 44, 45, 46, 47, 71
uid = [0]
def L(name):
    uid[0] += 1
    return f'L_{name}_{uid[0]}'
def emit(a, Ls):
    for x in Ls:
        if isinstance(x, list): emit(a, x)
        else: a(x)
def spin_guard(a, out):
    a(f's_add_u32 s{sSPIN}, s{sSPIN}, 1'); a(f's_cmp_gt_u32 s{sSPIN}, {SPIN_MAX}'); a(f's_cbranch_scc1 {out}')
def get_token(a, v):
    again, ok = L('tok'), L('tokok')
    a.label(again)
    a('s_nop 0'); a(f'v_readfirstlane_b32 s{sTOK}, v{v}'); a('s_nop 0'); a(f's_cmp_lg_u32 s{sTOK}, 0'); a(f's_cbranch_scc1 {ok}')
    spin_guard(a, ok)
    a('s_sleep 2'); a(f'v_mov_b32 v{v}, {D_TOK}'); a(f'buffer_load_dword v{v}, v{v}, s[{DBG}:{DBG+3}], 0 offen sc1'); a('s_waitcnt vmcnt(0)'); a(f's_branch {again}')
    a.label(ok)
def poll_flags(a, soff, n, vt, vt2):
    again, ok = L('pf'), L('pfok')
    if n < 64: a(f's_mov_b32 exec_lo, {hex((1 << n) - 1)}'); a('s_mov_b32 exec_hi, 0')
    a(f'v_lshlrev_b32 v{vt}, 2, v3')
    a.label(again)
    a(f'buffer_load_dword v{vt2}, v{vt}, s[{WS}:{WS+3}], {soff} offen sc1'); a('s_waitcnt vmcnt(0)')
    a(f'v_cmp_ne_u32 vcc, s{sTOK}, v{vt2}'); a('s_nop 1'); a(f's_cbranch_vccz {ok}')
    spin_guard(a, ok)
    a('s_sleep 1'); a(f's_branch {again}')
    a.label(ok); a('s_mov_b64 exec, -1')
def tree_arrive(a, woff, top, go, first, va):
    done = L('tree')
    a('s_and_b32 s70, s2, 7'); a(f's_cmp_eq_u32 s70, 0'); a(f's_cselect_b32 s69, {first}, 32'); a('s_lshl_b32 s70, s70, 7'); a(f's_add_u32 s70, s70, {woff}')
    a(f'v_mov_b32 v{va}, 0'); a(f'v_mov_b32 v{va+1}, 1'); a('s_mov_b64 exec, 1')
    a(f'buffer_atomic_add v{va+1}, v{va}, s[{WS}:{WS+3}], s70 offen sc0 sc1'); a('s_waitcnt vmcnt(0)')
    a(f'v_readfirstlane_b32 s70, v{va+1}'); a('s_nop 0'); a('s_add_u32 s70, s70, 1'); a('s_cmp_lg_u32 s70, s69'); a(f's_cbranch_scc1 {done}')
    a(f's_mov_b32 s70, {top}'); a(f'v_mov_b32 v{va+1}, 1')
    a(f'buffer_atomic_add v{va+1}, v{va}, s[{WS}:{WS+3}], s70 offen sc0 sc1'); a('s_waitcnt vmcnt(0)')
    a(f'v_readfirstlane_b32 s70, v{va+1}'); a('s_nop 0'); a('s_cmp_lg_u32 s70, 7'); a(f's_cbranch_scc1 {done}')
    a('s_mov_b64 exec, 0xff'); a(f'v_lshlrev_b32 v{va}, 7, v3'); a(f'v_mov_b32 v{va+1}, s{sTOK}'); a(f's_mov_b32 s70, {go}')
    a(f'buffer_store_dword v{va+1}, v{va}, s[{WS}:{WS+3}], s70 offen sc1')
    a.label(done); a('s_mov_b64 exec, -1')
def poll_go(a, go, vt, sleep=4):
    again, ok = L('pg'), L('pgok')
    a('s_and_b32 s69, s2, 7'); a('s_lshl_b32 s69, s69, 7'); a(f's_add_u32 s69, s69, {go}'); a(f'v_mov_b32 v{vt}, 0')
    a.label(again)
    a(f'buffer_load_dword v{vt+1}, v{vt}, s[{WS}:{WS+3}], s69 offen sc1'); a('s_waitcnt vmcnt(0)')
    a(f'v_readfirstlane_b32 s70, v{vt+1}'); a('s_nop 0'); a(f's_cmp_eq_u32 s70, s{sTOK}'); a(f's_cbranch_scc1 {ok}')
    spin_guard(a, ok)
    a(f's_sleep {sleep}'); a(f's_branch {again}')
    a.label(ok)
def lds_arrive(a, caddr, n, action, vt, group_reg=None, mod4=False):
    skip = L('arr')
    a('s_mov_b64 exec, 1'); a(f'v_mov_b32 v{vt}, {caddr}' if group_reg is None else f'v_mov_b32 v{vt}, s{group_reg}'); a(f'v_mov_b32 v{vt+1}, 1')
    a(f'ds_add_rtn_u32 v{vt+1}, v{vt}, v{vt+1}'); a('s_waitcnt lgkmcnt(0)')
    a(f'v_readfirstlane_b32 s70, v{vt+1}'); a('s_nop 0')
    if mod4: a('s_and_b32 s70, s70, 3')
    a(f's_cmp_lg_u32 s70, {n-1}'); a(f's_cbranch_scc1 {skip}')
    action()
    a.label(skip); a('s_mov_b64 exec, -1')
def lds_set(a, caddr, src, vt):
    a('s_mov_b64 exec, 1'); a(f'v_mov_b32 v{vt}, {caddr}'); a(f'v_mov_b32 v{vt+1}, {src}'); a(f'ds_write_b32 v{vt}, v{vt+1}'); a('s_mov_b64 exec, -1')
def lds_get(a, caddr, sdst, vt):
    a(f'v_mov_b32 v{vt}, {caddr}'); a(f'ds_read_b32 v{vt+1}, v{vt}'); a('s_waitcnt lgkmcnt(0)'); a(f'v_readfirstlane_b32 s{sdst}, v{vt+1}')
def one_wave(a, wave, poll, caddr, vt, sel=None, sleep=1):
    other, done = L('ow'), L('owd')
    a(f's_cmp_lg_u32 s{sW if sel is None else sel}, {wave}'); a(f's_cbranch_scc1 {other}')
    poll(); lds_set(a, caddr, 1, vt); a(f's_branch {done}')
    a.label(other); lds_wait(a, caddr, 1, vt, sleep=sleep)
    a.label(done)
def lds_wait(a, caddr, n, vt, sleep=0):
    again, ok = L('lw'), L('lwok')
    a(f'v_mov_b32 v{vt}, {caddr}')
    a.label(again)
    a(f'ds_read_b32 v{vt+1}, v{vt}'); a('s_waitcnt lgkmcnt(0)'); a(f'v_readfirstlane_b32 s70, v{vt+1}'); a('s_nop 0')
    a(f's_cmp_ge_u32 s70, {n}'); a(f's_cbranch_scc1 {ok}')
    spin_guard(a, ok)
    if sleep: a(f's_sleep {sleep}')
    a(f's_branch {again}')
    a.label(ok)
def lds_add(a, caddr, vt):
    a('s_mov_b64 exec, 1'); a(f'v_mov_b32 v{vt}, {caddr}'); a(f'v_mov_b32 v{vt+1}, 1'); a(f'ds_add_u32 v{vt}, v{vt+1}'); a('s_mov_b64 exec, -1')
SSET = os.environ.get('SSET', 'main')
def stp(a, name, idx):
    if name == SSET: stamp(a, idx)
def finish(a):
    if STAMPS: a('s_waitcnt vmcnt(0)'); stamp(a, 7); stamp_flush(a, 8, 0)
    a('s_endpgm')


def fl(x): return hex(f32bits(float(x)))
def trig_pair(a, ang, dc, ds_):
    a(f'v_cos_f32 v{dc}, v{ang}'); a(f'v_sin_f32 v{ds_}, v{ang}')
def prologue(a):
    a('s_cmp_ge_u32 s2, 256'); a('s_cbranch_scc1 L_end')
    a('s_load_dwordx16 s[48:63], s[0:1], 0'); a('s_load_dwordx2 s[64:65], s[0:1], 64')
    a('v_lshrrev_b32 v2, 6, v0'); a('v_and_b32 v3, 63, v0'); a('v_lshlrev_b32 v1, 4, v3')
    a(f'v_readfirstlane_b32 s{sW}, v2'); stamp(a, 0); stamp_wave(a, sW)
    a(f's_mov_b32 s{sSPIN}, 0'); a(f's_mov_b32 s{sH3}, 0')
    a(f's_lshr_b32 s{sTB}, s2, 3'); a(f's_and_b32 s{sHP}, s2, 7')
    a(f's_and_b32 s{sR}, s{sW}, 3'); a('v_and_b32 v2, 3, v2')
    a(f's_cmp_ge_u32 s{sW}, 8'); a('s_cbranch_scc1 L_B_p1')
    setup_srds(a)
    a(f's_cmp_ge_u32 s{sW}, 4'); a('s_cbranch_scc1 L_C_p1')
def setup_srds(a):
    stp(a, 'boot', 1)
    a('s_waitcnt lgkmcnt(0)')
    stp(a, 'boot', 2)
    srd(a, X, 48, 2048 * 512 * 2); srd(a, WQ, 50, 512 * 1536 * 2); srd(a, BX, 54, 2048 * 512 * 2)
    a(f's_cmp_lt_u32 s{sR}, 2'); a(f's_cselect_b32 s{WSEL}, s56, s58'); a(f's_cselect_b32 s{WSEL+1}, s57, s59')
    a(f's_mov_b32 s{WSEL+2}, {2048*257*2}'); a(f's_mov_b32 s{WSEL+3}, 0x20000')
    srd(a, WS, 64, WS_USED); srd(a, WO, 52, 512 * 512 * 2); srd(a, OUT, 60, 2048 * 1024 * 2); srd(a, DBG, 62, 256)

def b1_row0(a, d):
    a(f's_lshr_b32 s{d}, s2, 6'); a(f's_lshl_b32 s{d}, s{d}, 2'); a(f's_and_b32 s{d+1}, s{sR}, 1'); a(f's_lshl_b32 s{d+1}, s{d+1}, 1'); a(f's_add_u32 s{d}, s{d}, s{d+1}')
    a(f's_lshr_b32 s{d+1}, s{sR}, 1'); a(f's_lshl_b32 s{d+1}, s{d+1}, 4'); a(f's_add_u32 s{d}, s{d}, s{d+1}')
    a(f's_lshl_b32 s{d}, s{d}, 6'); a(f's_and_b32 s{d+1}, s2, 63'); a(f's_add_u32 s{d}, s{d}, s{d+1}')

def phase1_A(a):
    a.vm_reset()
    skip = L('w0')
    a(f's_cmp_lg_u32 s{sW}, 0'); a(f's_cbranch_scc1 {skip}')
    a('v_mov_b32 v5, 0'); a('s_mov_b32 exec_lo, -1'); a('s_mov_b32 exec_hi, 0'); a('v_lshlrev_b32 v4, 2, v3'); a(f'v_add_u32 v4, {CNT}, v4'); a('ds_write_b32 v4, v5'); a('s_mov_b64 exec, -1')
    a.label(skip)
    a('v_and_b32 v4, 31, v3'); a('v_lshrrev_b32 v5, 5, v3'); a('v_bfe_u32 v6, v4, 1, 3'); a('v_xor_b32 v5, v5, v6')
    a('v_lshlrev_b32 v5, 4, v5'); a('v_lshl_add_u32 v5, v4, 7, v5'); a('v_and_b32 v6, 1, v2'); a('v_lshl_add_u32 v5, v6, 12, v5')
    for ks in range(4): a(f'v_xor_b32 v{96+ks}, {32*ks}, v5')
    a('v_and_b32 v4, 15, v3'); a('v_lshrrev_b32 v5, 5, v3'); a('v_lshlrev_b32 v5, 3, v5'); a('v_lshrrev_b32 v6, 2, v4'); a('v_add_u32 v5, v5, v6')
    a('v_bfe_u32 v7, v3, 4, 1'); a('v_lshlrev_b32 v7, 5, v7'); a('v_and_b32 v8, 3, v4'); a('v_lshl_add_u32 v7, v8, 3, v7'); a(f'v_add_u32 v7, {WL}, v7')
    a('v_lshrrev_b32 v8, 1, v2')
    a('v_xor_b32 v9, v8, v6'); a('v_lshlrev_b32 v9, 6, v9'); a('v_lshl_add_u32 v9, v5, 8, v9'); a('v_add_u32 v100, v9, v7'); a('v_xor_b32 v101, 128, v100')
    a('v_bfe_u32 v9, v3, 3, 1'); a('v_xor_b32 v9, v8, v9'); a('v_lshlrev_b32 v9, 6, v9'); a('v_lshl_add_u32 v9, v5, 7, v9'); a('v_add_u32 v102, v9, v7')
    a('s_waitcnt lgkmcnt(0)'); a('s_barrier')
    stp(a, 'main', 1); stp(a, 'p1', 1)
    XF = (64, 68); WF = (72, 80); AK, AV, AQ_ = 16, 32, 48
    def reads(n, ks, buf):
        slot = (n % 4) * WSLOT
        if n < 8:
            a(f'ds_read_b128 {vr(XF[buf],4)}, v{96+ks} offset:{XL + n*8192}')
            for jb in range(2):
                for rho in range(2): a(f'ds_read_b64_tr_b16 {vr(WF[buf]+4*jb+2*rho,2)}, v{100+jb} offset:{slot + (16*ks+4*rho)*256}')
        else:
            a(f'ds_read_b128 {vr(XF[buf],4)}, v{96+(ks&3)} offset:{XL + (2*(n-8) + (ks>>2))*8192}')
            for rho in range(2): a(f'ds_read_b64_tr_b16 {vr(WF[buf]+2*rho,2)}, v102 offset:{slot + (16*ks+4*rho)*128}')
    def mfmas(n, buf, first):
        x = vr(XF[buf], 4)
        if n < 8:
            a(f'{M32} {vr(AK,16)}, {vr(WF[buf],4)}, {x}, ' + ('0' if first else vr(AK,16)))
            a(f'{M32} {vr(AV,16)}, {x}, {vr(WF[buf]+4,4)}, ' + ('0' if first else vr(AV,16)))
        else:
            a(f'{M32} {vr(AQ_,16)}, {vr(WF[buf],4)}, {x}, ' + ('0' if first else vr(AQ_,16)))
    a(f's_lshl_b32 s48, s{sTB}, 1'); a(f's_and_b32 s49, s{sR}, 1'); a('s_add_u32 s48, s48, s49'); a('s_lshl_b32 s48, s48, 10')
    a(f's_lshl_b32 s49, s{sHP}, 1'); a(f's_lshr_b32 s50, s{sR}, 1'); a('s_add_u32 s49, s49, s50'); a('s_lshl_b32 s49, s49, 17'); a('s_add_u32 s48, s48, s49')
    a(f's_add_u32 s49, s48, {QF}'); a(f's_add_u32 s50, s48, {QF+65536}')
    a(f's_add_u32 s51, s48, {KF}'); a(f's_add_u32 s52, s48, {KF+65536}'); a(f's_add_u32 s53, s48, {VF}')
    a('v_bfe_u32 v5, v3, 4, 1'); a('v_lshlrev_b32 v5, 16, v5'); a('v_lshrrev_b32 v6, 5, v3'); a('v_lshlrev_b32 v6, 8, v6')
    a('v_and_b32 v7, 15, v3'); a('v_lshlrev_b32 v7, 4, v7'); a('v_add3_u32 v5, v5, v6, v7')
    def both(fast, slow):
        sl, jn = L('slow'), L('join')
        a('s_cmp_eq_u32 s54, 0'); a(f's_cbranch_scc1 {sl}')
        fast(); a(f's_branch {jn}')
        a.label(sl); slow()
        a.label(jn)
    def publish(base):
        def act():
            a(f's_lshl_b32 s48, s{sHP}, 7'); a(f's_lshl_b32 s55, s{sTB}, 2'); a('s_add_u32 s48, s48, s55'); a(f's_add_u32 s48, s48, {base}')
            a('v_mov_b32 v6, 0'); a(f'v_mov_b32 v7, s{sTOK}')
            both(lambda: a(f'buffer_store_dword v7, v6, s[{WS}:{WS+3}], s48 offen'), lambda: a(f'buffer_store_dword v7, v6, s[{WS}:{WS+3}], s48 offen sc1'))
        return act
    reads(0, 0, 0)
    step = 0
    for n in range(12):
        nks = 4 if n < 8 else 8; per = 5 if n < 8 else 3
        for ks in range(nks):
            buf = step & 1
            first = (n == 0 or n == 8) and ks == 0
            if ks < nks - 1:
                reads(n, ks + 1, buf ^ 1); a(f's_waitcnt lgkmcnt({per})'); mfmas(n, buf, first)
            else:
                a('s_waitcnt lgkmcnt(0)')
                if n in (3, 4, 5): stp(a, 'ldr', 2 * (n - 3) + 1)
                if n < 11:
                    a('s_barrier')
                    if n in (3, 4, 5): stp(a, 'ldr', 2 * (n - 3) + 2)
                    reads(n + 1, 0, buf ^ 1)
                if n in (0, 3): stp(a, 'p1', 2 + (n > 0))
                mfmas(n, buf, False)
                if n == 7:
                    stp(a, 'p1', 4); stp(a, 'mid', 1)
                    lds_get(a, C_TOK, sTOK, 8); lds_get(a, C_FAST, 54, 8)
                    for p in range(8): a(f'v_cvt_pk_bf16_f32 v{112+p}, v{AK+2*p}, v{AK+2*p+1}')
                    for p in range(8): a(f'v_cvt_pk_bf16_f32 v{120+p}, v{AV+2*p}, v{AV+2*p+1}')
                    def kv(mod):
                        a(f'buffer_store_dwordx4 v[112:115], v1, s[{WS}:{WS+3}], s51 offen{mod}'); a(f'buffer_store_dwordx4 v[116:119], v1, s[{WS}:{WS+3}], s52 offen{mod}')
                        a(f'buffer_store_dwordx4 v[120:123], v5, s[{WS}:{WS+3}], s53 offen{mod}'); a(f'buffer_store_dwordx4 v[124:127], v5, s[{WS}:{WS+3}], s53 offen offset:512{mod}')
                    both(lambda: kv(''), lambda: kv(' sc1'))
                if n == 9:
                    a('s_waitcnt vmcnt(0)'); lds_arrive(a, C_KV, 4, publish(FKVF), 8)
                    stp(a, 'mid', 2)
            step += 1
    stp(a, 'main', 2); stp(a, 'p1', 6)
    for p in range(16): a(f'v_mul_f32 v{AQ_+p}, {QSCALE}, v{AQ_+p}')
    for p in range(8): a(f'v_cvt_pk_bf16_f32 v{64+p}, v{AQ_+2*p}, v{AQ_+2*p+1}')
    def qs(mod):
        a(f'buffer_store_dwordx4 v[64:67], v1, s[{WS}:{WS+3}], s49 offen{mod}'); a(f'buffer_store_dwordx4 v[68:71], v1, s[{WS}:{WS+3}], s50 offen{mod}')
    both(lambda: qs(''), lambda: qs(' sc1'))
    a('s_waitcnt vmcnt(0)')
    lds_arrive(a, C_Q, 4, publish(FQ), 8)
    stp(a, 'mid', 3)

def phase1_C(a):
    a.label('L_C_p1')
    a.vm_reset()
    if 'nopf' not in DG:
        skip = L('pf')
        a(f's_cmp_lg_u32 s{sW}, 4'); a(f's_cbranch_scc1 {skip}')
        a('s_getpc_b64 s[24:25]'); a.label('L_pf_base'); a('s_mov_b32 s26, L_code_end-L_pf_base'); a('s_mov_b32 s27, 0x20000')
        a('s_lshr_b32 s48, s2, 3'); a('s_lshl_b32 s48, s48, 11')
        a('buffer_load_dwordx4 v[148:151], v1, s[24:27], s48 offen'); a('buffer_load_dwordx4 v[152:155], v1, s[24:27], s48 offen offset:1024')
        a.label(skip)
    skip = L('tw')
    a(f's_cmp_lg_u32 s{sW}, 4'); a(f's_cbranch_scc1 {skip}'); a('s_cmp_lg_u32 s2, 0'); a(f's_cbranch_scc1 {skip}')
    a('s_memrealtime s[48:49]')
    for q in range(4): a(f'v_mov_b32 v{4+q}, 0')
    for q in range(4):
        a(f's_mov_b32 s50, {CW + 1024*q}'); a(f'buffer_store_dwordx4 v[4:7], v1, s[{WS}:{WS+3}], s50 offen sc1')
    a('s_waitcnt vmcnt(0) lgkmcnt(0)'); a('s_or_b32 s48, s48, 1')
    a(f'v_mov_b32 v4, {D_TOK}'); a('v_mov_b32 v5, s48'); a('s_mov_b64 exec, 1'); a(f'buffer_store_dword v5, v4, s[{DBG}:{DBG+3}], 0 offen sc1'); a('s_mov_b64 exec, -1')
    a.label(skip)
    FC, FS, F16, TWC, TWS = 16, 24, 32, 40, 48
    K1, H, T = 61, 62, 10
    def b1_consts(piece):
        if piece == 0:
            a(f'v_and_b32 v{K1}, 31, v3'); a(f'v_lshrrev_b32 v{H}, 5, v3'); a(f'v_cvt_f32_u32 v{K1}, v{K1}'); a(f'v_cvt_f32_u32 v{H}, v{H}')
        if piece < 2:
            kap = piece
            a(f'v_mul_f32 v56, {fl(1/32)}, v{K1}'); a(f'v_mul_f32 v57, {fl(8)}, v{H}'); a('v_mul_f32 v57, v57, v56')
            for p in range(4):
                for e in range(2):
                    j = 2 * p + e
                    a(f'v_mov_b32 v{T+e}, {fl(16*kap + j)}'); a(f'v_fma_f32 v{T+e}, v56, v{T+e}, v57'); trig_pair(a, T + e, T + 2 + e, T + 4 + e)
                a(f'v_cvt_pk_bf16_f32 v{FC+4*kap+p}, v{T+2}, v{T+3}'); a(f'v_cvt_pk_bf16_f32 v{FS+4*kap+p}, -v{T+4}, -v{T+5}')
        elif piece < 4:
            part = piece - 2
            a('v_and_b32 v56, 31, v3'); a('v_lshrrev_b32 v57, 1, v56'); a('v_cvt_f32_u32 v57, v57'); a(f'v_mul_f32 v57, {fl(1/16)}, v57')
            a('v_and_b32 v58, 1, v56'); a('v_cvt_f32_u32 v58, v58'); a(f'v_mul_f32 v58, {fl(0.25)}, v58')
            a(f'v_mul_f32 v59, 4.0, v{H}'); a('v_fma_f32 v58, v57, v59, v58')
            a('v_cmp_ge_u32 vcc, 16, v56'); a('v_mov_b32 v60, 1.0'); a('v_cndmask_b32 v60, 0, v60, vcc')
            for p in range(4):
                for e in range(2):
                    j = 2 * p + e; cj = 8 * (j >> 2) + (j & 3)
                    a(f'v_mov_b32 v{T+e}, {fl(cj)}'); a(f'v_fma_f32 v{T+e}, v57, v{T+e}, v58')
                    if part: a(f'v_add_f32 v{T+e}, {fl(-0.25)}, v{T+e}')
                    a(f'v_cos_f32 v{T+2+e}, v{T+e}')
                a(f'v_mul_f32 v{T+2}, v{T+2}, v60'); a(f'v_mul_f32 v{T+3}, v{T+3}, v60')
                a(f'v_cvt_pk_bf16_f32 v{F16+4*part+p}, v{T+2}, v{T+3}')
        else:
            a(f'v_mul_f32 v57, {fl(1/512)}, v{K1}'); a(f'v_mul_f32 v59, 4.0, v{H}'); a('v_mul_f32 v58, v57, v59')
            for r in range(8):
                cj = 8 * (r >> 2) + (r & 3)
                a(f'v_mov_b32 v{T}, {fl(cj)}'); a(f'v_fma_f32 v{T}, v57, v{T}, v58'); trig_pair(a, T, TWC + r, TWS + r)
    a('s_barrier')
    stp(a, 'main', 1)
    b1_consts(0)
    CROW = 2
    a('s_barrier')
    b1_consts(1)
    skip = L('tk1')
    a(f's_cmp_lg_u32 s{sW}, 4'); a(f's_cbranch_scc1 {skip}')
    a(f'v_mov_b32 v156, {D_TOK}'); a(f'buffer_load_dword v156, v156, s[{DBG}:{DBG+3}], 0 offen sc1')
    a.label(skip)
    a('s_barrier')
    skip = L('tk2')
    a(f's_cmp_lg_u32 s{sW}, 4'); a(f's_cbranch_scc1 {skip}')
    a('s_waitcnt vmcnt(0)'); get_token(a, 156)
    a('s_getreg_b32 s59, hwreg(HW_REG_XCC_ID)'); a('s_and_b32 s59, s59, 7'); a('s_lshl_b32 s59, s59, 3'); a('s_lshl_b64 s[60:61], 1, s59')
    a('s_and_b32 s62, s2, 7'); a('s_lshl_b32 s62, s62, 7'); a(f's_add_u32 s62, s62, {W_XG}')
    a('v_mov_b32 v156, 0'); a('v_mov_b32 v158, s60'); a('v_mov_b32 v159, s61'); a('s_mov_b64 exec, 1')
    a(f'buffer_atomic_add_x2 v[158:159], v156, s[{WS}:{WS+3}], s62 offen sc1'); a('s_mov_b64 exec, -1')
    lds_set(a, C_TOK, f's{sTOK}', 160)
    a.label(skip)
    b1_row0(a, 48); a('s_lshl_b32 s48, s48, 10')
    a(f's_lshl_b32 s49, s{sR}, 10'); a(f's_add_u32 s49, s49, {B1X}')
    a('s_mov_b32 m0, s49'); a('s_add_u32 s49, s49, 4224')
    a.vmem(f'buffer_load_dwordx4 v1, s[{BX}:{BX+3}], s48 offen lds', 'rows')
    a('s_mov_b32 m0, s49'); a('s_add_u32 s48, s48, 65536')
    a.vmem(f'buffer_load_dwordx4 v1, s[{BX}:{BX+3}], s48 offen lds', 'rows')
    sSH = 57
    a(f's_and_b32 s{sSH}, s2, 1')
    a('s_and_b32 s52, s2, 15'); a('s_lshr_b32 s53, s2, 4'); a('s_lshl_b32 s53, s53, 7'); a('s_add_u32 s52, s52, s53')
    a(f's_and_b32 s53, s{sR}, 1'); a('s_lshl_b32 s53, s53, 4'); a('s_add_u32 s52, s52, s53'); a('s_mul_i32 s52, s52, 514')
    a(f's_lshl_b32 s53, s{sSH}, 1'); a('s_sub_u32 s52, s52, s53')
    a(f's_mul_i32 s53, s{sR}, {4*576}'); a(f's_add_u32 s53, s53, {WPR}')
    a('s_mov_b32 exec_hi, 1')
    for u in range(4):
        a('s_mov_b32 m0, s53'); a('s_add_u32 s53, s53, 576')
        a.vmem(f'buffer_load_dwordx4 v1, s[{WSEL}:{WSEL+3}], s52 offen lds', 'rows')
        if u < 3: a(f's_add_u32 s52, s52, {32*514}')
    a('s_mov_b64 exec, -1')
    a('v_and_b32 v4, 15, v3'); a('v_and_b32 v7, 3, v4'); a('v_lshlrev_b32 v7, 3, v7')
    a('v_lshrrev_b32 v5, 5, v3'); a('v_lshlrev_b32 v5, 3, v5'); a('v_lshrrev_b32 v6, 2, v4'); a('v_add_u32 v5, v5, v6'); a('v_lshlrev_b32 v5, 5, v5')
    a('v_bfe_u32 v6, v3, 4, 1'); a('v_mul_u32_u24 v6, 4224, v6'); a('v_add3_u32 v5, v5, v6, v7')
    a('v_lshlrev_b32 v6, 10, v2'); a('v_add_u32 v5, v5, v6'); a(f'v_add_u32 v8, {B1X}, v5')
    a('v_and_b32 v4, 31, v3'); a('v_lshlrev_b32 v5, 5, v4'); a('v_lshrrev_b32 v4, 3, v4'); a('v_lshl_add_u32 v5, v4, 4, v5')
    a('v_lshrrev_b32 v6, 5, v3'); a(f'v_mul_u32_u24 v6, {2*1088}, v6'); a('v_lshlrev_b32 v7, 2, v2'); a('v_add3_u32 v5, v5, v6, v7'); a(f'v_add_u32 v9, {EXC}, v5')
    for st in range(CROW + 1, 6):
        a('s_barrier'); b1_consts(st - 1)
    skip = L('cz1')
    a(f's_cmp_lg_u32 s{sW}, 4'); a(f's_cbranch_scc1 {skip}')
    a('v_mov_b32 v156, 0'); a(f'buffer_load_dwordx2 v[158:159], v156, s[{WS}:{WS+3}], s62 offen sc1')
    a.label(skip)
    a('s_barrier'); a('s_barrier')
    skip = L('cz2')
    a(f's_cmp_lg_u32 s{sW}, 4'); a(f's_cbranch_scc1 {skip}')
    a('s_waitcnt vmcnt(0)'); a('s_lshl_b64 s[60:61], s[60:61], 5')
    a('v_readfirstlane_b32 s56, v158'); a('v_readfirstlane_b32 s57, v159'); a('s_nop 0')
    a('s_cmp_eq_u64 s[56:57], s[60:61]'); a('s_cselect_b32 s56, 1, 0')
    if 'nofast' in DG: a('s_mov_b32 s56, 0')
    lds_set(a, C_FAST, 's56', 156); a('s_waitcnt lgkmcnt(0)')
    if STAMPS and 'cntfast' in DG:
        a('s_mov_b64 exec, 1'); a('v_mov_b32 v156, 24'); a('v_mov_b32 v157, s56'); a(f'buffer_atomic_add v157, v156, s[{DBG}:{DBG+3}], 0 offen sc1'); a('s_mov_b64 exec, -1')
    a.label(skip)
    for st in range(8, 12): a('s_barrier')
    stp(a, 'main', 2); stp(a, 'mid', 1)
    a('s_waitcnt vmcnt(0)'); lds_add(a, C_CX, 4)
    lds_get(a, C_TOK, sTOK, 4)
    att_ids(a); att_vaddr(a)
    one_wave(a, 4, lambda: poll_flags(a, 's59', 32, 4, 5), C_FKV, 4)
    for c in range(2):
        emit(a, att_dma(c, False, partner=True)); emit(a, att_dma(c, False))
    stp(a, 'ent', 1)
    AF, DRE, DIM, PK, D2 = 56, 64, 80, 96, (64, 80)
    for kap in range(2):
        for rho in range(2):
            a(f'ds_read_b64_tr_b16 {vr(AF+4*kap+2*rho,2)}, v8 offset:{(16*kap+4*rho)*32}')
    a('s_waitcnt lgkmcnt(0)')
    a(f'{M32} {vr(DRE,16)}, {vr(AF,4)}, {vr(FC,4)}, 0'); a(f'{M32} {vr(DIM,16)}, {vr(AF,4)}, {vr(FS,4)}, 0')
    a(f'{M32} {vr(DRE,16)}, {vr(AF+4,4)}, {vr(FC+4,4)}, {vr(DRE,16)}'); a(f'{M32} {vr(DIM,16)}, {vr(AF+4,4)}, {vr(FS+4,4)}, {vr(DIM,16)}')
    for p in range(8):
        r0 = 2 * p; c = TWC + (r0 & 7); s = TWS + (r0 & 7)
        a(f'v_pk_mul_f32 v[10:11], {vr(DRE+r0,2)}, {vr(c,2)}'); a(f'v_pk_mul_f32 v[12:13], {vr(DIM+r0,2)}, {vr(c,2)}')
        a(f'v_pk_fma_f32 v[10:11], {vr(DIM+r0,2)}, {vr(s,2)}, v[10:11]')
        a(f'v_pk_fma_f32 v[12:13], {vr(DRE+r0,2)}, {vr(s,2)}, v[12:13] neg_lo:[0,1,0] neg_hi:[0,1,0]')
        a(f'v_cvt_pk_bf16_f32 v{PK+p}, v10, v11'); a(f'v_cvt_pk_bf16_f32 v{PK+8+p}, v12, v13')
    for r in range(2): a(f'{M32} {vr(D2[r],16)}, {vr(F16,4)}, {vr(PK+4*r,4)}, 0')
    for r in range(2): a(f'{M32} {vr(D2[r],16)}, {vr(F16+4,4)}, {vr(PK+8+4*r,4)}, {vr(D2[r],16)}')
    a('s_nop 7'); a('s_nop 3'); a('s_mov_b64 exec, 1')
    for r in range(2): a(f'v_mov_b32 v{D2[r]+1}, v{D2[r]+8}')
    a('s_mov_b64 exec, -1')
    for rr in range(8):
        k2 = 4 * (rr >> 2) + ((rr >> 1) & 1)
        a(f'v_cvt_pk_bf16_f32 v{10+(rr&1)}, v{D2[0]+rr}, v{D2[1]+rr}')
        a(f'ds_write_b32 v9, v{10+(rr&1)} offset:{k2*1088 + 16*(rr&1)}')
    a('s_waitcnt lgkmcnt(0)'); lds_add(a, C_CX, 4)
    stp(a, 'mid', 2)
    stp(a, 'mid', 3)
    a('s_branch L_att_entry2')
B2_F32, B2_F64, B2_TW1, B2_TW2 = 88, 112, 136, 152
def b2_consts(a, part, half, t=4):
    I, G, T = t, t + 1, t + 4
    a(f'v_and_b32 v{I}, 15, v3'); a(f'v_lshrrev_b32 v{G}, 4, v3'); a(f'v_cvt_f32_u32 v{I}, v{I}'); a(f'v_cvt_f32_u32 v{G}, v{G}')
    if part == 0:
        nt = half
        a(f'v_add_f32 v{t+2}, {fl(16*nt)}, v{I}'); a(f'v_mul_f32 v{t+2}, {fl(1/32)}, v{t+2}')
        a(f'v_mul_f32 v{t+3}, 4.0, v{G}'); a(f'v_mul_f32 v{t+3}, v{t+3}, v{t+2}')
        for p in range(4):
            for e in range(2):
                j = 2 * p + e; cj = (j & 3) + 16 * (j >> 2)
                a(f'v_mov_b32 v{T+e}, {fl(cj)}'); a(f'v_fma_f32 v{T+e}, v{t+2}, v{T+e}, v{t+3}'); trig_pair(a, T + e, T + 2 + e, T + 4 + e)
            d = B2_F32 + 12 * nt + p
            a(f'v_cvt_pk_bf16_f32 v{d}, v{T+2}, v{T+3}'); a(f'v_cvt_pk_bf16_f32 v{d+4}, v{T+4}, v{T+5}'); a(f'v_cvt_pk_bf16_f32 v{d+8}, -v{T+4}, -v{T+5}')
    elif part == 1:
        kap = half
        a(f'v_cvt_f32_u32 v{t+2}, v2'); a(f'v_mul_f32 v{t+2}, {fl(16)}, v{t+2}'); a(f'v_add_f32 v{t+2}, v{t+2}, v{I}'); a(f'v_mul_f32 v{t+2}, {fl(1/64)}, v{t+2}')
        a(f'v_mul_f32 v{t+3}, {fl(8)}, v{G}'); a(f'v_mul_f32 v{t+3}, v{t+3}, v{t+2}')
        for p in range(4):
            for e in range(2):
                j = 2 * p + e
                a(f'v_mov_b32 v{T+e}, {fl(32*kap + j)}'); a(f'v_fma_f32 v{T+e}, v{t+2}, v{T+e}, v{t+3}'); a(f'v_fract_f32 v{T+e}, v{T+e}'); trig_pair(a, T + e, T + 2 + e, T + 4 + e)
            d = B2_F64 + 12 * kap + p
            a(f'v_cvt_pk_bf16_f32 v{d}, v{T+2}, v{T+3}'); a(f'v_cvt_pk_bf16_f32 v{d+4}, v{T+4}, v{T+5}'); a(f'v_cvt_pk_bf16_f32 v{d+8}, -v{T+4}, -v{T+5}')
    else:
        nt = half
        a(f'v_cvt_f32_u32 v{t+2}, v2'); a(f'v_mul_f32 v{t+2}, {fl(16)}, v{t+2}'); a(f'v_mul_f32 v{t+3}, 4.0, v{G}')
        a(f'v_add_f32 v{T}, {fl(16*nt)}, v{I}'); a(f'v_mul_f32 v{T}, {fl(1/2048)}, v{T}'); a(f'v_add_f32 v{T+1}, v{t+2}, v{t+3}')
        for r in range(4):
            a(f'v_add_f32 v{T+2}, {fl(r)}, v{T+1}'); a(f'v_mul_f32 v{T+2}, v{T+2}, v{T}'); trig_pair(a, T + 2, B2_TW1 + 4 * nt + r, B2_TW1 + 8 + 4 * nt + r)
        a(f'v_add_f32 v{T}, v{t+2}, v{I}'); a(f'v_mul_f32 v{T}, {fl(1/2048)}, v{T}'); a(f'v_add_f32 v{T+1}, {fl(16*nt)}, v{t+3}')
        for r in range(4):
            a(f'v_add_f32 v{T+2}, {fl(r)}, v{T+1}'); a(f'v_mul_f32 v{T+2}, v{T+2}, v{T}'); trig_pair(a, T + 2, B2_TW2 + 4 * nt + r, B2_TW2 + 8 + 4 * nt + r)

def phase1_B(a):
    a.label('L_B_p1')
    a.vm_reset()
    a('s_setprio 3')
    a('v_lshrrev_b32 v4, 3, v3'); a('v_lshlrev_b32 v4, 10, v4'); a('v_and_b32 v5, 7, v3'); a('v_lshrrev_b32 v6, 4, v3')
    a('v_xor_b32 v5, v5, v6'); a('v_lshlrev_b32 v5, 4, v5'); a('v_add_u32 v16, v4, v5'); a('v_xor_b32 v17, 64, v16'); a('v_add_u32 v17, 8192, v17')
    a('v_lshrrev_b32 v4, 4, v3'); a('v_bfe_u32 v5, v3, 2, 2'); a('v_xor_b32 v5, v5, v4'); a('v_lshrrev_b32 v6, 1, v5'); a('v_add_u32 v6, 1, v6'); a('v_lshlrev_b32 v6, 10, v6')
    a('v_and_b32 v5, 1, v5'); a('v_lshl_add_u32 v6, v5, 6, v6'); a('v_and_b32 v5, 3, v3'); a('v_lshl_add_u32 v6, v5, 4, v6')
    a('v_lshl_add_u32 v4, v2, 4, v4'); a('v_mul_u32_u24 v4, 3072, v4'); a('v_add_u32 v18, v4, v6')
    a('v_lshrrev_b32 v4, 3, v3'); a('v_bfe_u32 v5, v3, 4, 1'); a('v_lshlrev_b32 v5, 2, v5'); a('v_and_b32 v6, 7, v3'); a('v_xor_b32 v5, v5, v6'); a('v_lshlrev_b32 v5, 4, v5')
    a('v_and_b32 v6, 1, v2'); a('v_lshl_add_u32 v4, v6, 5, v4'); a('v_mul_u32_u24 v4, 3072, v4'); a('v_add_u32 v19, v4, v5')
    setup_srds(a)
    sXROW, sWOFF, sT2, sT3, sROT = 48, 49, 50, 51, 58
    a(f's_lshl_b32 s{sXROW}, s{sTB}, 6'); a(f's_lshl_b32 s52, s{sR}, 4'); a(f's_add_u32 s{sXROW}, s{sXROW}, s52'); a(f's_lshl_b32 s{sXROW}, s{sXROW}, 10')
    a(f's_lshl_b32 s{sWOFF}, s{sHP}, 7'); a(f's_lshl_b32 s{sT2}, s{sR}, 11'); a(f's_lshl_b32 s{sT3}, s{sR}, 12')
    a(f's_lshr_b32 s59, s{sR}, 1')
    if 'norot' in DG: a(f's_mov_b32 s{sROT}, 0')
    else: a(f's_lshr_b32 s{sROT}, s2, 3')
    def dma_x(st):
        a(f's_add_u32 s52, s{sROT}, {st}'); a('s_and_b32 s52, s52, 7'); a('s_lshl_b32 s53, s52, 7'); a(f's_add_u32 s53, s53, s{sXROW}')
        for q in range(2):
            a(f's_add_u32 m0, s{sT2}, {XL + st*8192 + q*1024}'); a('s_nop 0')
            a.vmem(f'buffer_load_dwordx4 v{16+q}, s[{X}:{X+3}], s53 offen lds', f'x{st}')
    def dma_w(n):
        slot = WL + (n % 4) * WSLOT
        if n < 8:
            a(f's_add_u32 s52, s{sROT}, {n}'); a('s_and_b32 s52, s52, 7'); a(f's_mul_i32 s52, s52, {64*3072}'); a(f's_add_u32 s52, s52, s{sWOFF}')
            for u in range(4):
                a(f's_add_u32 m0, s{sT3}, {slot + u*1024}'); a(f's_add_u32 s53, s52, {4*u*3072}')
                a.vmem(f'buffer_load_dwordx4 v18, s[{WQ}:{WQ+3}], s53 offen lds', f'w{n}')
        else:
            a(f's_add_u32 s52, s{sROT}, {2*(n-8)}'); a('s_add_u32 s52, s52, s59'); a('s_and_b32 s52, s52, 7'); a(f's_mul_i32 s52, s52, {64*3072}'); a(f's_add_u32 s52, s52, s{sWOFF}')
            for u in range(4):
                a(f's_add_u32 m0, s{sT3}, {slot + u*1024}'); a(f's_add_u32 s53, s52, {8*u*3072}')
                a.vmem(f'buffer_load_dwordx4 v19, s[{WQ}:{WQ+3}], s53 offen lds', f'w{n}')
    stp(a, 'boot', 3)
    dma_x(0); dma_w(0)
    stp(a, 'boot', 4)
    dma_x(1); dma_w(1); dma_x(2); dma_w(2)
    stp(a, 'boot', 5)
    for n in range(12):
        a.vm_wait(f'w{n}')
        if n == 0: stp(a, 'boot', 6)
        if n in (4, 5, 6): stp(a, 'ldr', 2 * (n - 4) + 1)
        a('s_barrier')
        if n in (4, 5, 6): stp(a, 'ldr', 2 * (n - 4) + 2)
        if n == 0:
            stp(a, 'main', 1); dma_x(3); dma_w(3)
            for x in range(4, 8): dma_x(x)
        if 1 <= n <= 8: dma_w(n + 3)
    a('s_setprio 0')
    for part in range(3):
        for half in range(2): b2_consts(a, part, half)
    stp(a, 'main', 2); stp(a, 'mid', 1)
    lds_get(a, C_TOK, sTOK, 4)

def gen_b2(a):
    G, I, VWR, VRD = 4, 5, 6, 7
    F32 = tuple((B2_F32 + 12 * nt, B2_F32 + 12 * nt + 4, B2_F32 + 12 * nt + 8) for nt in range(2))
    F64 = tuple((B2_F64 + 12 * k, B2_F64 + 12 * k + 4, B2_F64 + 12 * k + 8) for k in range(2))
    TW1C, TW1S, TW2C, TW2S = B2_TW1, B2_TW1 + 8, B2_TW2, B2_TW2 + 8
    VU, VW, T = 8, 9, 10

    FR = 16; ACC = 48; ARE, AIM = 64, 68; WR, WI = 72, 76; WC, WS_ = 16, 24; PK = 80
    bp = int(os.environ.get('B2PRIO', '3'))
    a('s_and_b32 s48, s2, 7'); a('s_lshl_b32 s48, s48, 5'); a('s_lshr_b32 s49, s2, 3'); a(f's_add_u32 s{sPOS}, s48, s49'); a(f's_mov_b32 s{sXT}, 0')
    a(f'v_lshrrev_b32 v{G}, 4, v3'); a(f'v_and_b32 v{I}, 15, v3'); a(f'v_lshl_add_u32 v{VU}, v{G}, 6, v{I}'); a(f's_movk_i32 s48, {BLK}')
    a(f'v_mul_lo_u32 v{VU}, v{VU}, s48'); a(f'v_mul_lo_u32 v{VW}, v3, s48')
    a(f'v_mul_u32_u24 v{VRD}, 144, v{I}'); a(f'v_lshl_add_u32 v{VWR}, v{G}, 3, v{VRD}'); a(f'v_lshl_add_u32 v{VWR}, v2, 5, v{VWR}'); a(f'v_lshl_add_u32 v{VRD}, v{G}, 4, v{VRD}')
    if 'nob2' in DG:
        lds_wait(a, C_DONE, 8, 8, sleep=16); finish(a)
    sSH = 57
    a(f's_and_b32 s{sSH}, s2, 1')
    a('v_lshl_add_u32 v14, v2, 6, v3')
    a('v_lshrrev_b32 v10, 1, v14'); a('v_lshlrev_b32 v11, 5, v10'); a('v_lshrrev_b32 v10, 3, v10'); a('v_lshl_add_u32 v11, v10, 4, v11')
    a('v_and_b32 v10, 1, v14'); a('v_lshl_add_u32 v11, v10, 4, v11'); a(f'v_add_u32 v15, {EXC}, v11')
    a('v_and_b32 v11, 15, v3'); a('v_lshrrev_b32 v12, 2, v11'); a('v_mul_u32_u24 v12, 576, v12'); a('v_and_b32 v11, 3, v11'); a('v_lshlrev_b32 v11, 3, v11')
    a('v_lshrrev_b32 v13, 4, v3'); a('v_lshlrev_b32 v13, 5, v13'); a('v_add3_u32 v11, v11, v12, v13'); a('v_lshl_add_u32 v11, v2, 7, v11'); a(f'v_add_u32 v16, {WPR}, v11')
    a('v_lshlrev_b32 v17, 4, v14'); a(f'v_subrev_u32 v18, s{sSH}, v14'); a('v_lshlrev_b32 v18, 5, v18')
    a(f's_mul_i32 s54, s2, {BLK}'); a(f's_add_u32 s55, s54, {U1}'); a(f's_add_u32 s56, s54, {WT}')
    lds_wait(a, C_CX, 8, 10, sleep=1)
    lds_wait(a, C_A0, 8, 10, sleep=2)
    a('s_setprio 3')
    a('ds_read_b128 v[20:23], v15'); a('ds_read_b128 v[24:27], v15 offset:4352')
    for rho in range(4): a(f'ds_read_b64_tr_b16 {vr(28+2*rho,2)}, v16 offset:{rho*2304}')
    a('s_waitcnt lgkmcnt(0)')
    a(f'buffer_store_dwordx4 v[20:23], v17, s[{WS}:{WS+3}], s55 offen sc1'); a('s_add_u32 s53, s55, 4096')
    a(f'buffer_store_dwordx4 v[24:27], v17, s[{WS}:{WS+3}], s53 offen sc1')
    skip = L('sh')
    a(f's_cmp_eq_u32 s{sSH}, 0'); a(f's_cbranch_scc1 {skip}'); a(f's_cmp_lg_u32 s{sR}, 0'); a(f's_cbranch_scc1 {skip}'); a('s_mov_b32 exec_lo, 0xfffffffe')
    a.label(skip)
    a(f'buffer_store_dwordx4 v[28:31], v18, s[{WS}:{WS+3}], s56 offen sc1'); a(f'buffer_store_dwordx4 v[32:35], v18, s[{WS}:{WS+3}], s56 offen offset:16 sc1')
    a('s_mov_b64 exec, -1')
    skip = L('nyq')
    a(f's_cmp_lg_u32 s{sR}, 0'); a(f's_cbranch_scc1 {skip}')
    a(f's_cmp_eq_u32 s{sSH}, 0'); a('s_cselect_b32 exec_lo, 0xffff, -1'); a('s_mov_b32 exec_hi, 0')
    a('v_and_b32 v10, 15, v3'); a('v_lshrrev_b32 v12, 4, v3'); a('v_mul_u32_u24 v11, 576, v10'); a('v_lshl_add_u32 v11, v12, 1, v11'); a(f'v_add_u32 v11, {WPR+512}, v11'); a('ds_read_u16 v36, v11')
    a(f'v_add_u32 v12, 256, v12'); a(f'v_subrev_u32 v12, s{sSH}, v12'); a('v_lshlrev_b32 v12, 5, v12'); a('v_lshl_add_u32 v12, v10, 1, v12')
    a('s_waitcnt lgkmcnt(0)')
    a(f'buffer_store_short v36, v12, s[{WS}:{WS+3}], s56 offen sc1')
    a('s_mov_b64 exec, -1')
    a.label(skip)
    a('s_waitcnt vmcnt(0)')
    def pub_u():
        tree_arrive(a, W_H1, W_TOP, W_GO1, 32, 12); a('s_mov_b64 exec, 1')
    lds_arrive(a, C_U, 4, pub_u, 10)
    a('s_setprio 0')
    a('v_lshrrev_b32 v10, 3, v3'); a('v_and_b32 v11, 6, v10'); a('v_and_b32 v12, 7, v3'); a('v_xor_b32 v11, v11, v12'); a('v_lshlrev_b32 v11, 4, v11'); a('v_lshl_add_u32 v13, v10, 10, v11')
    a('s_lshr_b32 s48, s2, 5'); a('s_lshl_b32 s48, s48, 7'); a(f's_lshl_b32 s49, s{sR}, 17'); a('s_add_u32 s48, s48, s49'); a(f's_lshl_b32 s49, s{sR}, 14')
    WOB = int(os.environ.get('WOB', '2'))
    for q in range(16):
        a(f's_add_u32 m0, s49, {WOL + q*1024}'); a(f's_add_u32 s50, s48, {q*8192}')
        a(f'buffer_load_dwordx4 v13, s[{WO}:{WO+3}], s50 offen lds')
        if q % WOB == WOB - 1: a('s_waitcnt vmcnt(0)')
    a('s_waitcnt vmcnt(0)'); lds_add(a, C_WO, 10)
    one_wave(a, 8, lambda: poll_go(a, W_GO1, T), C_H1, T, sleep=4)
    lds_wait(a, C_Q, 4, T)
    stp(a, 'mid', 2); stp(a, 'b2', 1)
    a.label('L_b2')
    a.vm_reset()
    a(f's_lshl_b32 s48, s{sPOS}, 5'); a(f's_mul_i32 s49, s{sR}, {16*BLK}'); a('s_add_u32 s49, s49, s48')
    a(f's_add_u32 s50, s49, {U1}'); a(f's_add_u32 s52, s49, {ZT}')
    a(f's_mul_i32 s51, s{sR}, {64*BLK}'); a('s_add_u32 s51, s51, s48'); a(f's_add_u32 s51, s51, {WT}')
    a.vmem(f'buffer_load_dwordx4 {vr(ARE,4)}, v{VU}, s[{WS}:{WS+3}], s50 offen sc1', 'u'); a.vmem(f'buffer_load_dwordx4 {vr(AIM,4)}, v{VU}, s[{WS}:{WS+3}], s50 offen offset:16 sc1', 'u')
    acc = lambda nt, c: ACC + 8 * nt + 4 * c
    def cmul(nt, cre, sim, sign):
        for hh in range(2):
            for e in range(2):
                re = acc(nt, 0) + 2 * hh + e; im = acc(nt, 1) + 2 * hh + e; c = cre + 4 * nt + 2 * hh + e; s = sim + 4 * nt + 2 * hh + e
                a(f'v_mul_f32 v{T+e}, v{re}, v{c}'); a(f'v_mul_f32 v{T+2+e}, v{im}, v{c}')
                a(f'v_fma_f32 v{T+e}, ' + ('-' if sign > 0 else '') + f'v{im}, v{s}, v{T+e}')
                a(f'v_fma_f32 v{T+2+e}, ' + ('-' if sign < 0 else '') + f'v{re}, v{s}, v{T+2+e}')
            yield hh
    def group_sync():
        a('s_waitcnt lgkmcnt(0)'); lds_add(a, C_X, 12); a('s_setprio 0'); a(f's_add_u32 s{sXT}, s{sXT}, 4'); lds_wait(a, C_X, f's{sXT}', 12, sleep=1)
        if bp: a(f's_setprio {bp}')
    def twiddle_to_lds(cre, sim, sign, ldsbase):
        a(f'v_add_u32 v14, {ldsbase}, v{VWR}')
        for nt in range(2):
            for hh in cmul(nt, cre, sim, sign):
                a(f'v_cvt_pk_bf16_f32 v{PK+4*nt+hh}, v{T}, v{T+1}'); a(f'v_cvt_pk_bf16_f32 v{PK+4*nt+2+hh}, v{T+2}, v{T+3}')
            a(f'ds_write_b64 v14, {vr(PK+4*nt,2)} offset:{nt*2304}'); a(f'ds_write_b64 v14, {vr(PK+4*nt+2,2)} offset:{4608 + nt*2304}')
    fr = lambda c, nt, kap: FR + 16 * c + 8 * nt + 4 * kap
    def read_frags(ldsbase):
        a(f'v_add_u32 v15, {ldsbase}, v{VRD}')
        for nt in range(2):
            for kap in range(2):
                for c in range(2):
                    a(f'ds_read_b128 {vr(fr(c,nt,kap),4)}, v15 offset:{c*4608 + nt*2304 + kap*64}')
    a.vm_wait('u')
    stp(a, 'mid', 3); stp(a, 'b2', 2)
    if bp: a(f's_setprio {bp}')
    for nt in range(2):
        C, S_, nS = F32[nt]
        a(f'{M16} {vr(acc(nt,0),4)}, {vr(ARE,4)}, {vr(C,4)}, 0'); a(f'{M16} {vr(acc(nt,1),4)}, {vr(AIM,4)}, {vr(C,4)}, 0')
    for nt in range(2):
        C, S_, nS = F32[nt]
        a(f'{M16} {vr(acc(nt,0),4)}, {vr(AIM,4)}, {vr(S_,4)}, {vr(acc(nt,0),4)}'); a(f'{M16} {vr(acc(nt,1),4)}, {vr(ARE,4)}, {vr(nS,4)}, {vr(acc(nt,1),4)}')
    twiddle_to_lds(TW1C, TW1S, -1, BEX0)
    a.vmem(f'buffer_load_dwordx4 {vr(WR,4)}, v{VW}, s[{WS}:{WS+3}], s51 offen sc1', 'w'); a.vmem(f'buffer_load_dwordx4 {vr(WI,4)}, v{VW}, s[{WS}:{WS+3}], s51 offen offset:16 sc1', 'w')
    group_sync()
    stp(a, 'b2', 3)
    read_frags(BEX0)
    a('s_waitcnt lgkmcnt(0)')
    for kap in range(2):
        C, S_, nS = F64[kap]
        for nt in range(2):
            a(f'{M16} {vr(acc(nt,0),4)}, {vr(C,4)}, {vr(fr(0,nt,kap),4)}, ' + ('0' if kap == 0 else vr(acc(nt,0),4)))
            a(f'{M16} {vr(acc(nt,1),4)}, {vr(C,4)}, {vr(fr(1,nt,kap),4)}, ' + ('0' if kap == 0 else vr(acc(nt,1),4)))
        for nt in range(2):
            a(f'{M16} {vr(acc(nt,0),4)}, {vr(S_,4)}, {vr(fr(1,nt,kap),4)}, {vr(acc(nt,0),4)}')
            a(f'{M16} {vr(acc(nt,1),4)}, {vr(nS,4)}, {vr(fr(0,nt,kap),4)}, {vr(acc(nt,1),4)}')
    a.vm_wait('w'); a('s_nop 3')
    for q in range(4):
        a(f'v_lshlrev_b32 v{WC+2*q}, 16, v{WR+q}'); a(f'v_and_b32 v{WC+2*q+1}, 0xffff0000, v{WR+q}')
        a(f'v_lshlrev_b32 v{WS_+2*q}, 16, v{WI+q}'); a(f'v_and_b32 v{WS_+2*q+1}, 0xffff0000, v{WI+q}')
    special, joined = L('pk0'), L('pk0j')
    a(f's_cmp_eq_u32 s{sPOS}, 0'); a(f's_cbranch_scc1 {special}')
    twiddle_to_lds(WC, WS_, +1, BEX1)
    a(f's_branch {joined}')
    a.label(special)
    W2 = PK; M = 32
    a('s_add_u32 s51, s51, 8192')
    a(f'buffer_load_dwordx4 {vr(W2,4)}, v{VW}, s[{WS}:{WS+3}], s51 offen sc1'); a(f'buffer_load_dwordx4 {vr(W2+4,4)}, v{VW}, s[{WS}:{WS+3}], s51 offen offset:16 sc1')
    a(f'v_lshlrev_b32 v14, 2, v{I}'); a('v_lshl_add_u32 v14, v2, 11, v14'); a(f'v_lshl_add_u32 v14, v{G}, 9, v14')
    a(f'v_add_u32 v15, {BEX1}, v14')
    a('s_mov_b32 s48, 0x05040100'); a('s_mov_b32 s49, 0x07060302')
    a('s_waitcnt vmcnt(0)')
    for nt in range(2):
        for r in range(4):
            jj = 4 * nt + r; q = jj >> 1; sel = 's49' if jj & 1 else 's48'; off = 64 * nt + 128 * r
            a(f'v_cvt_pk_bf16_f32 v{M}, v{acc(nt,0)+r}, v{acc(nt,1)+r}'); a(f'v_perm_b32 v{M+1}, v{WI+q}, v{WR+q}, {sel}'); a(f'v_perm_b32 v{M+2}, v{W2+4+q}, v{W2+q}, {sel}')
            a(f'ds_write_b32 v15, v{M} offset:{WPR - BEX1 + off}'); a(f'ds_write_b32 v15, v{M+1} offset:{EXC - BEX1 + off}'); a(f'ds_write_b32 v15, v{M+2} offset:{off}')
            a('s_nop 0')
    group_sync()
    for nt in range(2):
        for r in range(4):
            jj = 4 * nt + r; q = jj >> 1; off = 64 * nt + 128 * r
            xr, xi = acc(nt, 0) + r, acc(nt, 1) + r; a0, b0 = WC + jj, WS_ + jj
            a(f'v_sub_u32 v{M}, {8192 - off}, v14'); a(f'v_and_b32 v{M}, 8191, v{M}'); a(f'v_add_u32 v{M}, {BEX1}, v{M}')
            a(f'ds_read_b32 v{M+1}, v{M} offset:{WPR - BEX1}'); a(f'ds_read_b32 v{M+2}, v{M} offset:{EXC - BEX1}'); a(f'ds_read_b32 v{M+3}, v{M}')
            if jj & 1: a(f'v_and_b32 v{M+4}, 0xffff0000, v{W2+q}'); a(f'v_and_b32 v{M+5}, 0xffff0000, v{W2+4+q}')
            else:      a(f'v_lshlrev_b32 v{M+4}, 16, v{W2+q}'); a(f'v_lshlrev_b32 v{M+5}, 16, v{W2+4+q}')
            a('s_waitcnt lgkmcnt(0)')
            a(f'v_lshlrev_b32 v{M+6}, 16, v{M+1}'); a(f'v_and_b32 v{M+7}, 0xffff0000, v{M+1}')
            a(f'v_lshlrev_b32 v{M+8}, 16, v{M+2}'); a(f'v_and_b32 v{M+9}, 0xffff0000, v{M+2}')
            a(f'v_lshlrev_b32 v{M+10}, 16, v{M+3}'); a(f'v_and_b32 v{M+11}, 0xffff0000, v{M+3}')
            a(f'v_add_f32 v{M+8}, v{a0}, v{M+8}'); a(f'v_sub_f32 v{M+9}, v{b0}, v{M+9}')
            a(f'v_add_f32 v{M+10}, v{M+4}, v{M+10}'); a(f'v_sub_f32 v{M+11}, v{M+5}, v{M+11}')
            a(f'v_add_f32 v{M+1}, v{M+8}, v{M+10}'); a(f'v_add_f32 v{M+2}, v{M+9}, v{M+11}')
            a(f'v_sub_f32 v{M+3}, v{M+8}, v{M+10}'); a(f'v_sub_f32 v{M+4}, v{M+9}, v{M+11}')
            a(f'v_mul_f32 v{M+8}, v{M+1}, v{xr}'); a(f'v_mul_f32 v{M+9}, v{M+1}, v{xi}')
            a(f'v_fma_f32 v{M+8}, -v{M+2}, v{xi}, v{M+8}'); a(f'v_fma_f32 v{M+9}, v{M+2}, v{xr}, v{M+9}')
            a(f'v_fma_f32 v{M+8}, v{M+3}, v{M+6}, v{M+8}'); a(f'v_fma_f32 v{M+9}, v{M+4}, v{M+6}, v{M+9}')
            a(f'v_fma_f32 v{M+8}, v{M+4}, v{M+7}, v{M+8}'); a(f'v_fma_f32 v{M+9}, -v{M+3}, v{M+7}, v{M+9}')
            a(f'v_mul_f32 v{xr}, {fl(0.125)}, v{M+8}'); a(f'v_mul_f32 v{xi}, {fl(0.125)}, v{M+9}')
    group_sync()
    a(f'v_add_u32 v14, {BEX1}, v{VWR}')
    for nt in range(2):
        for hh in range(2):
            a(f'v_cvt_pk_bf16_f32 v{PK+4*nt+hh}, v{acc(nt,0)+2*hh}, v{acc(nt,0)+2*hh+1}'); a(f'v_cvt_pk_bf16_f32 v{PK+4*nt+2+hh}, v{acc(nt,1)+2*hh}, v{acc(nt,1)+2*hh+1}')
        a(f'ds_write_b64 v14, {vr(PK+4*nt,2)} offset:{nt*2304}'); a(f'ds_write_b64 v14, {vr(PK+4*nt+2,2)} offset:{4608 + nt*2304}')
    a.label(joined)
    group_sync()
    stp(a, 'b2', 4)
    read_frags(BEX1)
    a('s_waitcnt lgkmcnt(0)')
    for kap in range(2):
        C, S_, nS = F64[kap]
        for nt in range(2):
            a(f'{M16} {vr(acc(nt,0),4)}, {vr(fr(0,nt,kap),4)}, {vr(C,4)}, ' + ('0' if kap == 0 else vr(acc(nt,0),4)))
            a(f'{M16} {vr(acc(nt,1),4)}, {vr(fr(1,nt,kap),4)}, {vr(C,4)}, ' + ('0' if kap == 0 else vr(acc(nt,1),4)))
        for nt in range(2):
            a(f'{M16} {vr(acc(nt,0),4)}, {vr(fr(1,nt,kap),4)}, {vr(nS,4)}, {vr(acc(nt,0),4)}')
            a(f'{M16} {vr(acc(nt,1),4)}, {vr(fr(0,nt,kap),4)}, {vr(S_,4)}, {vr(acc(nt,1),4)}')
    RRE, RIM = ARE, AIM
    for nt in range(2):
        for hh in cmul(nt, TW2C, TW2S, +1):
            a(f'v_cvt_pk_bf16_f32 v{RRE+2*nt+hh}, v{T}, v{T+1}'); a(f'v_cvt_pk_bf16_f32 v{RIM+2*nt+hh}, v{T+2}, v{T+3}')
    for mt in range(2):
        C, S_, nS = F32[mt]
        a(f'{M16} {vr(acc(mt,0),4)}, {vr(C,4)}, {vr(RRE,4)}, 0'); a(f'{M16} {vr(acc(mt,1),4)}, {vr(C,4)}, {vr(RIM,4)}, 0')
    for mt in range(2):
        C, S_, nS = F32[mt]
        a(f'{M16} {vr(acc(mt,0),4)}, {vr(nS,4)}, {vr(RIM,4)}, {vr(acc(mt,0),4)}'); a(f'{M16} {vr(acc(mt,1),4)}, {vr(S_,4)}, {vr(RRE,4)}, {vr(acc(mt,1),4)}')
    for c in range(2):
        for mt in range(2):
            for hh in range(2):
                a(f'v_cvt_pk_bf16_f32 v{PK+4*c+2*mt+hh}, v{acc(mt,c)+2*hh}, v{acc(mt,c)+2*hh+1}')
    a('s_setprio 0')
    a(f'buffer_store_dwordx4 {vr(PK,4)}, v{VU}, s[{WS}:{WS+3}], s52 offen sc1'); a(f'buffer_store_dwordx4 {vr(PK+4,4)}, v{VU}, s[{WS}:{WS+3}], s52 offen offset:16 sc1')
    a('s_waitcnt vmcnt(0)')
    stp(a, 'b2', 5)
    def pub_z():
        tree_arrive(a, W_H3, W_TOP + 128, W_GO3, 32, 12); a('s_mov_b64 exec, 1')
    lds_arrive(a, C_H3, 4, pub_z, 10, mod4=True)
    if 'wb' in DG:
        skip = L('wb')
        a('s_lshr_b32 s48, s2, 3'); a(f's_or_b32 s48, s48, s{sR}'); a('s_cmp_lg_u32 s48, 0'); a(f's_cbranch_scc1 {skip}')
        a('buffer_wbl2 sc1'); a('s_waitcnt vmcnt(0)')
        a.label(skip)
    stp(a, 'main', 3); stp(a, 'b2', 6)

AQ, AKB, AVB, AS, AO, AP, AE, AvV, AT0, AvC, AvOne, AvF, AvR = 4, (8, 12), (16, 24), (32, 48), 64, 80, 88, 94, 95, 96, 97, 98, 99
sK, sV, sC, sLK, sLV, sBIG, sVM, sKM, sIT, sEP = 48, 49, 50, 51, 52, 58, 60, 62, 64, 65
def att_ids(a):
    a('s_and_b32 s60, s2, 7'); a('s_lshl_b32 s60, s60, 2'); a('s_bfe_u32 s61, s2, 0x20003'); a('s_add_u32 s60, s60, s61')
    a('s_lshr_b32 s61, s2, 5'); a('s_lshl_b32 s61, s61, 3'); a(f's_add_u32 s61, s61, s{sW}')
    a('s_lshl_b32 s53, s60, 16')
    a(f's_lshr_b32 s62, s{sW}, 1'); a(f's_and_b32 s63, s{sW}, 1')
    a(f's_lshl_b32 s{sLK}, s62, 10'); a('s_lshl_b32 s64, s63, 9'); a(f's_add_u32 s{sLK}, s{sLK}, s64')
    a(f's_lshl_b32 s{sLV}, s62, 11'); a('s_lshl_b32 s64, s63, 10'); a(f's_add_u32 s{sLV}, s{sLV}, s64'); a(f's_add_u32 s{sLV}, s{sLV}, {RING + 4096}')
    a(f's_add_u32 s{sK}, s53, s{sLK}'); a(f's_add_u32 s{sV}, s{sK}, {VF}'); a(f's_add_u32 s{sK}, s{sK}, {KF}'); a(f's_add_u32 s{sLK}, s{sLK}, {RING}')
    a('s_lshl_b32 s64, s61, 10'); a('s_add_u32 s54, s53, s64'); a(f's_add_u32 s54, s54, {QF}')
    a('s_lshl_b32 s64, s61, 15'); a('s_lshl_b32 s65, s60, 10'); a('s_add_u32 s55, s64, s65'); a(f's_add_u32 s55, s55, {OF}')
    a('s_lshr_b32 s64, s60, 2'); a('s_lshl_b32 s64, s64, 7'); a(f's_add_u32 s59, s64, {FKVF}')
    a('s_lshr_b32 s65, s2, 5'); a('s_lshl_b32 s65, s65, 4'); a('s_add_u32 s56, s64, s65'); a(f's_add_u32 s56, s56, {FQ}')
    a('s_lshl_b32 s64, s61, 7'); a('s_lshl_b32 s65, s60, 2'); a('s_add_u32 s57, s64, s65'); a(f's_add_u32 s57, s57, {FO}')
    a(f's_mov_b32 s{sBIG}, 0x7ff00000'); a(f's_mov_b32 s{sVM}, 0xffff'); a(f's_mov_b32 s{sVM+1}, 0xffff'); a(f's_mov_b32 s{sKM}, -1'); a(f's_mov_b32 s{sKM+1}, 0')
    a(f's_mov_b32 s{sC}, 0')
def att_dma(slot, guard, partner=False):
    SC = '' if 'nosc1' in DG else ' sc1'
    Ls = []; ko, vo = f's{sK}', f's{sV}'
    if guard:
        Ls += [f's_cmp_lt_u32 s{sC}, 16', f's_cselect_b32 s66, s{sK}, s{sBIG}', f's_cselect_b32 s67, s{sV}, s{sBIG}']; ko, vo = 's66', 's67'
    dk, dv = (-2048, -4096) if partner else (0, 0)
    if partner:
        Ls += [f's_sub_u32 s66, s{sK}, 2048', f's_sub_u32 s67, s{sV}, 2048']; ko, vo = 's66', 's67'
    Ls += [f's_add_u32 s68, s{sLV}, {slot*SLOTB + dv}',
           [f's_add_u32 m0, s{sLK}, {slot*SLOTB + dk}', f's_mov_b64 exec, s[{sKM}:{sKM+1}]', f'buffer_load_dwordx4 v1, s[{WS}:{WS+3}], {ko} offen{SC} lds',
            's_mov_b32 m0, s68', f's_mov_b64 exec, s[{sVM}:{sVM+1}]', f'buffer_load_dwordx4 v{AvV}, s[{WS}:{WS+3}], {vo} offen{SC} lds', 's_mov_b64 exec, -1']]
    if not partner: Ls += [f's_add_u32 s{sK}, s{sK}, 4096', f's_add_u32 s{sV}, s{sV}, 4096', f's_add_u32 s{sC}, s{sC}, 1']
    return Ls
def att_vaddr(a):
    a(f'v_lshrrev_b32 v{AvV}, 5, v3'); a(f'v_lshlrev_b32 v{AvV}, 8, v{AvV}'); a(f'v_and_b32 v{AT0}, 15, v3'); a(f'v_lshl_add_u32 v{AvV}, v{AT0}, 4, v{AvV}')

def gen_attention(a):
    Q, KB, VB, S, O, P, E, vV, T0, vC, vOne, vF, vR = AQ, AKB, AVB, AS, AO, AP, AE, AvV, AT0, AvC, AvOne, AvF, AvR
    a.label('L_att_entry')
    att_ids(a)
    a(f's_add_u32 s{sK}, s{sK}, 8192'); a(f's_add_u32 s{sV}, s{sV}, 8192'); a(f's_mov_b32 s{sC}, 2')
    a.label('L_att_entry2')
    att_vaddr(a)
    a(f'v_and_b32 v{T0}, 27, v3'); a(f'v_cmp_eq_u32 vcc, 16, v{T0}'); a(f'v_mov_b32 v{E}, 0x3f803f80'); a(f'v_cndmask_b32 v100, 0, v{E}, vcc')
    for i in range(1, 4): a(f'v_mov_b32 v{100+i}, v100')
    a(f'v_add_u32 v{T0}, s{sLV}, v1')
    a(f's_not_b64 exec, s[{sVM}:{sVM+1}]')
    for slot in range(2): a(f'ds_write_b128 v{T0}, v[100:103] offset:{slot*SLOTB}')
    a('s_mov_b64 exec, -1')
    a(f'v_mov_b32 v{vC}, {C_ATT}'); a(f'v_mov_b32 v{vOne}, 1'); a(f's_mov_b32 s{sEP}, 0'); a(f'v_add_u32 v{vR}, {RING}, v1')
    for i in range(8): a(f'v_mov_b32 v{VB[1]+i}, 0')
    for i in range(16): a(f'v_mov_b32 v{O+i}, 0')
    for i in range(8): a(f'v_mov_b32 v{P+i}, 0')
    for i in range(6): a(f'v_mov_b32 v{E+i}, 0')
    one_wave(a, 0, lambda: poll_flags(a, 's56', 4, 104, 105), C_FQ, 104)
    stp(a, 'mid', 4); stp(a, 'ent', 2)
    a(f'buffer_load_dwordx4 {vr(Q,4)}, v1, s[{WS}:{WS+3}], s54 offen' + ('' if 'nosc1' in DG else ' sc1'))
    a('s_waitcnt vmcnt(0) lgkmcnt(0)')
    stp(a, 'ent', 3)
    lds_add(a, C_A0, 104); lds_wait(a, C_A0, 8, 104)
    stp(a, 'mid', 5); stp(a, 'ent', 4)
    emit(a, att_dma(2, False))
    a(f's_not_b64 exec, s[{sVM}:{sVM+1}]')
    for slot in range(2, 4): a(f'ds_write_b128 v{T0}, v[100:103] offset:{slot*SLOTB}')
    a('s_mov_b64 exec, -1')
    rdK = lambda t, buf: f'ds_read_b128 {vr(KB[buf],4)}, v{vR} offset:{((t>>2)&3)*SLOTB + (t&3)*1024}'
    rdV = lambda t, buf, j2: f'ds_read_b128 {vr(VB[buf]+4*j2,4)}, v{vR} offset:{((t>>2)&3)*SLOTB + 4096 + (t&3)*2048 + j2*1024}'
    a(rdK(0, 0)); a(rdV(0, 0, 0)); a(rdV(0, 0, 1)); a(rdK(1, 1))
    a('s_waitcnt lgkmcnt(3)')
    a(f'{M32} {vr(S[0],16)}, {vr(KB[0],4)}, {vr(Q,4)}, 0')
    a('s_nop 7'); a('s_nop 3')
    stp(a, 'main', 4); stp(a, 'mid', 6); stp(a, 'ent', 5)
    def body(t, first):
        cur = t & 1; nxt = cur ^ 1; s = S[cur]
        q = [rdK(t + 2, cur), rdV(t + 1, nxt, 0), rdV(t + 1, nxt, 1)]
        pre = [f's_setprio {3 - ((t + 2) & 3)}', 's_waitcnt lgkmcnt(0)']
        if t % 4 == 0:
            w = ['s_waitcnt vmcnt(2)']
            q = q + [w, ['s_mov_b64 exec, 1', f'ds_add_u32 v{vC}, v{vOne}', 's_mov_b64 exec, -1'], f's_add_u32 s{sEP}, s{sEP}, 8']
        if t % 4 == 1:
            q = q + [f'ds_read_b32 v{vF}, v{vC}']
        if t % 4 == 2:
            lab = L('spin'); ok = L('go')
            pre = pre + [f'v_readfirstlane_b32 s70, v{vF}', f's_cmp_ge_u32 s70, s{sEP}', f's_cbranch_scc1 {ok}', f'{lab}:',
                         f's_add_u32 s{sSPIN}, s{sSPIN}, 1', f's_cmp_gt_u32 s{sSPIN}, {SPIN_MAX}', f's_cbranch_scc1 {ok}',
                         f'ds_read_b32 v{vF}, v{vC}', 's_waitcnt lgkmcnt(0)',
                         f'v_readfirstlane_b32 s70, v{vF}', f's_cmp_ge_u32 s70, s{sEP}', f's_cbranch_scc0 {lab}', f'{ok}:']
            q = q + att_dma(((t + 2) // 4 + 2) % 4, not first)
        def e(i):
            a(f'v_exp_f32 v{E + i % 6}, v{s+i}')
            if i >= 3 and q:
                x = q.pop(0); emit(a, [x])
        c = lambda i: a(f'v_cvt_pk_bf16_f32 v{P+i}, v{E + (2*i) % 6}, v{E + (2*i+1) % 6}')
        emit(a, pre)
        a(f'{M32} {vr(S[nxt],16)}, {vr(KB[nxt],4)}, {vr(Q,4)}, 0')
        c(7)
        e(0); e(1); e(2)
        a(f'{M32} {vr(O,16)}, {vr(VB[nxt]+4,4)}, {vr(P+4,4)}, {vr(O,16)}')
        e(3); c(0); e(4); c(1); e(5); e(6); c(2); e(7); e(8); c(3); e(9); e(10)
        a(f'{M32} {vr(O,16)}, {vr(VB[cur],4)}, {vr(P,4)}, {vr(O,16)}')
        c(4); e(11); e(12); c(5); e(13); e(14); c(6); e(15)
        emit(a, q)
    stp(a, 'att', 1); stp(a, 'att2', 1)
    for t in range(16):
        body(t, True)
        if t in (3, 7, 11): stp(a, 'att', 2 + t // 4)
    stp(a, 'att', 5); stp(a, 'att2', 2)
    if SSET == 'att2':
        for it in range(3):
            for t in range(16):
                body(t, False)
                if t == 7 and it < 2: stp(a, 'att2', 3 + 2 * it)
            if it < 2: stp(a, 'att2', 4 + 2 * it)
    else:
        a(f's_mov_b32 s{sIT}, 3')
        a.label('L_att_loop')
        start = len(a.lines)
        for t in range(16): body(t, False)
        tail = [f's_sub_u32 s{sIT}, s{sIT}, 1', f's_cmp_lg_u32 s{sIT}, 0', 's_cbranch_scc1 L_att_loop']
        bodyl = a.lines[start:]
        emit(a, tail)
        extra = check_loop(bodyl + tail)
        assert extra == 0, extra
    stp(a, 'main', 5); stp(a, 'att', 6); stp(a, 'tail', 1)
    a('s_setprio 0')
    lds_add(a, C_DONE, 104)
    a(f'v_cvt_pk_bf16_f32 v{P+7}, v{E + 14 % 6}, v{E + 15 % 6}'); a('s_nop 1')
    a(f'{M32} {vr(O,16)}, {vr(VB[1]+4,4)}, {vr(P+4,4)}, {vr(O,16)}')
    a('s_waitcnt vmcnt(0) lgkmcnt(0)')
    a('s_nop 7'); a('s_nop 3')
    o = O
    a(f'v_mul_f32 v{T0}, 0, v{o}')
    for i in range(1, 8): a(f'v_fma_f32 v{T0}, v{o+i}, 0, v{T0}')
    a(f'v_cmp_eq_f32 s[66:67], 0, v{T0}')
    a(f'v_mov_b32 v{E}, 0x21800000'); a(f'v_cmp_le_f32 s[68:69], v{E}, v{o+8}')
    a('s_nop 1'); a('s_and_b64 s[66:67], s[66:67], s[68:69]')
    a(f'v_mov_b32 v{E}, 0x5d800000'); a(f'v_cmp_ge_f32 s[68:69], v{E}, v{o+8}')
    a('s_nop 1'); a('s_and_b64 s[66:67], s[66:67], s[68:69]')
    a('s_cmp_eq_u64 s[66:67], -1'); a('s_cbranch_scc0 L_att_fallback')
    a.label('L_att_fin')
    a(f'v_rcp_f32 v{T0}, v{o+8}')
    for i in range(8): a(f'v_mul_f32 v{o+i}, v{o+i}, v{T0}')
    for i in range(4): a(f'v_cvt_pk_bf16_f32 v{P+i}, v{o+2*i}, v{o+2*i+1}')
    a(f'buffer_store_dwordx4 {vr(P,4)}, v1, s[{WS}:{WS+3}], s55 offen sc1')
    stp(a, 'tail', 2)
    a('s_waitcnt vmcnt(0)')
    stp(a, 'tail', 3)
    a('s_mov_b64 exec, 1'); a('v_mov_b32 v6, 0'); a(f'v_mov_b32 v7, s{sTOK}'); a(f'buffer_store_dword v7, v6, s[{WS}:{WS+3}], s57 offen sc1'); a('s_mov_b64 exec, -1')
    stp(a, 'tail', 4)
def gen_fallback(a):
    Q, KB, VB, S, O, P, E, vV = AQ, AKB, AVB, AS, AO, AP, AE, AvV
    q = Q; m = E; o = O
    a.label('L_att_fallback')
    a('s_nop 7'); a('s_nop 7')
    a(f's_add_u32 s66, s53, {KF}'); a(f's_add_u32 s67, s53, {VF}')
    a(f'v_mov_b32 v{m}, 0xff800000')
    a(f's_mov_b32 s{sIT}, 64'); a('s_mov_b32 s68, s66')
    a.label('L_fb_max')
    a(f'buffer_load_dwordx4 {vr(KB[0],4)}, v1, s[{WS}:{WS+3}], s68 offen sc1'); a('s_waitcnt vmcnt(0)')
    a(f'{M32} {vr(S[0],16)}, {vr(KB[0],4)}, {vr(q,4)}, 0')
    a('s_nop 7'); a('s_nop 7')
    for i in range(8): a(f'v_max3_f32 v{m}, v{m}, v{S[0]+2*i}, v{S[0]+2*i+1}')
    a('s_add_u32 s68, s68, 1024'); a(f's_sub_u32 s{sIT}, s{sIT}, 1'); a(f's_cmp_lg_u32 s{sIT}, 0'); a('s_cbranch_scc1 L_fb_max')
    a(f'v_mov_b32 v{m+1}, v{m}'); a('s_nop 1'); a(f'v_permlane32_swap_b32 v{m}, v{m+1}'); a('s_nop 1'); a(f'v_max_f32 v{m}, v{m}, v{m+1}')
    for i in range(16): a(f'v_sub_f32 v{S[1]+i}, 0, v{m}')
    for i in range(16): a(f'v_mov_b32 v{o+i}, 0')
    a(f'v_and_b32 v{m}, 27, v3'); a(f'v_cmp_eq_u32 vcc, 16, v{m}'); a(f'v_mov_b32 v{m+1}, 0x3f803f80'); a('s_nop 1'); a(f'v_cndmask_b32 v{m}, 0, v{m+1}, vcc')
    for i in range(8): a(f'v_mov_b32 v{VB[0]+i}, v{m}')
    a(f's_mov_b32 s{sIT}, 64')
    a.label('L_fb_pv')
    a(f'buffer_load_dwordx4 {vr(KB[0],4)}, v1, s[{WS}:{WS+3}], s66 offen sc1')
    a(f's_mov_b64 exec, s[{sVM}:{sVM+1}]')
    a(f'buffer_load_dwordx4 {vr(VB[0],4)}, v{vV}, s[{WS}:{WS+3}], s67 offen sc1'); a(f'buffer_load_dwordx4 {vr(VB[0]+4,4)}, v{vV}, s[{WS}:{WS+3}], s67 offen offset:512 sc1')
    a('s_mov_b64 exec, -1')
    a('s_waitcnt vmcnt(0)'); a('s_nop 7')
    a(f'{M32} {vr(S[0],16)}, {vr(KB[0],4)}, {vr(q,4)}, {vr(S[1],16)}')
    a('s_nop 7'); a('s_nop 7')
    for i in range(16): a(f'v_exp_f32 v{S[0]+i}, v{S[0]+i}')
    a('s_nop 1')
    for i in range(8): a(f'v_cvt_pk_bf16_f32 v{P+i}, v{S[0]+2*i}, v{S[0]+2*i+1}')
    a('s_nop 1')
    a(f'{M32} {vr(o,16)}, {vr(VB[0],4)}, {vr(P,4)}, {vr(o,16)}'); a(f'{M32} {vr(o,16)}, {vr(VB[0]+4,4)}, {vr(P+4,4)}, {vr(o,16)}')
    a('s_nop 7'); a('s_nop 7')
    a('s_add_u32 s66, s66, 1024'); a('s_add_u32 s67, s67, 1024'); a(f's_sub_u32 s{sIT}, s{sIT}, 1'); a(f's_cmp_lg_u32 s{sIT}, 0'); a('s_cbranch_scc1 L_fb_pv')
    a('s_nop 7'); a('s_nop 7')
    a('s_branch L_att_fin')

def phase3_A(a):
    a.vm_reset()
    a('s_and_b32 s48, s2, 7'); a('s_lshr_b32 s49, s2, 3'); a('s_lshl_b32 s50, s48, 2'); a('s_and_b32 s51, s49, 3'); a('s_add_u32 s50, s50, s51')
    a('s_lshr_b32 s51, s49, 2')
    a('s_lshl_b32 s52, s50, 8'); a(f's_add_u32 s52, s52, {FO}')
    a('v_lshrrev_b32 v7, 5, v3'); a('v_lshlrev_b32 v7, 10, v7'); a('v_bfe_u32 v8, v3, 4, 1'); a('v_lshlrev_b32 v8, 9, v8'); a('v_and_b32 v9, 15, v3'); a('v_lshlrev_b32 v9, 4, v9')
    a('v_add3_u32 v6, v7, v8, v9'); a('v_and_b32 v7, 1, v2'); a('v_lshl_add_u32 v6, v7, 8, v6')
    a('s_lshl_b32 s53, s50, 1'); a(f's_lshr_b32 s54, s{sR}, 1'); a('s_add_u32 s53, s53, s54'); a('s_lshl_b32 s53, s53, 15'); a(f's_add_u32 s53, s53, {OF}')
    a('v_lshrrev_b32 v7, 5, v3'); a('v_lshlrev_b32 v7, 4, v7'); a('v_bfe_u32 v8, v3, 4, 1'); a('v_lshl_add_u32 v7, v8, 2, v7'); a('v_bfe_u32 v9, v3, 2, 2'); a('v_add_u32 v7, v7, v9')
    a('v_lshlrev_b32 v7, 7, v7'); a('v_and_b32 v9, 2, v9'); a('v_lshl_add_u32 v9, v8, 2, v9')
    a('v_bfe_u32 v8, v3, 1, 1'); a('v_lshl_add_u32 v7, v8, 4, v7'); a('v_and_b32 v8, 1, v3'); a('v_lshl_add_u32 v7, v8, 3, v7')
    for nt in range(4):
        a(f'v_xor_b32 v8, {2*nt}, v9'); a(f'v_lshl_add_u32 v{11+nt}, v8, 4, v7')
    OFR = 16; ACC = 80; WF = (96, 112)
    def reads(ks, buf):
        for nt in range(4):
            for rho in range(2):
                a(f'ds_read_b64_tr_b16 {vr(WF[buf]+4*nt+2*rho,2)}, v{11+nt} offset:{WOL + ks*4096 + rho*1024}')
    if 'nob2' in DG: finish(a)
    lds_wait(a, C_WO, 4, 8, sleep=1)
    reads(0, 0)
    one_wave(a, 0, lambda: poll_flags(a, 's52', 64, 8, 9), C_FO, 8)
    stp(a, 'tail', 5)
    stp(a, 'main', 6)
    a.vm_reset()
    for ks in range(16):
        if ks % 2 == 0: a(f's_add_u32 s54, s53, {(ks>>1)*4096}')
        a.vmem(f'buffer_load_dwordx4 {vr(OFR+4*ks,4)}, v6, s[{WS}:{WS+3}], s54 offen offset:{(ks&1)*2048} sc1', f'o{ks}')
    a('v_and_b32 v7, 15, v3'); a('v_lshlrev_b32 v7, 11, v7'); a('v_lshrrev_b32 v8, 4, v3'); a('v_lshl_add_u32 v7, v8, 3, v7')
    a('s_lshl_b32 s53, s50, 6'); a(f's_lshl_b32 s54, s{sR}, 4'); a('s_add_u32 s53, s53, s54'); a('s_lshl_b32 s53, s53, 11'); a('s_lshl_b32 s54, s51, 7'); a('s_add_u32 s53, s53, s54')
    for ks in range(16):
        buf = ks & 1
        if ks < 15: reads(ks + 1, buf ^ 1); a('s_waitcnt lgkmcnt(8)')
        else: a('s_waitcnt lgkmcnt(0)')
        a.vm_wait(f'o{ks}')
        for nt in range(4):
            a(f'{M16} {vr(ACC+4*nt,4)}, {vr(WF[buf]+4*nt,4)}, {vr(OFR+4*ks,4)}, ' + ('0' if ks == 0 else vr(ACC+4*nt,4)))
    stp(a, 'tail', 6)
    for nt in range(4):
        a(f'v_cvt_pk_bf16_f32 v{96+2*nt}, v{ACC+4*nt}, v{ACC+4*nt+1}'); a(f'v_cvt_pk_bf16_f32 v{97+2*nt}, v{ACC+4*nt+2}, v{ACC+4*nt+3}')
        a(f'buffer_store_dwordx2 {vr(96+2*nt,2)}, v7, s[{OUT}:{OUT+3}], s53 offen offset:{nt*32}' + OSC)
    finish(a)

def phase3_B(a):
    a.vm_reset()
    one_wave(a, 8, lambda: poll_go(a, W_GO3, 4, sleep=8), C_H3W, 4, sleep=8)
    stp(a, 'tail', 5)
    stp(a, 'main', 6)
    a(f's_mul_i32 s48, s2, {BLK}'); a(f's_add_u32 s48, s48, {ZT}'); a(f's_lshl_b32 s49, s{sR}, 11'); a('s_add_u32 s50, s48, s49')
    a(f's_add_u32 m0, s49, {ZL}'); a('s_add_u32 s51, s50, 1024')
    a(f'buffer_load_dwordx4 v1, s[{WS}:{WS+3}], s50 offen sc1 lds')
    a(f's_add_u32 m0, s49, {ZL + 1024}'); a('s_nop 0')
    a(f'buffer_load_dwordx4 v1, s[{WS}:{WS+3}], s51 offen sc1 lds')
    A0, A1, B1T, B2T, TWC, TWS, DRE, DIM, PK, RAW = 16, 20, 32, 48, 64, 80, 96, 112, 128, 24
    lds_wait(a, C_DONE, 8, 8, sleep=16)
    stp(a, 'main', 5)
    T = 12
    a('v_and_b32 v8, 15, v3'); a('v_cvt_f32_u32 v8, v8'); a('v_lshrrev_b32 v9, 5, v3'); a('v_cvt_f32_u32 v9, v9')
    a('v_and_b32 v10, 31, v3'); a('v_cvt_f32_u32 v10, v10')
    a('v_bfe_u32 v11, v3, 4, 1'); a('v_cmp_eq_u32 vcc, 0, v11'); a('v_cndmask_b32 v20, 0, -1, vcc'); a('v_not_b32 v21, v20')
    sc = fl(2.0 ** -19)
    a(f'v_mul_f32 v18, {fl(1/16)}, v8'); a('v_mul_f32 v19, 4.0, v9'); a('v_mul_f32 v19, v19, v18')
    for q in range(4):
        a(f'v_mov_b32 v{T}, {fl(q)}'); a(f'v_fma_f32 v{T}, v18, v{T}, v19'); trig_pair(a, T, T + 1, T + 2)
        a(f'v_mul_f32 v{T+1}, {sc}, v{T+1}'); a(f'v_mul_f32 v{T+2}, {sc}, v{T+2}')
        a(f'v_cvt_pk_bf16_f32 v{T+3}, v{T+1}, -v{T+2}'); a(f'v_cvt_pk_bf16_f32 v{T+4}, v{T+2}, v{T+1}')
        a(f'v_and_b32 v{B1T+q}, v{T+3}, v20'); a(f'v_and_b32 v{B1T+4+q}, v{T+3}, v21'); a(f'v_and_b32 v{B1T+8+q}, v{T+4}, v20'); a(f'v_and_b32 v{B1T+12+q}, v{T+4}, v21')
    a(f'v_mul_f32 v18, {fl(1/32)}, v10'); a('v_mul_f32 v19, 4.0, v9'); a('v_mul_f32 v22, v19, v18')
    for kap in range(2):
        for p in range(4):
            for e in range(2):
                j2 = 2 * p + e; cj = 16 * kap + 8 * (j2 >> 2) + (j2 & 3)
                a(f'v_mov_b32 v{T+e}, {fl(cj)}'); a(f'v_fma_f32 v{T+e}, v18, v{T+e}, v22'); trig_pair(a, T + e, T + 2 + e, T + 4 + e)
            a(f'v_cvt_pk_bf16_f32 v{B2T+4*kap+p}, v{T+2}, v{T+3}'); a(f'v_cvt_pk_bf16_f32 v{B2T+8+4*kap+p}, -v{T+4}, -v{T+5}')
    a(f'v_mul_f32 v18, {fl(1/512)}, v8'); a('v_mul_f32 v22, v19, v18')
    for rho in range(16):
        a(f'v_mov_b32 v{T}, {fl(8*(rho>>2) + (rho&3))}'); a(f'v_fma_f32 v{T}, v18, v{T}, v22'); trig_pair(a, T, TWC + rho, TWS + rho)
    a('v_and_b32 v5, 31, v3'); a('v_lshlrev_b32 v5, 5, v5'); a('v_lshrrev_b32 v6, 5, v3'); a('v_lshl_add_u32 v5, v6, 12, v5'); a('v_lshl_add_u32 v5, v2, 2, v5'); a(f'v_add_u32 v5, {ZL}, v5')
    a('v_lshlrev_b32 v6, 2, v2'); a(f'v_add_u32 v6, {ZL + 16}, v6')
    a('v_and_b32 v8, 1, v3'); a('v_lshlrev_b32 v8, 31, v8'); a('v_or_b32 v8, 0x36000000, v8'); a('v_cmp_gt_u32 vcc, 32, v3'); a('v_cndmask_b32 v7, 0, v8, vcc')
    a('s_waitcnt vmcnt(0) lgkmcnt(0)')
    lds_arrive(a, C_Z, 4, lambda: None, 12); lds_wait(a, C_Z, 4, 12)
    for jj in range(8): a(f'ds_read_b32 v{RAW+jj}, v5 offset:{(jj>>1)*1024 + (jj&1)*16}')
    a('ds_read_b32 v9, v6')
    a('s_mov_b32 s48, 0x05040100'); a('s_mov_b32 s49, 0x07060302')
    a('s_waitcnt lgkmcnt(0)')
    for q in range(4):
        a(f'v_perm_b32 v{A0+q}, v{RAW+2*q+1}, v{RAW+2*q}, s48'); a(f'v_perm_b32 v{A1+q}, v{RAW+2*q+1}, v{RAW+2*q}, s49')
    a('v_lshlrev_b32 v10, 16, v9'); a('v_and_b32 v9, 0xffff0000, v9'); a('v_bfe_u32 v8, v3, 4, 1'); a('v_cmp_eq_u32 vcc, 0, v8'); a('v_cndmask_b32 v9, v9, v10, vcc')
    a(f'{M32} {vr(DRE,16)}, {vr(A0,4)}, {vr(B1T,4)}, 0'); a(f'{M32} {vr(DIM,16)}, {vr(A0,4)}, {vr(B1T+8,4)}, 0')
    a(f'{M32} {vr(DRE,16)}, {vr(A1,4)}, {vr(B1T+4,4)}, {vr(DRE,16)}'); a(f'{M32} {vr(DIM,16)}, {vr(A1,4)}, {vr(B1T+12,4)}, {vr(DIM,16)}')
    a(f'v_fma_f32 v{DRE}, v9, v7, v{DRE}')
    n1 = ' neg_lo:[0,1,0] neg_hi:[0,1,0]'
    for p in range(8):
        re = vr(DRE + 2 * p, 2); im = vr(DIM + 2 * p, 2); c = vr(TWC + 2 * p, 2); s = vr(TWS + 2 * p, 2)
        a(f'v_pk_mul_f32 v[16:17], {re}, {c}'); a(f'v_pk_mul_f32 v[18:19], {im}, {c}')
        a(f'v_pk_fma_f32 v[16:17], {im}, {s}, v[16:17]' + n1); a(f'v_pk_fma_f32 v[18:19], {re}, {s}, v[18:19]')
        a(f'v_cvt_pk_bf16_f32 v{PK+p}, v16, v17'); a(f'v_cvt_pk_bf16_f32 v{PK+8+p}, v18, v19')
    a(f'{M32} {vr(DRE,16)}, {vr(PK,4)}, {vr(B2T,4)}, 0'); a(f'{M32} {vr(DRE,16)}, {vr(PK+4,4)}, {vr(B2T+4,4)}, {vr(DRE,16)}')
    a(f'{M32} {vr(DRE,16)}, {vr(PK+8,4)}, {vr(B2T+8,4)}, {vr(DRE,16)}'); a(f'{M32} {vr(DRE,16)}, {vr(PK+12,4)}, {vr(B2T+12,4)}, {vr(DRE,16)}')
    a('v_and_b32 v7, 31, v3'); a('v_lshlrev_b32 v7, 5, v7'); a('v_lshrrev_b32 v8, 5, v3'); a('v_lshl_add_u32 v5, v8, 4, v7')
    a('s_lshr_b32 s48, s2, 6'); a('s_lshl_b32 s48, s48, 2'); a(f's_and_b32 s49, s{sR}, 1'); a('s_lshl_b32 s49, s49, 1')
    a(f's_lshr_b32 s50, s{sR}, 1'); a('s_lshl_b32 s50, s50, 4'); a('s_add_u32 s48, s48, s49'); a('s_add_u32 s48, s48, s50')
    a('s_lshl_b32 s48, s48, 6'); a('s_and_b32 s49, s2, 63'); a('s_add_u32 s48, s48, s49'); a('s_lshl_b32 s48, s48, 11'); a('s_add_u32 s48, s48, 1024')
    a(f's_add_u32 s49, s48, {64*2048}')
    for r in range(2):
        for p in range(4): a(f'v_cvt_pk_bf16_f32 v{PK+4*r+p}, v{DRE+8*r+2*p}, v{DRE+8*r+2*p+1}')
        a(f'v_permlane32_swap_b32 v{PK+4*r}, v{PK+4*r+2}'); a(f'v_permlane32_swap_b32 v{PK+4*r+1}, v{PK+4*r+3}')
    a(f'buffer_store_dwordx4 {vr(PK,4)}, v5, s[{OUT}:{OUT+3}], s48 offen' + OSC); a(f'buffer_store_dwordx4 {vr(PK+4,4)}, v5, s[{OUT}:{OUT+3}], s49 offen' + OSC)
    finish(a)

def gen_fused():
    a = Asm()
    prologue(a)
    phase1_A(a)
    a('s_branch L_att_entry')
    phase1_C(a)
    gen_attention(a)
    skip = L('cend')
    a(f's_cmp_lt_u32 s{sW}, 4'); a(f's_cbranch_scc1 {skip}')
    finish(a)
    a.label(skip)
    phase3_A(a)
    phase1_B(a)
    gen_b2(a)
    phase3_B(a)
    gen_fallback(a)
    a.label('L_end'); a('s_endpgm')
    a.label('L_code_end')
    return a
```

```python
import os, struct
from asmlib import *
from maps import *
DG = os.environ.get('DG', '').split(',')
UPTO = os.environ.get('UPTO', 'all')
M32 = 'v_mfma_f32_32x32x16_bf16'; M16 = 'v_mfma_f32_16x16x32_bf16'
QSCALE = 0x3eb8aa3b
SPIN_MAX = 1 << 17
XL = 0
WL = 65536; WSLOT = 24576
B1X = 0
WPR = 139264; EXC = 148480
WOL = 0
BEX0 = 114688; BEX1 = 123904
CNT = 159936
RING = 65536; SLOTB = 12288
ZL = 148480
LDS_BYTES = 160256
_names = 'ATT Q H3 O Z TOK FAST H1 FQ FO H3W CX U X WO A0 DONE KV FKV'.split()
for _i, _n in enumerate(_names): globals()['C_' + _n] = CNT + 4 * _i
D_TOK = 16
FKVF = FQ + 0x400
W_H1, W_H3, W_XG, W_TOP, W_GO1, W_GO3 = CW, CW + 1024, CW + 2048, CW + 3072, CW + 4096, CW + 5120
VGPRS = 168; BLOCK = 768
FMOD = {'': '', 'nt': ' nt', 'sc0': ' sc0'}[os.environ.get('FMOD', '')]
OSC = ' sc1' if 'osc1' in DG else (' nt' if 'ont' in DG else '')
def f32bits(x): return struct.unpack('<I', struct.pack('<f', x))[0]
def srd(a, d, ptr, size):
    a(f's_mov_b32 s{d}, s{ptr}'); a(f's_mov_b32 s{d+1}, s{ptr+1}'); a(f's_mov_b32 s{d+2}, {size}'); a(f's_mov_b32 s{d+3}, 0x20000')
X, WQ, BX, WSEL, WS, TB, WO, OUT, DBG = 4, 8, 12, 16, 20, 24, 28, 32, 36
sW, sR, sTOK, sTB, sHP, sH3, sPOS, sXT, sSPIN = 40, 41, 42, 43, 44, 45, 46, 47, 71
uid = [0]
def L(name):
    uid[0] += 1
    return f'L_{name}_{uid[0]}'
def emit(a, Ls):
    for x in Ls:
        if isinstance(x, list): emit(a, x)
        else: a(x)
def spin_guard(a, out):
    a(f's_add_u32 s{sSPIN}, s{sSPIN}, 1'); a(f's_cmp_gt_u32 s{sSPIN}, {SPIN_MAX}'); a(f's_cbranch_scc1 {out}')
def get_token(a, v):
    again, ok = L('tok'), L('tokok')
    a.label(again)
    a('s_nop 0'); a(f'v_readfirstlane_b32 s{sTOK}, v{v}'); a('s_nop 0'); a(f's_cmp_lg_u32 s{sTOK}, 0'); a(f's_cbranch_scc1 {ok}')
    spin_guard(a, ok)
    a('s_sleep 2'); a(f'v_mov_b32 v{v}, {D_TOK}'); a(f'buffer_load_dword v{v}, v{v}, s[{DBG}:{DBG+3}], 0 offen sc1'); a('s_waitcnt vmcnt(0)'); a(f's_branch {again}')
    a.label(ok)
def poll_flags(a, soff, n, vt, vt2, hi_stride=0, sleep=1):
    again, ok = L('pf'), L('pfok')
    if n < 64: a(f's_mov_b32 exec_lo, {hex((1 << n) - 1)}'); a('s_mov_b32 exec_hi, 0')
    a(f'v_lshlrev_b32 v{vt}, 2, v3')
    if hi_stride: a(f'v_lshrrev_b32 v{vt2}, 5, v3'); a(f'v_mul_u32_u24 v{vt2}, {hi_stride - 128}, v{vt2}'); a(f'v_add_u32 v{vt}, v{vt}, v{vt2}')
    a.label(again)
    a(f'buffer_load_dword v{vt2}, v{vt}, s[{WS}:{WS+3}], {soff} offen sc1'); a('s_waitcnt vmcnt(0)')
    a(f'v_cmp_ne_u32 vcc, s{sTOK}, v{vt2}'); a('s_nop 1'); a(f's_cbranch_vccz {ok}')
    spin_guard(a, ok)
    a(f's_sleep {sleep}'); a(f's_branch {again}')
    a.label(ok); a('s_mov_b64 exec, -1')
def poll_kvq(a, vt, vt2):
    again, ok = L('pk'), L('pkok')
    a('s_mov_b32 exec_lo, -1'); a('s_mov_b32 exec_hi, 0xf'); a(f'v_lshlrev_b32 v{vt}, 2, v3')
    a('s_sub_u32 s67, s59, 0x400'); a('s_sub_u32 s66, s56, s67'); a('s_sub_u32 s66, s66, 128'); a(f'v_mov_b32 v{vt2}, s66'); a(f'v_add_u32 v{vt2}, v{vt}, v{vt2}')
    a(f'v_add_u32 v{vt}, 0x400, v{vt}'); a('v_cmp_le_u32 vcc, 32, v3'); a(f'v_cndmask_b32 v{vt}, v{vt}, v{vt2}, vcc')
    a.label(again)
    a(f'buffer_load_dword v{vt2}, v{vt}, s[{WS}:{WS+3}], s67 offen sc1'); a('s_waitcnt vmcnt(0)')
    a(f'v_cmp_ne_u32 vcc, s{sTOK}, v{vt2}'); a('s_nop 1'); a(f's_cbranch_vccz {ok}')
    spin_guard(a, ok)
    a('s_sleep 1'); a(f's_branch {again}')
    a.label(ok); a('s_mov_b64 exec, -1')
def tree_arrive(a, woff, top, go, first, va):
    done = L('tree')
    a('s_and_b32 s70, s2, 7'); a(f's_cmp_eq_u32 s70, 0'); a(f's_cselect_b32 s69, {first}, 32'); a('s_lshl_b32 s70, s70, 7'); a(f's_add_u32 s70, s70, {woff}')
    a(f'v_mov_b32 v{va}, 0'); a(f'v_mov_b32 v{va+1}, 1'); a('s_mov_b64 exec, 1')
    a(f'buffer_atomic_add v{va+1}, v{va}, s[{WS}:{WS+3}], s70 offen sc0 sc1'); a('s_waitcnt vmcnt(0)')
    a(f'v_readfirstlane_b32 s70, v{va+1}'); a('s_nop 0'); a('s_add_u32 s70, s70, 1'); a('s_cmp_lg_u32 s70, s69'); a(f's_cbranch_scc1 {done}')
    a(f's_mov_b32 s70, {top}'); a(f'v_mov_b32 v{va+1}, 1')
    a(f'buffer_atomic_add v{va+1}, v{va}, s[{WS}:{WS+3}], s70 offen sc0 sc1'); a('s_waitcnt vmcnt(0)')
    a(f'v_readfirstlane_b32 s70, v{va+1}'); a('s_nop 0'); a('s_cmp_lg_u32 s70, 7'); a(f's_cbranch_scc1 {done}')
    a('s_mov_b64 exec, 0xff'); a(f'v_lshlrev_b32 v{va}, 7, v3'); a(f'v_mov_b32 v{va+1}, s{sTOK}'); a(f's_mov_b32 s70, {go}')
    a(f'buffer_store_dword v{va+1}, v{va}, s[{WS}:{WS+3}], s70 offen sc1')
    a.label(done); a('s_mov_b64 exec, -1')
def poll_go(a, go, vt, sleep=4):
    again, ok = L('pg'), L('pgok')
    a('s_and_b32 s69, s2, 7'); a('s_lshl_b32 s69, s69, 7'); a(f's_add_u32 s69, s69, {go}'); a(f'v_mov_b32 v{vt}, 0')
    a.label(again)
    a(f'buffer_load_dword v{vt+1}, v{vt}, s[{WS}:{WS+3}], s69 offen sc1'); a('s_waitcnt vmcnt(0)')
    a(f'v_readfirstlane_b32 s70, v{vt+1}'); a('s_nop 0'); a(f's_cmp_eq_u32 s70, s{sTOK}'); a(f's_cbranch_scc1 {ok}')
    spin_guard(a, ok)
    a(f's_sleep {sleep}'); a(f's_branch {again}')
    a.label(ok)
def lds_arrive(a, caddr, n, action, vt, group_reg=None, mod4=False):
    skip = L('arr')
    a('s_mov_b64 exec, 1'); a(f'v_mov_b32 v{vt}, {caddr}' if group_reg is None else f'v_mov_b32 v{vt}, s{group_reg}'); a(f'v_mov_b32 v{vt+1}, 1')
    a(f'ds_add_rtn_u32 v{vt+1}, v{vt}, v{vt+1}'); a('s_waitcnt lgkmcnt(0)')
    a(f'v_readfirstlane_b32 s70, v{vt+1}'); a('s_nop 0')
    if mod4: a('s_and_b32 s70, s70, 3')
    a(f's_cmp_lg_u32 s70, {n-1}'); a(f's_cbranch_scc1 {skip}')
    action()
    a.label(skip); a('s_mov_b64 exec, -1')
def lds_set(a, caddr, src, vt):
    a('s_mov_b64 exec, 1'); a(f'v_mov_b32 v{vt}, {caddr}'); a(f'v_mov_b32 v{vt+1}, {src}'); a(f'ds_write_b32 v{vt}, v{vt+1}'); a('s_mov_b64 exec, -1')
def lds_get(a, caddr, sdst, vt):
    a(f'v_mov_b32 v{vt}, {caddr}'); a(f'ds_read_b32 v{vt+1}, v{vt}'); a('s_waitcnt lgkmcnt(0)'); a(f'v_readfirstlane_b32 s{sdst}, v{vt+1}')
def one_wave(a, wave, poll, caddr, vt, sel=None, sleep=1):
    other, done = L('ow'), L('owd')
    a(f's_cmp_lg_u32 s{sW if sel is None else sel}, {wave}'); a(f's_cbranch_scc1 {other}')
    poll(); lds_set(a, caddr, 1, vt); a(f's_branch {done}')
    a.label(other); lds_wait(a, caddr, 1, vt, sleep=sleep)
    a.label(done)
def lds_wait(a, caddr, n, vt, sleep=0):
    again, ok = L('lw'), L('lwok')
    a(f'v_mov_b32 v{vt}, {caddr}')
    a.label(again)
    a(f'ds_read_b32 v{vt+1}, v{vt}'); a('s_waitcnt lgkmcnt(0)'); a(f'v_readfirstlane_b32 s70, v{vt+1}'); a('s_nop 0')
    a(f's_cmp_ge_u32 s70, {n}'); a(f's_cbranch_scc1 {ok}')
    spin_guard(a, ok)
    if sleep: a(f's_sleep {sleep}')
    a(f's_branch {again}')
    a.label(ok)
def lds_add(a, caddr, vt):
    a('s_mov_b64 exec, 1'); a(f'v_mov_b32 v{vt}, {caddr}'); a(f'v_mov_b32 v{vt+1}, 1'); a(f'ds_add_u32 v{vt}, v{vt+1}'); a('s_mov_b64 exec, -1')
SSET = os.environ.get('SSET', 'main')
def stp(a, name, idx):
    if name == SSET: stamp(a, idx)
def finish(a):
    if STAMPS: a('s_waitcnt vmcnt(0)'); stamp(a, 7); stamp_flush(a, 8, 0)
    a('s_endpgm')


def fl(x): return hex(f32bits(float(x)))
def trig_pair(a, ang, dc, ds_):
    a(f'v_cos_f32 v{dc}, v{ang}'); a(f'v_sin_f32 v{ds_}, v{ang}')
def prologue(a):
    a('s_cmp_ge_u32 s2, 256'); a('s_cbranch_scc1 L_end')
    a('s_load_dwordx16 s[48:63], s[0:1], 0'); a('s_load_dwordx2 s[64:65], s[0:1], 64')
    a('v_lshrrev_b32 v2, 6, v0'); a('v_and_b32 v3, 63, v0'); a('v_lshlrev_b32 v1, 4, v3')
    a(f'v_readfirstlane_b32 s{sW}, v2'); stamp(a, 0); stamp_wave(a, sW)
    a(f's_mov_b32 s{sSPIN}, 0'); a(f's_mov_b32 s{sH3}, 0')
    a(f's_lshr_b32 s{sTB}, s2, 3'); a(f's_and_b32 s{sHP}, s2, 7')
    a(f's_and_b32 s{sR}, s{sW}, 3'); a('v_and_b32 v2, 3, v2')
    a(f's_cmp_ge_u32 s{sW}, 8'); a('s_cbranch_scc1 L_B_p1')
    setup_srds(a)
    a(f's_cmp_ge_u32 s{sW}, 4'); a('s_cbranch_scc1 L_C_p1')
def setup_srds(a):
    stp(a, 'boot', 1)
    a('s_waitcnt lgkmcnt(0)')
    stp(a, 'boot', 2)
    srd(a, X, 48, 2048 * 512 * 2); srd(a, WQ, 50, 512 * 1536 * 2); srd(a, BX, 54, 2048 * 512 * 2)
    a(f's_cmp_lt_u32 s{sR}, 2'); a(f's_cselect_b32 s{WSEL}, s56, s58'); a(f's_cselect_b32 s{WSEL+1}, s57, s59')
    a(f's_mov_b32 s{WSEL+2}, {2048*257*2}'); a(f's_mov_b32 s{WSEL+3}, 0x20000')
    srd(a, WS, 64, WS_USED); srd(a, WO, 52, 512 * 512 * 2); srd(a, OUT, 60, 2048 * 1024 * 2); srd(a, DBG, 62, 256)

def b1_row0(a, d):
    a(f's_lshr_b32 s{d}, s2, 6'); a(f's_lshl_b32 s{d}, s{d}, 2'); a(f's_and_b32 s{d+1}, s{sR}, 1'); a(f's_lshl_b32 s{d+1}, s{d+1}, 1'); a(f's_add_u32 s{d}, s{d}, s{d+1}')
    a(f's_lshr_b32 s{d+1}, s{sR}, 1'); a(f's_lshl_b32 s{d+1}, s{d+1}, 4'); a(f's_add_u32 s{d}, s{d}, s{d+1}')
    a(f's_lshl_b32 s{d}, s{d}, 6'); a(f's_and_b32 s{d+1}, s2, 63'); a(f's_add_u32 s{d}, s{d}, s{d+1}')

def gemm_xaddr(a, d):
    a('v_and_b32 v4, 31, v3'); a('v_lshrrev_b32 v5, 5, v3'); a('v_bfe_u32 v6, v4, 1, 3'); a('v_xor_b32 v5, v5, v6')
    a('v_lshlrev_b32 v5, 4, v5'); a('v_lshl_add_u32 v5, v4, 7, v5'); a('v_and_b32 v6, 1, v2'); a('v_lshl_add_u32 v5, v6, 12, v5')
    for ks in range(4): a(f'v_xor_b32 v{d+ks}, {32*ks}, v5')
def qkv_addrs(a):
    a(f's_lshl_b32 s48, s{sTB}, 1'); a(f's_and_b32 s49, s{sR}, 1'); a('s_add_u32 s48, s48, s49'); a('s_lshl_b32 s48, s48, 10')
    a(f's_lshl_b32 s49, s{sHP}, 1'); a(f's_lshr_b32 s50, s{sR}, 1'); a('s_add_u32 s49, s49, s50'); a('s_lshl_b32 s49, s49, 17'); a('s_add_u32 s48, s48, s49')
    a(f's_add_u32 s49, s48, {QF}'); a(f's_add_u32 s50, s48, {QF+65536}')
    a(f's_add_u32 s51, s48, {KF}'); a(f's_add_u32 s52, s48, {KF+65536}'); a(f's_add_u32 s53, s48, {VF}')
def both(a, fast, slow):
    sl, jn = L('slow'), L('join')
    a('s_cmp_eq_u32 s54, 0'); a(f's_cbranch_scc1 {sl}')
    fast(); a(f's_branch {jn}')
    a.label(sl); slow()
    a.label(jn)
def publish(a, base):
    def act():
        a(f's_lshl_b32 s48, s{sHP}, 7'); a(f's_lshl_b32 s55, s{sTB}, 2'); a('s_add_u32 s48, s48, s55'); a(f's_add_u32 s48, s48, {base}')
        a('v_mov_b32 v6, 0'); a(f'v_mov_b32 v7, s{sTOK}')
        both(a, lambda: a(f'buffer_store_dword v7, v6, s[{WS}:{WS+3}], s48 offen'), lambda: a(f'buffer_store_dword v7, v6, s[{WS}:{WS+3}], s48 offen sc1'))
    return act

def phase1_A(a):
    a.vm_reset()
    skip = L('w0')
    a(f's_cmp_lg_u32 s{sW}, 0'); a(f's_cbranch_scc1 {skip}')
    a('v_mov_b32 v5, 0'); a('s_mov_b32 exec_lo, -1'); a('s_mov_b32 exec_hi, 0'); a('v_lshlrev_b32 v4, 2, v3'); a(f'v_add_u32 v4, {CNT}, v4'); a('ds_write_b32 v4, v5'); a('s_mov_b64 exec, -1')
    a.label(skip)
    gemm_xaddr(a, 96)
    a('v_and_b32 v4, 15, v3'); a('v_lshrrev_b32 v5, 5, v3'); a('v_lshlrev_b32 v5, 3, v5'); a('v_lshrrev_b32 v6, 2, v4'); a('v_add_u32 v5, v5, v6')
    a('v_bfe_u32 v7, v3, 4, 1'); a('v_lshlrev_b32 v7, 5, v7'); a('v_and_b32 v8, 3, v4'); a('v_lshl_add_u32 v7, v8, 3, v7'); a(f'v_add_u32 v7, {WL}, v7')
    a('v_lshrrev_b32 v8, 1, v2')
    a('v_xor_b32 v9, v8, v6'); a('v_lshlrev_b32 v9, 6, v9'); a('v_lshl_add_u32 v9, v5, 8, v9'); a('v_add_u32 v100, v9, v7'); a('v_xor_b32 v101, 128, v100')
    qkv_addrs(a)
    a('v_bfe_u32 v5, v3, 4, 1'); a('v_lshlrev_b32 v5, 16, v5'); a('v_lshrrev_b32 v6, 5, v3'); a('v_lshlrev_b32 v6, 8, v6')
    a('v_and_b32 v7, 15, v3'); a('v_lshlrev_b32 v7, 4, v7'); a('v_add3_u32 v5, v5, v6, v7')
    a('s_waitcnt lgkmcnt(0)'); a('s_barrier')
    stp(a, 'main', 1); stp(a, 'p1', 1)
    XF = (64, 68); WF = (72, 80); AK, AV = 16, 32
    def reads(n, ks, buf):
        slot = (n % 3) * WSLOT
        a(f'ds_read_b128 {vr(XF[buf],4)}, v{96+ks} offset:{XL + n*8192}')
        for jb in range(2):
            for rho in range(2): a(f'ds_read_b64_tr_b16 {vr(WF[buf]+4*jb+2*rho,2)}, v{100+jb} offset:{slot + (16*ks+4*rho)*256}')
    def mfmas(buf, first):
        x = vr(XF[buf], 4)
        a(f'{M32} {vr(AK,16)}, {vr(WF[buf],4)}, {x}, ' + ('0' if first else vr(AK,16)))
        a(f'{M32} {vr(AV,16)}, {x}, {vr(WF[buf]+4,4)}, ' + ('0' if first else vr(AV,16)))
    reads(0, 0, 0)
    step = 0
    for n in range(8):
        for ks in range(4):
            buf = step & 1
            if ks < 3:
                reads(n, ks + 1, buf ^ 1); a('s_waitcnt lgkmcnt(5)'); mfmas(buf, step == 0)
            else:
                a('s_waitcnt lgkmcnt(0)')
                if n < 7:
                    a('s_barrier')
                    reads(n + 1, 0, buf ^ 1)
                if n in (0, 3): stp(a, 'p1', 2 + (n > 0))
                mfmas(buf, False)
            step += 1
    stp(a, 'main', 2); stp(a, 'mid', 1); stp(a, 'p1', 4)
    lds_get(a, C_TOK, sTOK, 8); lds_get(a, C_FAST, 54, 8)
    for p in range(8): a(f'v_cvt_pk_bf16_f32 v{112+p}, v{AK+2*p}, v{AK+2*p+1}')
    for p in range(8): a(f'v_cvt_pk_bf16_f32 v{120+p}, v{AV+2*p}, v{AV+2*p+1}')
    def kv(mod):
        a(f'buffer_store_dwordx4 v[112:115], v1, s[{WS}:{WS+3}], s51 offen{mod}'); a(f'buffer_store_dwordx4 v[116:119], v1, s[{WS}:{WS+3}], s52 offen{mod}')
        a(f'buffer_store_dwordx4 v[120:123], v5, s[{WS}:{WS+3}], s53 offen{mod}'); a(f'buffer_store_dwordx4 v[124:127], v5, s[{WS}:{WS+3}], s53 offen offset:512{mod}')
    both(a, lambda: kv(FMOD), lambda: kv(' sc1'))
    a('s_waitcnt vmcnt(0)')
    stp(a, 'mid', 2)
    lds_arrive(a, C_KV, 4, publish(a, FKVF), 8)
    stp(a, 'mid', 3)

def phase1_C(a):
    a.label('L_C_p1')
    a.vm_reset()
    if 'nopf' not in DG:
        skip = L('pf')
        a(f's_cmp_lg_u32 s{sW}, 4'); a(f's_cbranch_scc1 {skip}')
        a('s_getpc_b64 s[24:25]'); a.label('L_pf_base'); a('s_mov_b32 s26, L_code_end-L_pf_base'); a('s_mov_b32 s27, 0x20000')
        a('s_lshr_b32 s48, s2, 3'); a('s_lshl_b32 s48, s48, 11')
        a('buffer_load_dwordx4 v[148:151], v1, s[24:27], s48 offen'); a('buffer_load_dwordx4 v[152:155], v1, s[24:27], s48 offen offset:1024')
        a.label(skip)
    skip = L('tw')
    a(f's_cmp_lg_u32 s{sW}, 4'); a(f's_cbranch_scc1 {skip}'); a('s_cmp_lg_u32 s2, 0'); a(f's_cbranch_scc1 {skip}')
    a('s_memrealtime s[48:49]')
    for q in range(4): a(f'v_mov_b32 v{4+q}, 0')
    for q in range(4):
        a(f's_mov_b32 s50, {CW + 1024*q}'); a(f'buffer_store_dwordx4 v[4:7], v1, s[{WS}:{WS+3}], s50 offen sc1')
    a('s_waitcnt vmcnt(0) lgkmcnt(0)'); a('s_or_b32 s48, s48, 1')
    a(f'v_mov_b32 v4, {D_TOK}'); a('v_mov_b32 v5, s48'); a('s_mov_b64 exec, 1'); a(f'buffer_store_dword v5, v4, s[{DBG}:{DBG+3}], 0 offen sc1'); a('s_mov_b64 exec, -1')
    a.label(skip)
    FC, FS, F16, TWC, TWS = 16, 24, 32, 40, 48
    K1, H, T = 61, 62, 10
    def b1_consts(piece):
        if piece == 0:
            a(f'v_and_b32 v{K1}, 31, v3'); a(f'v_lshrrev_b32 v{H}, 5, v3'); a(f'v_cvt_f32_u32 v{K1}, v{K1}'); a(f'v_cvt_f32_u32 v{H}, v{H}')
        if piece < 2:
            kap = piece
            a(f'v_mul_f32 v56, {fl(1/32)}, v{K1}'); a(f'v_mul_f32 v57, {fl(8)}, v{H}'); a('v_mul_f32 v57, v57, v56')
            for p in range(4):
                for e in range(2):
                    j = 2 * p + e
                    a(f'v_mov_b32 v{T+e}, {fl(16*kap + j)}'); a(f'v_fma_f32 v{T+e}, v56, v{T+e}, v57'); trig_pair(a, T + e, T + 2 + e, T + 4 + e)
                a(f'v_cvt_pk_bf16_f32 v{FC+4*kap+p}, v{T+2}, v{T+3}'); a(f'v_cvt_pk_bf16_f32 v{FS+4*kap+p}, -v{T+4}, -v{T+5}')
        elif piece < 4:
            part = piece - 2
            a('v_and_b32 v56, 31, v3'); a('v_lshrrev_b32 v57, 1, v56'); a('v_cvt_f32_u32 v57, v57'); a(f'v_mul_f32 v57, {fl(1/16)}, v57')
            a('v_and_b32 v58, 1, v56'); a('v_cvt_f32_u32 v58, v58'); a(f'v_mul_f32 v58, {fl(0.25)}, v58')
            a(f'v_mul_f32 v59, 4.0, v{H}'); a('v_fma_f32 v58, v57, v59, v58')
            a('v_cmp_ge_u32 vcc, 16, v56'); a('v_mov_b32 v60, 1.0'); a('v_cndmask_b32 v60, 0, v60, vcc')
            for p in range(4):
                for e in range(2):
                    j = 2 * p + e; cj = 8 * (j >> 2) + (j & 3)
                    a(f'v_mov_b32 v{T+e}, {fl(cj)}'); a(f'v_fma_f32 v{T+e}, v57, v{T+e}, v58')
                    if part: a(f'v_add_f32 v{T+e}, {fl(-0.25)}, v{T+e}')
                    a(f'v_cos_f32 v{T+2+e}, v{T+e}')
                a(f'v_mul_f32 v{T+2}, v{T+2}, v60'); a(f'v_mul_f32 v{T+3}, v{T+3}, v60')
                a(f'v_cvt_pk_bf16_f32 v{F16+4*part+p}, v{T+2}, v{T+3}')
        else:
            a(f'v_mul_f32 v57, {fl(1/512)}, v{K1}'); a(f'v_mul_f32 v59, 4.0, v{H}'); a('v_mul_f32 v58, v57, v59')
            for r in range(8):
                cj = 8 * (r >> 2) + (r & 3)
                a(f'v_mov_b32 v{T}, {fl(cj)}'); a(f'v_fma_f32 v{T}, v57, v{T}, v58'); trig_pair(a, T, TWC + r, TWS + r)
    QXF = (80, 84); QWF = (88, 92); QA = 64
    gemm_xaddr(a, 96)
    a('v_and_b32 v4, 15, v3'); a('v_lshrrev_b32 v5, 5, v3'); a('v_lshlrev_b32 v5, 3, v5'); a('v_lshrrev_b32 v6, 2, v4'); a('v_add_u32 v5, v5, v6')
    a('v_bfe_u32 v7, v3, 4, 1'); a('v_lshlrev_b32 v7, 5, v7'); a('v_and_b32 v8, 3, v4'); a('v_lshl_add_u32 v7, v8, 3, v7'); a(f'v_add_u32 v7, {WL + 16384}, v7')
    a('v_lshrrev_b32 v8, 1, v2'); a('v_bfe_u32 v9, v3, 3, 1'); a('v_xor_b32 v9, v8, v9'); a('v_lshlrev_b32 v9, 6, v9'); a('v_lshl_add_u32 v9, v5, 7, v9'); a('v_add_u32 v100, v9, v7')
    def qreads(n, ks, buf):
        a(f'ds_read_b128 {vr(QXF[buf],4)}, v{96+ks} offset:{XL + n*8192}')
        for rho in range(2): a(f'ds_read_b64_tr_b16 {vr(QWF[buf]+2*rho,2)}, v100 offset:{(n % 3)*WSLOT + (16*ks+4*rho)*128}')
    def w4(fn):
        skip = L('w4')
        a(f's_cmp_lg_u32 s{sW}, 4'); a(f's_cbranch_scc1 {skip}'); fn(); a.label(skip)
    def duty_token_load():
        a(f'v_mov_b32 v156, {D_TOK}'); a(f'buffer_load_dword v156, v156, s[{DBG}:{DBG+3}], 0 offen sc1')
    def duty_census_add():
        a('s_waitcnt vmcnt(0)'); get_token(a, 156)
        a('s_getreg_b32 s59, hwreg(HW_REG_XCC_ID)'); a('s_and_b32 s59, s59, 7'); a('s_lshl_b32 s59, s59, 3'); a('s_lshl_b64 s[60:61], 1, s59')
        a('s_and_b32 s62, s2, 7'); a('s_lshl_b32 s62, s62, 7'); a(f's_add_u32 s62, s62, {W_XG}')
        a('v_mov_b32 v156, 0'); a('v_mov_b32 v158, s60'); a('v_mov_b32 v159, s61'); a('s_mov_b64 exec, 1')
        a(f'buffer_atomic_add_x2 v[158:159], v156, s[{WS}:{WS+3}], s62 offen sc1'); a('s_mov_b64 exec, -1')
        lds_set(a, C_TOK, f's{sTOK}', 160)
    def duty_census_load():
        a('v_mov_b32 v156, 0'); a(f'buffer_load_dwordx2 v[158:159], v156, s[{WS}:{WS+3}], s62 offen sc1')
    def duty_census_judge():
        a('s_waitcnt vmcnt(0)'); a('s_lshl_b64 s[60:61], s[60:61], 5')
        a('v_readfirstlane_b32 s56, v158'); a('v_readfirstlane_b32 s57, v159'); a('s_nop 0')
        a('s_cmp_eq_u64 s[56:57], s[60:61]'); a('s_cselect_b32 s56, 1, 0')
        if 'nofast' in DG: a('s_mov_b32 s56, 0')
        lds_set(a, C_FAST, 's56', 156)
    def duty_rows():
        b1_row0(a, 48); a('s_lshl_b32 s48, s48, 10')
        a(f's_lshl_b32 s49, s{sR}, 10'); a(f's_add_u32 s49, s49, {B1X}')
        a('s_mov_b32 m0, s49'); a('s_add_u32 s49, s49, 4224')
        a.vmem(f'buffer_load_dwordx4 v1, s[{BX}:{BX+3}], s48 offen lds', 'rows')
        a('s_mov_b32 m0, s49'); a('s_add_u32 s48, s48, 65536')
        a.vmem(f'buffer_load_dwordx4 v1, s[{BX}:{BX+3}], s48 offen lds', 'rows')
        sSH = 57
        a(f's_and_b32 s{sSH}, s2, 1')
        a('s_and_b32 s52, s2, 15'); a('s_lshr_b32 s53, s2, 4'); a('s_lshl_b32 s53, s53, 7'); a('s_add_u32 s52, s52, s53')
        a(f's_and_b32 s53, s{sR}, 1'); a('s_lshl_b32 s53, s53, 4'); a('s_add_u32 s52, s52, s53'); a('s_mul_i32 s52, s52, 514')
        a(f's_lshl_b32 s53, s{sSH}, 1'); a('s_sub_u32 s52, s52, s53')
        a(f's_mul_i32 s53, s{sR}, {4*576}'); a(f's_add_u32 s53, s53, {WPR}')
        a('s_mov_b32 exec_hi, 1')
        for u in range(4):
            a('s_mov_b32 m0, s53'); a('s_add_u32 s53, s53, 576')
            a.vmem(f'buffer_load_dwordx4 v1, s[{WSEL}:{WSEL+3}], s52 offen lds', 'rows')
            if u < 3: a(f's_add_u32 s52, s52, {32*514}')
        a('s_mov_b64 exec, -1')
        a('v_and_b32 v4, 15, v3'); a('v_and_b32 v7, 3, v4'); a('v_lshlrev_b32 v7, 3, v7')
        a('v_lshrrev_b32 v5, 5, v3'); a('v_lshlrev_b32 v5, 3, v5'); a('v_lshrrev_b32 v6, 2, v4'); a('v_add_u32 v5, v5, v6'); a('v_lshlrev_b32 v5, 5, v5')
        a('v_bfe_u32 v6, v3, 4, 1'); a('v_mul_u32_u24 v6, 4224, v6'); a('v_add3_u32 v5, v5, v6, v7')
        a('v_lshlrev_b32 v6, 10, v2'); a('v_add_u32 v5, v5, v6'); a(f'v_add_u32 v8, {B1X}, v5')
        a('v_and_b32 v4, 31, v3'); a('v_lshlrev_b32 v5, 5, v4'); a('v_lshrrev_b32 v4, 3, v4'); a('v_lshl_add_u32 v5, v4, 4, v5')
        a('v_lshrrev_b32 v6, 5, v3'); a(f'v_mul_u32_u24 v6, {2*1088}, v6'); a('v_lshlrev_b32 v7, 2, v2'); a('v_add3_u32 v5, v5, v6, v7'); a(f'v_add_u32 v9, {EXC}, v5')
    duties = {0: [lambda: b1_consts(0)], 1: [lambda: w4(duty_token_load), lambda: b1_consts(1)], 2: [lambda: w4(duty_census_add), duty_rows],
              3: [lambda: b1_consts(2)], 4: [lambda: w4(duty_census_load), lambda: b1_consts(3)], 5: [lambda: b1_consts(4)], 6: [lambda: w4(duty_census_judge)], 7: []}
    a('s_barrier')
    stp(a, 'main', 1)
    qreads(0, 0, 0)
    step = 0
    for n in range(8):
        for ks in range(4):
            buf = step & 1
            if ks < 3:
                qreads(n, ks + 1, buf ^ 1); a('s_waitcnt lgkmcnt(3)')
                a(f'{M32} {vr(QA,16)}, {vr(QWF[buf],4)}, {vr(QXF[buf],4)}, ' + ('0' if step == 0 else vr(QA,16)))
                if ks == 0:
                    for d in duties[n]: d()
            else:
                a('s_waitcnt lgkmcnt(0)')
                if n < 7:
                    a('s_barrier')
                    qreads(n + 1, 0, buf ^ 1)
                a(f'{M32} {vr(QA,16)}, {vr(QWF[buf],4)}, {vr(QXF[buf],4)}, {vr(QA,16)}')
            step += 1
    stp(a, 'main', 2); stp(a, 'mid', 1)
    a('s_waitcnt vmcnt(0)')
    lds_get(a, C_TOK, sTOK, 4); lds_get(a, C_FAST, 54, 4)
    qkv_addrs(a)
    for p in range(16): a(f'v_mul_f32 v{QA+p}, {QSCALE}, v{QA+p}')
    for p in range(8): a(f'v_cvt_pk_bf16_f32 v{112+p}, v{QA+2*p}, v{QA+2*p+1}')
    def qs(mod):
        a(f'buffer_store_dwordx4 v[112:115], v1, s[{WS}:{WS+3}], s49 offen{mod}'); a(f'buffer_store_dwordx4 v[116:119], v1, s[{WS}:{WS+3}], s50 offen{mod}')
    both(a, lambda: qs(FMOD), lambda: qs(' sc1'))
    lds_add(a, C_CX, 4)
    AF, DRE, DIM, PK, D2 = 56, 64, 80, 96, (64, 80)
    for kap in range(2):
        for rho in range(2):
            a(f'ds_read_b64_tr_b16 {vr(AF+4*kap+2*rho,2)}, v8 offset:{(16*kap+4*rho)*32}')
    a('s_waitcnt lgkmcnt(0)')
    a(f'{M32} {vr(DRE,16)}, {vr(AF,4)}, {vr(FC,4)}, 0'); a(f'{M32} {vr(DIM,16)}, {vr(AF,4)}, {vr(FS,4)}, 0')
    a(f'{M32} {vr(DRE,16)}, {vr(AF+4,4)}, {vr(FC+4,4)}, {vr(DRE,16)}'); a(f'{M32} {vr(DIM,16)}, {vr(AF+4,4)}, {vr(FS+4,4)}, {vr(DIM,16)}')
    for p in range(8):
        r0 = 2 * p; c = TWC + (r0 & 7); s = TWS + (r0 & 7)
        a(f'v_pk_mul_f32 v[10:11], {vr(DRE+r0,2)}, {vr(c,2)}'); a(f'v_pk_mul_f32 v[12:13], {vr(DIM+r0,2)}, {vr(c,2)}')
        a(f'v_pk_fma_f32 v[10:11], {vr(DIM+r0,2)}, {vr(s,2)}, v[10:11]')
        a(f'v_pk_fma_f32 v[12:13], {vr(DRE+r0,2)}, {vr(s,2)}, v[12:13] neg_lo:[0,1,0] neg_hi:[0,1,0]')
        a(f'v_cvt_pk_bf16_f32 v{PK+p}, v10, v11'); a(f'v_cvt_pk_bf16_f32 v{PK+8+p}, v12, v13')
    a('s_waitcnt vmcnt(0)'); lds_arrive(a, C_Q, 4, publish(a, FQ), 4)
    stp(a, 'mid', 2)
    for r in range(2): a(f'{M32} {vr(D2[r],16)}, {vr(F16,4)}, {vr(PK+4*r,4)}, 0')
    for r in range(2): a(f'{M32} {vr(D2[r],16)}, {vr(F16+4,4)}, {vr(PK+8+4*r,4)}, {vr(D2[r],16)}')
    a('s_nop 7'); a('s_nop 3'); a('s_mov_b64 exec, 1')
    for r in range(2): a(f'v_mov_b32 v{D2[r]+1}, v{D2[r]+8}')
    a('s_mov_b64 exec, -1')
    for rr in range(8):
        k2 = 4 * (rr >> 2) + ((rr >> 1) & 1)
        a(f'v_cvt_pk_bf16_f32 v{10+(rr&1)}, v{D2[0]+rr}, v{D2[1]+rr}')
        a(f'ds_write_b32 v9, v{10+(rr&1)} offset:{k2*1088 + 16*(rr&1)}')
    a('s_waitcnt lgkmcnt(0)'); lds_add(a, C_CX, 4)
    stp(a, 'mid', 3)
    att_ids(a)
    a(f's_add_u32 s{sK}, s{sK}, 8192'); a(f's_add_u32 s{sV}, s{sV}, 8192'); a(f's_mov_b32 s{sC}, 2')
    lds_wait(a, C_FKV, 1, 4)
    a(f'buffer_load_dwordx4 {vr(AQ,4)}, v1, s[{WS}:{WS+3}], s54 offen' + ('' if 'nosc1' in DG else ' sc1'))
    a('s_branch L_att_entry2')

B2_F32, B2_F64, B2_TW1, B2_TW2 = 88, 112, 136, 152
def b2_consts(a, part, half, t=4):
    I, G, T = t, t + 1, t + 4
    a(f'v_and_b32 v{I}, 15, v3'); a(f'v_lshrrev_b32 v{G}, 4, v3'); a(f'v_cvt_f32_u32 v{I}, v{I}'); a(f'v_cvt_f32_u32 v{G}, v{G}')
    if part == 0:
        nt = half
        a(f'v_add_f32 v{t+2}, {fl(16*nt)}, v{I}'); a(f'v_mul_f32 v{t+2}, {fl(1/32)}, v{t+2}')
        a(f'v_mul_f32 v{t+3}, 4.0, v{G}'); a(f'v_mul_f32 v{t+3}, v{t+3}, v{t+2}')
        for p in range(4):
            for e in range(2):
                j = 2 * p + e; cj = (j & 3) + 16 * (j >> 2)
                a(f'v_mov_b32 v{T+e}, {fl(cj)}'); a(f'v_fma_f32 v{T+e}, v{t+2}, v{T+e}, v{t+3}'); trig_pair(a, T + e, T + 2 + e, T + 4 + e)
            d = B2_F32 + 12 * nt + p
            a(f'v_cvt_pk_bf16_f32 v{d}, v{T+2}, v{T+3}'); a(f'v_cvt_pk_bf16_f32 v{d+4}, v{T+4}, v{T+5}'); a(f'v_cvt_pk_bf16_f32 v{d+8}, -v{T+4}, -v{T+5}')
    elif part == 1:
        kap = half
        a(f'v_cvt_f32_u32 v{t+2}, v2'); a(f'v_mul_f32 v{t+2}, {fl(16)}, v{t+2}'); a(f'v_add_f32 v{t+2}, v{t+2}, v{I}'); a(f'v_mul_f32 v{t+2}, {fl(1/64)}, v{t+2}')
        a(f'v_mul_f32 v{t+3}, {fl(8)}, v{G}'); a(f'v_mul_f32 v{t+3}, v{t+3}, v{t+2}')
        for p in range(4):
            for e in range(2):
                j = 2 * p + e
                a(f'v_mov_b32 v{T+e}, {fl(32*kap + j)}'); a(f'v_fma_f32 v{T+e}, v{t+2}, v{T+e}, v{t+3}'); a(f'v_fract_f32 v{T+e}, v{T+e}'); trig_pair(a, T + e, T + 2 + e, T + 4 + e)
            d = B2_F64 + 12 * kap + p
            a(f'v_cvt_pk_bf16_f32 v{d}, v{T+2}, v{T+3}'); a(f'v_cvt_pk_bf16_f32 v{d+4}, v{T+4}, v{T+5}'); a(f'v_cvt_pk_bf16_f32 v{d+8}, -v{T+4}, -v{T+5}')
    else:
        nt = half
        a(f'v_cvt_f32_u32 v{t+2}, v2'); a(f'v_mul_f32 v{t+2}, {fl(16)}, v{t+2}'); a(f'v_mul_f32 v{t+3}, 4.0, v{G}')
        a(f'v_add_f32 v{T}, {fl(16*nt)}, v{I}'); a(f'v_mul_f32 v{T}, {fl(1/2048)}, v{T}'); a(f'v_add_f32 v{T+1}, v{t+2}, v{t+3}')
        for r in range(4):
            a(f'v_add_f32 v{T+2}, {fl(r)}, v{T+1}'); a(f'v_mul_f32 v{T+2}, v{T+2}, v{T}'); trig_pair(a, T + 2, B2_TW1 + 4 * nt + r, B2_TW1 + 8 + 4 * nt + r)
        a(f'v_add_f32 v{T}, v{t+2}, v{I}'); a(f'v_mul_f32 v{T}, {fl(1/2048)}, v{T}'); a(f'v_add_f32 v{T+1}, {fl(16*nt)}, v{t+3}')
        for r in range(4):
            a(f'v_add_f32 v{T+2}, {fl(r)}, v{T+1}'); a(f'v_mul_f32 v{T+2}, v{T+2}, v{T}'); trig_pair(a, T + 2, B2_TW2 + 4 * nt + r, B2_TW2 + 8 + 4 * nt + r)

def phase1_B(a):
    a.label('L_B_p1')
    a.vm_reset()
    a('s_setprio 3')
    a('v_lshrrev_b32 v4, 3, v3'); a('v_lshlrev_b32 v4, 10, v4'); a('v_and_b32 v5, 7, v3'); a('v_lshrrev_b32 v6, 4, v3')
    a('v_xor_b32 v5, v5, v6'); a('v_lshlrev_b32 v5, 4, v5'); a('v_add_u32 v16, v4, v5'); a('v_xor_b32 v17, 64, v16'); a('v_add_u32 v17, 8192, v17')
    a('v_lshrrev_b32 v4, 4, v3'); a('v_bfe_u32 v5, v3, 2, 2'); a('v_xor_b32 v5, v5, v4'); a('v_lshrrev_b32 v6, 1, v5'); a('v_add_u32 v6, 1, v6'); a('v_lshlrev_b32 v6, 10, v6')
    a('v_and_b32 v5, 1, v5'); a('v_lshl_add_u32 v6, v5, 6, v6'); a('v_and_b32 v5, 3, v3'); a('v_lshl_add_u32 v6, v5, 4, v6')
    a('v_lshl_add_u32 v4, v2, 4, v4'); a('v_mul_u32_u24 v4, 3072, v4'); a('v_add_u32 v18, v4, v6')
    a('v_lshrrev_b32 v4, 3, v3'); a('v_bfe_u32 v5, v3, 4, 1'); a('v_lshlrev_b32 v5, 2, v5'); a('v_and_b32 v6, 7, v3'); a('v_xor_b32 v5, v5, v6'); a('v_lshlrev_b32 v5, 4, v5')
    a('v_lshl_add_u32 v4, v2, 4, v4'); a('v_mul_u32_u24 v4, 3072, v4'); a('v_add_u32 v19, v4, v5')
    setup_srds(a)
    sXROW, sWOFF, sT2, sT3, sROT = 48, 49, 50, 51, 58
    a(f's_lshl_b32 s{sXROW}, s{sTB}, 6'); a(f's_lshl_b32 s52, s{sR}, 4'); a(f's_add_u32 s{sXROW}, s{sXROW}, s52'); a(f's_lshl_b32 s{sXROW}, s{sXROW}, 10')
    a(f's_lshl_b32 s{sWOFF}, s{sHP}, 7'); a(f's_lshl_b32 s{sT2}, s{sR}, 11'); a(f's_lshl_b32 s{sT3}, s{sR}, 12')
    if 'norot' in DG: a(f's_mov_b32 s{sROT}, 0')
    else: a(f's_lshr_b32 s{sROT}, s2, 3')
    def dma_x(st):
        a(f's_add_u32 s52, s{sROT}, {st}'); a('s_and_b32 s52, s52, 7'); a('s_lshl_b32 s53, s52, 7'); a(f's_add_u32 s53, s53, s{sXROW}')
        for q in range(2):
            a(f's_add_u32 m0, s{sT2}, {XL + st*8192 + q*1024}'); a('s_nop 0')
            a.vmem(f'buffer_load_dwordx4 v{16+q}, s[{X}:{X+3}], s53 offen lds', f'x{st}')
    def dma_w(n):
        slot = WL + (n % 3) * WSLOT
        a(f's_add_u32 s52, s{sROT}, {n}'); a('s_and_b32 s52, s52, 7'); a(f's_mul_i32 s52, s52, {64*3072}'); a(f's_add_u32 s52, s52, s{sWOFF}')
        for u in range(4):
            a(f's_add_u32 m0, s{sT3}, {slot + u*1024}'); a(f's_add_u32 s53, s52, {4*u*3072}')
            a.vmem(f'buffer_load_dwordx4 v18, s[{WQ}:{WQ+3}], s53 offen lds', f'w{n}')
        for u in range(2):
            a(f's_add_u32 m0, s{sT2}, {slot + 16384 + u*1024}'); a(f's_add_u32 s53, s52, {8*u*3072}')
            a.vmem(f'buffer_load_dwordx4 v19, s[{WQ}:{WQ+3}], s53 offen lds', f'w{n}')
    stp(a, 'boot', 3)
    dma_x(0); dma_w(0); dma_x(1); dma_w(1)
    for n in range(8):
        a.vm_wait(f'w{n}'); a('s_barrier')
        if n == 0:
            stp(a, 'main', 1); dma_x(2); dma_x(3); dma_w(2)
            for x in range(4, 8): dma_x(x)
        if 1 <= n <= 5: dma_w(n + 2)
    stp(a, 'main', 2); stp(a, 'mid', 1)
    a('s_setprio 0')
    for part in range(3):
        for half in range(2): b2_consts(a, part, half)
    stp(a, 'main', 2); stp(a, 'mid', 1)
    lds_get(a, C_TOK, sTOK, 4)

def gen_b2(a):
    G, I, VWR, VRD = 4, 5, 6, 7
    F32 = tuple((B2_F32 + 12 * nt, B2_F32 + 12 * nt + 4, B2_F32 + 12 * nt + 8) for nt in range(2))
    F64 = tuple((B2_F64 + 12 * k, B2_F64 + 12 * k + 4, B2_F64 + 12 * k + 8) for k in range(2))
    TW1C, TW1S, TW2C, TW2S = B2_TW1, B2_TW1 + 8, B2_TW2, B2_TW2 + 8
    VU, VW, T = 8, 9, 10

    FR = 16; ACC = 48; ARE, AIM = 64, 68; WR, WI = 72, 76; WC, WS_ = 16, 24; PK = 80
    bp = int(os.environ.get('B2PRIO', '3'))
    a('s_and_b32 s48, s2, 7'); a('s_lshl_b32 s48, s48, 5'); a('s_lshr_b32 s49, s2, 3'); a(f's_add_u32 s{sPOS}, s48, s49'); a(f's_mov_b32 s{sXT}, 0')
    a(f'v_lshrrev_b32 v{G}, 4, v3'); a(f'v_and_b32 v{I}, 15, v3'); a(f'v_lshl_add_u32 v{VU}, v{G}, 6, v{I}'); a(f's_movk_i32 s48, {BLK}')
    a(f'v_mul_lo_u32 v{VU}, v{VU}, s48'); a(f'v_mul_lo_u32 v{VW}, v3, s48')
    a(f'v_mul_u32_u24 v{VRD}, 144, v{I}'); a(f'v_lshl_add_u32 v{VWR}, v{G}, 3, v{VRD}'); a(f'v_lshl_add_u32 v{VWR}, v2, 5, v{VWR}'); a(f'v_lshl_add_u32 v{VRD}, v{G}, 4, v{VRD}')
    if 'nob2' in DG:
        lds_wait(a, C_DONE, 8, 8, sleep=16); finish(a)
    sSH = 57
    a(f's_and_b32 s{sSH}, s2, 1')
    a('v_lshl_add_u32 v14, v2, 6, v3')
    a('v_lshrrev_b32 v10, 1, v14'); a('v_lshlrev_b32 v11, 5, v10'); a('v_lshrrev_b32 v10, 3, v10'); a('v_lshl_add_u32 v11, v10, 4, v11')
    a('v_and_b32 v10, 1, v14'); a('v_lshl_add_u32 v11, v10, 4, v11'); a(f'v_add_u32 v15, {EXC}, v11')
    a('v_and_b32 v11, 15, v3'); a('v_lshrrev_b32 v12, 2, v11'); a('v_mul_u32_u24 v12, 576, v12'); a('v_and_b32 v11, 3, v11'); a('v_lshlrev_b32 v11, 3, v11')
    a('v_lshrrev_b32 v13, 4, v3'); a('v_lshlrev_b32 v13, 5, v13'); a('v_add3_u32 v11, v11, v12, v13'); a('v_lshl_add_u32 v11, v2, 7, v11'); a(f'v_add_u32 v16, {WPR}, v11')
    a('v_lshlrev_b32 v17, 4, v14'); a(f'v_subrev_u32 v18, s{sSH}, v14'); a('v_lshlrev_b32 v18, 5, v18')
    a(f's_mul_i32 s54, s2, {BLK}'); a(f's_add_u32 s55, s54, {U1}'); a(f's_add_u32 s56, s54, {WT}')
    lds_wait(a, C_CX, 8, 10, sleep=1)
    lds_wait(a, C_A0, 8, 10, sleep=2)
    a('s_setprio 3')
    a('ds_read_b128 v[20:23], v15'); a('ds_read_b128 v[24:27], v15 offset:4352')
    for rho in range(4): a(f'ds_read_b64_tr_b16 {vr(28+2*rho,2)}, v16 offset:{rho*2304}')
    a('s_waitcnt lgkmcnt(0)')
    a(f'buffer_store_dwordx4 v[20:23], v17, s[{WS}:{WS+3}], s55 offen sc1'); a('s_add_u32 s53, s55, 4096')
    a(f'buffer_store_dwordx4 v[24:27], v17, s[{WS}:{WS+3}], s53 offen sc1')
    skip = L('sh')
    a(f's_cmp_eq_u32 s{sSH}, 0'); a(f's_cbranch_scc1 {skip}'); a(f's_cmp_lg_u32 s{sR}, 0'); a(f's_cbranch_scc1 {skip}'); a('s_mov_b32 exec_lo, 0xfffffffe')
    a.label(skip)
    a(f'buffer_store_dwordx4 v[28:31], v18, s[{WS}:{WS+3}], s56 offen sc1'); a(f'buffer_store_dwordx4 v[32:35], v18, s[{WS}:{WS+3}], s56 offen offset:16 sc1')
    a('s_mov_b64 exec, -1')
    skip = L('nyq')
    a(f's_cmp_lg_u32 s{sR}, 0'); a(f's_cbranch_scc1 {skip}')
    a(f's_cmp_eq_u32 s{sSH}, 0'); a('s_cselect_b32 exec_lo, 0xffff, -1'); a('s_mov_b32 exec_hi, 0')
    a('v_and_b32 v10, 15, v3'); a('v_lshrrev_b32 v12, 4, v3'); a('v_mul_u32_u24 v11, 576, v10'); a('v_lshl_add_u32 v11, v12, 1, v11'); a(f'v_add_u32 v11, {WPR+512}, v11'); a('ds_read_u16 v36, v11')
    a(f'v_add_u32 v12, 256, v12'); a(f'v_subrev_u32 v12, s{sSH}, v12'); a('v_lshlrev_b32 v12, 5, v12'); a('v_lshl_add_u32 v12, v10, 1, v12')
    a('s_waitcnt lgkmcnt(0)')
    a(f'buffer_store_short v36, v12, s[{WS}:{WS+3}], s56 offen sc1')
    a('s_mov_b64 exec, -1')
    a.label(skip)
    a('s_waitcnt vmcnt(0)')
    def pub_u():
        tree_arrive(a, W_H1, W_TOP, W_GO1, 32, 12); a('s_mov_b64 exec, 1')
    lds_arrive(a, C_U, 4, pub_u, 10)
    a('s_setprio 0')
    a('v_lshrrev_b32 v10, 3, v3'); a('v_and_b32 v11, 6, v10'); a('v_and_b32 v12, 7, v3'); a('v_xor_b32 v11, v11, v12'); a('v_lshlrev_b32 v11, 4, v11'); a('v_lshl_add_u32 v13, v10, 10, v11')
    a('s_lshr_b32 s48, s2, 5'); a('s_lshl_b32 s48, s48, 7'); a(f's_lshl_b32 s49, s{sR}, 17'); a('s_add_u32 s48, s48, s49'); a(f's_lshl_b32 s49, s{sR}, 14')
    WOB = int(os.environ.get('WOB', '2'))
    for q in range(16):
        a(f's_add_u32 m0, s49, {WOL + q*1024}'); a(f's_add_u32 s50, s48, {q*8192}')
        a(f'buffer_load_dwordx4 v13, s[{WO}:{WO+3}], s50 offen lds')
        if q % WOB == WOB - 1: a('s_waitcnt vmcnt(0)')
    a('s_waitcnt vmcnt(0)'); lds_add(a, C_WO, 10)
    if 'touch' in DG:
        skip = L('tch')
        a(f's_cmp_lg_u32 s{sW}, 10'); a(f's_cbranch_scc1 {skip}')
        a('s_and_b32 s48, s2, 7'); a('s_lshl_b32 s48, s48, 2'); a('s_bfe_u32 s49, s2, 0x20003'); a('s_add_u32 s48, s48, s49'); a('s_lshl_b32 s48, s48, 10')
        a('s_lshr_b32 s49, s2, 5'); a('s_lshl_b32 s49, s49, 18'); a('s_add_u32 s48, s48, s49'); a(f's_add_u32 s48, s48, {OF}')
        for q in range(8):
            a(f's_add_u32 s49, s48, {q*32768}'); a(f'buffer_load_dwordx4 v[20:23], v1, s[{WS}:{WS+3}], s49 offen sc1'); a('s_waitcnt vmcnt(0)')
        a.label(skip)
    one_wave(a, 8, lambda: poll_go(a, W_GO1, T), C_H1, T, sleep=4)
    lds_wait(a, C_Q, 4, T)
    stp(a, 'mid', 2); stp(a, 'b2', 1)
    a.label('L_b2')
    a.vm_reset()
    a(f's_lshl_b32 s48, s{sPOS}, 5'); a(f's_mul_i32 s49, s{sR}, {16*BLK}'); a('s_add_u32 s49, s49, s48')
    a(f's_add_u32 s50, s49, {U1}'); a(f's_add_u32 s52, s49, {ZT}')
    a(f's_mul_i32 s51, s{sR}, {64*BLK}'); a('s_add_u32 s51, s51, s48'); a(f's_add_u32 s51, s51, {WT}')
    a.vmem(f'buffer_load_dwordx4 {vr(ARE,4)}, v{VU}, s[{WS}:{WS+3}], s50 offen sc1', 'u'); a.vmem(f'buffer_load_dwordx4 {vr(AIM,4)}, v{VU}, s[{WS}:{WS+3}], s50 offen offset:16 sc1', 'u')
    acc = lambda nt, c: ACC + 8 * nt + 4 * c
    def cmul(nt, cre, sim, sign):
        for hh in range(2):
            for e in range(2):
                re = acc(nt, 0) + 2 * hh + e; im = acc(nt, 1) + 2 * hh + e; c = cre + 4 * nt + 2 * hh + e; s = sim + 4 * nt + 2 * hh + e
                a(f'v_mul_f32 v{T+e}, v{re}, v{c}'); a(f'v_mul_f32 v{T+2+e}, v{im}, v{c}')
                a(f'v_fma_f32 v{T+e}, ' + ('-' if sign > 0 else '') + f'v{im}, v{s}, v{T+e}')
                a(f'v_fma_f32 v{T+2+e}, ' + ('-' if sign < 0 else '') + f'v{re}, v{s}, v{T+2+e}')
            yield hh
    def group_sync():
        a('s_waitcnt lgkmcnt(0)'); lds_add(a, C_X, 12); a('s_setprio 0'); a(f's_add_u32 s{sXT}, s{sXT}, 4'); lds_wait(a, C_X, f's{sXT}', 12, sleep=1)
        if bp: a(f's_setprio {bp}')
    def twiddle_to_lds(cre, sim, sign, ldsbase):
        a(f'v_add_u32 v14, {ldsbase}, v{VWR}')
        for nt in range(2):
            for hh in cmul(nt, cre, sim, sign):
                a(f'v_cvt_pk_bf16_f32 v{PK+4*nt+hh}, v{T}, v{T+1}'); a(f'v_cvt_pk_bf16_f32 v{PK+4*nt+2+hh}, v{T+2}, v{T+3}')
            a(f'ds_write_b64 v14, {vr(PK+4*nt,2)} offset:{nt*2304}'); a(f'ds_write_b64 v14, {vr(PK+4*nt+2,2)} offset:{4608 + nt*2304}')
    fr = lambda c, nt, kap: FR + 16 * c + 8 * nt + 4 * kap
    def read_frags(ldsbase):
        a(f'v_add_u32 v15, {ldsbase}, v{VRD}')
        for nt in range(2):
            for kap in range(2):
                for c in range(2):
                    a(f'ds_read_b128 {vr(fr(c,nt,kap),4)}, v15 offset:{c*4608 + nt*2304 + kap*64}')
    a.vm_wait('u')
    stp(a, 'mid', 3); stp(a, 'b2', 2)
    if bp: a(f's_setprio {bp}')
    for nt in range(2):
        C, S_, nS = F32[nt]
        a(f'{M16} {vr(acc(nt,0),4)}, {vr(ARE,4)}, {vr(C,4)}, 0'); a(f'{M16} {vr(acc(nt,1),4)}, {vr(AIM,4)}, {vr(C,4)}, 0')
    for nt in range(2):
        C, S_, nS = F32[nt]
        a(f'{M16} {vr(acc(nt,0),4)}, {vr(AIM,4)}, {vr(S_,4)}, {vr(acc(nt,0),4)}'); a(f'{M16} {vr(acc(nt,1),4)}, {vr(ARE,4)}, {vr(nS,4)}, {vr(acc(nt,1),4)}')
    twiddle_to_lds(TW1C, TW1S, -1, BEX0)
    a.vmem(f'buffer_load_dwordx4 {vr(WR,4)}, v{VW}, s[{WS}:{WS+3}], s51 offen sc1', 'w'); a.vmem(f'buffer_load_dwordx4 {vr(WI,4)}, v{VW}, s[{WS}:{WS+3}], s51 offen offset:16 sc1', 'w')
    group_sync()
    stp(a, 'b2', 3)
    read_frags(BEX0)
    a('s_waitcnt lgkmcnt(0)')
    for kap in range(2):
        C, S_, nS = F64[kap]
        for nt in range(2):
            a(f'{M16} {vr(acc(nt,0),4)}, {vr(C,4)}, {vr(fr(0,nt,kap),4)}, ' + ('0' if kap == 0 else vr(acc(nt,0),4)))
            a(f'{M16} {vr(acc(nt,1),4)}, {vr(C,4)}, {vr(fr(1,nt,kap),4)}, ' + ('0' if kap == 0 else vr(acc(nt,1),4)))
        for nt in range(2):
            a(f'{M16} {vr(acc(nt,0),4)}, {vr(S_,4)}, {vr(fr(1,nt,kap),4)}, {vr(acc(nt,0),4)}')
            a(f'{M16} {vr(acc(nt,1),4)}, {vr(nS,4)}, {vr(fr(0,nt,kap),4)}, {vr(acc(nt,1),4)}')
    a.vm_wait('w'); a('s_nop 3')
    for q in range(4):
        a(f'v_lshlrev_b32 v{WC+2*q}, 16, v{WR+q}'); a(f'v_and_b32 v{WC+2*q+1}, 0xffff0000, v{WR+q}')
        a(f'v_lshlrev_b32 v{WS_+2*q}, 16, v{WI+q}'); a(f'v_and_b32 v{WS_+2*q+1}, 0xffff0000, v{WI+q}')
    special, joined = L('pk0'), L('pk0j')
    a(f's_cmp_eq_u32 s{sPOS}, 0'); a(f's_cbranch_scc1 {special}')
    twiddle_to_lds(WC, WS_, +1, BEX1)
    a(f's_branch {joined}')
    a.label(special)
    W2 = PK; M = 32
    a('s_add_u32 s51, s51, 8192')
    a(f'buffer_load_dwordx4 {vr(W2,4)}, v{VW}, s[{WS}:{WS+3}], s51 offen sc1'); a(f'buffer_load_dwordx4 {vr(W2+4,4)}, v{VW}, s[{WS}:{WS+3}], s51 offen offset:16 sc1')
    a(f'v_lshlrev_b32 v14, 2, v{I}'); a('v_lshl_add_u32 v14, v2, 11, v14'); a(f'v_lshl_add_u32 v14, v{G}, 9, v14')
    a(f'v_add_u32 v15, {BEX1}, v14')
    a('s_mov_b32 s48, 0x05040100'); a('s_mov_b32 s49, 0x07060302')
    a('s_waitcnt vmcnt(0)')
    for nt in range(2):
        for r in range(4):
            jj = 4 * nt + r; q = jj >> 1; sel = 's49' if jj & 1 else 's48'; off = 64 * nt + 128 * r
            a(f'v_cvt_pk_bf16_f32 v{M}, v{acc(nt,0)+r}, v{acc(nt,1)+r}'); a(f'v_perm_b32 v{M+1}, v{WI+q}, v{WR+q}, {sel}'); a(f'v_perm_b32 v{M+2}, v{W2+4+q}, v{W2+q}, {sel}')
            a(f'ds_write_b32 v15, v{M} offset:{WPR - BEX1 + off}'); a(f'ds_write_b32 v15, v{M+1} offset:{EXC - BEX1 + off}'); a(f'ds_write_b32 v15, v{M+2} offset:{off}')
            a('s_nop 0')
    group_sync()
    for nt in range(2):
        for r in range(4):
            jj = 4 * nt + r; q = jj >> 1; off = 64 * nt + 128 * r
            xr, xi = acc(nt, 0) + r, acc(nt, 1) + r; a0, b0 = WC + jj, WS_ + jj
            a(f'v_sub_u32 v{M}, {8192 - off}, v14'); a(f'v_and_b32 v{M}, 8191, v{M}'); a(f'v_add_u32 v{M}, {BEX1}, v{M}')
            a(f'ds_read_b32 v{M+1}, v{M} offset:{WPR - BEX1}'); a(f'ds_read_b32 v{M+2}, v{M} offset:{EXC - BEX1}'); a(f'ds_read_b32 v{M+3}, v{M}')
            if jj & 1: a(f'v_and_b32 v{M+4}, 0xffff0000, v{W2+q}'); a(f'v_and_b32 v{M+5}, 0xffff0000, v{W2+4+q}')
            else:      a(f'v_lshlrev_b32 v{M+4}, 16, v{W2+q}'); a(f'v_lshlrev_b32 v{M+5}, 16, v{W2+4+q}')
            a('s_waitcnt lgkmcnt(0)')
            a(f'v_lshlrev_b32 v{M+6}, 16, v{M+1}'); a(f'v_and_b32 v{M+7}, 0xffff0000, v{M+1}')
            a(f'v_lshlrev_b32 v{M+8}, 16, v{M+2}'); a(f'v_and_b32 v{M+9}, 0xffff0000, v{M+2}')
            a(f'v_lshlrev_b32 v{M+10}, 16, v{M+3}'); a(f'v_and_b32 v{M+11}, 0xffff0000, v{M+3}')
            a(f'v_add_f32 v{M+8}, v{a0}, v{M+8}'); a(f'v_sub_f32 v{M+9}, v{b0}, v{M+9}')
            a(f'v_add_f32 v{M+10}, v{M+4}, v{M+10}'); a(f'v_sub_f32 v{M+11}, v{M+5}, v{M+11}')
            a(f'v_add_f32 v{M+1}, v{M+8}, v{M+10}'); a(f'v_add_f32 v{M+2}, v{M+9}, v{M+11}')
            a(f'v_sub_f32 v{M+3}, v{M+8}, v{M+10}'); a(f'v_sub_f32 v{M+4}, v{M+9}, v{M+11}')
            a(f'v_mul_f32 v{M+8}, v{M+1}, v{xr}'); a(f'v_mul_f32 v{M+9}, v{M+1}, v{xi}')
            a(f'v_fma_f32 v{M+8}, -v{M+2}, v{xi}, v{M+8}'); a(f'v_fma_f32 v{M+9}, v{M+2}, v{xr}, v{M+9}')
            a(f'v_fma_f32 v{M+8}, v{M+3}, v{M+6}, v{M+8}'); a(f'v_fma_f32 v{M+9}, v{M+4}, v{M+6}, v{M+9}')
            a(f'v_fma_f32 v{M+8}, v{M+4}, v{M+7}, v{M+8}'); a(f'v_fma_f32 v{M+9}, -v{M+3}, v{M+7}, v{M+9}')
            a(f'v_mul_f32 v{xr}, {fl(0.125)}, v{M+8}'); a(f'v_mul_f32 v{xi}, {fl(0.125)}, v{M+9}')
    group_sync()
    a(f'v_add_u32 v14, {BEX1}, v{VWR}')
    for nt in range(2):
        for hh in range(2):
            a(f'v_cvt_pk_bf16_f32 v{PK+4*nt+hh}, v{acc(nt,0)+2*hh}, v{acc(nt,0)+2*hh+1}'); a(f'v_cvt_pk_bf16_f32 v{PK+4*nt+2+hh}, v{acc(nt,1)+2*hh}, v{acc(nt,1)+2*hh+1}')
        a(f'ds_write_b64 v14, {vr(PK+4*nt,2)} offset:{nt*2304}'); a(f'ds_write_b64 v14, {vr(PK+4*nt+2,2)} offset:{4608 + nt*2304}')
    a.label(joined)
    group_sync()
    stp(a, 'b2', 4)
    read_frags(BEX1)
    a('s_waitcnt lgkmcnt(0)')
    for kap in range(2):
        C, S_, nS = F64[kap]
        for nt in range(2):
            a(f'{M16} {vr(acc(nt,0),4)}, {vr(fr(0,nt,kap),4)}, {vr(C,4)}, ' + ('0' if kap == 0 else vr(acc(nt,0),4)))
            a(f'{M16} {vr(acc(nt,1),4)}, {vr(fr(1,nt,kap),4)}, {vr(C,4)}, ' + ('0' if kap == 0 else vr(acc(nt,1),4)))
        for nt in range(2):
            a(f'{M16} {vr(acc(nt,0),4)}, {vr(fr(1,nt,kap),4)}, {vr(nS,4)}, {vr(acc(nt,0),4)}')
            a(f'{M16} {vr(acc(nt,1),4)}, {vr(fr(0,nt,kap),4)}, {vr(S_,4)}, {vr(acc(nt,1),4)}')
    RRE, RIM = ARE, AIM
    for nt in range(2):
        for hh in cmul(nt, TW2C, TW2S, +1):
            a(f'v_cvt_pk_bf16_f32 v{RRE+2*nt+hh}, v{T}, v{T+1}'); a(f'v_cvt_pk_bf16_f32 v{RIM+2*nt+hh}, v{T+2}, v{T+3}')
    for mt in range(2):
        C, S_, nS = F32[mt]
        a(f'{M16} {vr(acc(mt,0),4)}, {vr(C,4)}, {vr(RRE,4)}, 0'); a(f'{M16} {vr(acc(mt,1),4)}, {vr(C,4)}, {vr(RIM,4)}, 0')
    for mt in range(2):
        C, S_, nS = F32[mt]
        a(f'{M16} {vr(acc(mt,0),4)}, {vr(nS,4)}, {vr(RIM,4)}, {vr(acc(mt,0),4)}'); a(f'{M16} {vr(acc(mt,1),4)}, {vr(S_,4)}, {vr(RRE,4)}, {vr(acc(mt,1),4)}')
    for c in range(2):
        for mt in range(2):
            for hh in range(2):
                a(f'v_cvt_pk_bf16_f32 v{PK+4*c+2*mt+hh}, v{acc(mt,c)+2*hh}, v{acc(mt,c)+2*hh+1}')
    a('s_setprio 0')
    a(f'buffer_store_dwordx4 {vr(PK,4)}, v{VU}, s[{WS}:{WS+3}], s52 offen sc1'); a(f'buffer_store_dwordx4 {vr(PK+4,4)}, v{VU}, s[{WS}:{WS+3}], s52 offen offset:16 sc1')
    a('s_waitcnt vmcnt(0)')
    stp(a, 'b2', 5)
    def pub_z():
        tree_arrive(a, W_H3, W_TOP + 128, W_GO3, 32, 12); a('s_mov_b64 exec, 1')
    lds_arrive(a, C_H3, 4, pub_z, 10, mod4=True)
    if 'wb' in DG:
        skip = L('wb')
        a('s_lshr_b32 s48, s2, 3'); a(f's_or_b32 s48, s48, s{sR}'); a('s_cmp_lg_u32 s48, 0'); a(f's_cbranch_scc1 {skip}')
        a('buffer_wbl2 sc1'); a('s_waitcnt vmcnt(0)')
        a.label(skip)
    stp(a, 'main', 3); stp(a, 'b2', 6)

AQ, AKB, AVB, AS, AO, AP, AE, AvV, AT0, AvC, AvOne, AvF, AvR = 4, (8, 12), (16, 24), (32, 48), 64, 80, 88, 94, 95, 96, 97, 98, 99
sK, sV, sC, sLK, sLV, sBIG, sVM, sKM, sIT, sEP = 48, 49, 50, 51, 52, 58, 60, 62, 64, 65
def att_ids(a):
    a('s_and_b32 s60, s2, 7'); a('s_lshl_b32 s60, s60, 2'); a('s_bfe_u32 s61, s2, 0x20003'); a('s_add_u32 s60, s60, s61')
    a('s_lshr_b32 s61, s2, 5'); a('s_lshl_b32 s61, s61, 3'); a(f's_add_u32 s61, s61, s{sW}')
    a('s_lshl_b32 s53, s60, 16')
    a(f's_lshr_b32 s62, s{sW}, 1'); a(f's_and_b32 s63, s{sW}, 1')
    a(f's_lshl_b32 s{sLK}, s62, 10'); a('s_lshl_b32 s64, s63, 9'); a(f's_add_u32 s{sLK}, s{sLK}, s64')
    a(f's_lshl_b32 s{sLV}, s62, 11'); a('s_lshl_b32 s64, s63, 10'); a(f's_add_u32 s{sLV}, s{sLV}, s64'); a(f's_add_u32 s{sLV}, s{sLV}, {RING + 4096}')
    a(f's_add_u32 s{sK}, s53, s{sLK}'); a(f's_add_u32 s{sV}, s{sK}, {VF}'); a(f's_add_u32 s{sK}, s{sK}, {KF}'); a(f's_add_u32 s{sLK}, s{sLK}, {RING}')
    a('s_lshl_b32 s64, s61, 10'); a('s_add_u32 s54, s53, s64'); a(f's_add_u32 s54, s54, {QF}')
    a('s_lshl_b32 s64, s61, 15'); a('s_lshl_b32 s65, s60, 10'); a('s_add_u32 s55, s64, s65'); a(f's_add_u32 s55, s55, {OF}')
    a('s_lshr_b32 s64, s60, 2'); a('s_lshl_b32 s64, s64, 7'); a(f's_add_u32 s59, s64, {FKVF}')
    a('s_lshr_b32 s65, s2, 5'); a('s_lshl_b32 s65, s65, 4'); a('s_add_u32 s56, s64, s65'); a(f's_add_u32 s56, s56, {FQ}')
    a(f's_mul_i32 s64, s61, {FOS}'); a('s_lshl_b32 s65, s60, 2'); a('s_add_u32 s57, s64, s65'); a(f's_add_u32 s57, s57, {FO}')
    a(f's_mov_b32 s{sBIG}, 0x7ff00000'); a(f's_mov_b32 s{sVM}, 0xffff'); a(f's_mov_b32 s{sVM+1}, 0xffff'); a(f's_mov_b32 s{sKM}, -1'); a(f's_mov_b32 s{sKM+1}, 0')
    a(f's_mov_b32 s{sC}, 0')
def att_dma(slot, guard, partner=False):
    SC = '' if 'nosc1' in DG else ' sc1'
    Ls = []; ko, vo = f's{sK}', f's{sV}'
    if guard:
        Ls += [f's_cmp_lt_u32 s{sC}, 16', f's_cselect_b32 s66, s{sK}, s{sBIG}', f's_cselect_b32 s67, s{sV}, s{sBIG}']; ko, vo = 's66', 's67'
    dk, dv = (2048, 4096) if partner else (0, 0)
    if partner:
        Ls += [f's_add_u32 s66, s{sK}, 2048', f's_add_u32 s67, s{sV}, 2048']; ko, vo = 's66', 's67'
    Ls += [f's_add_u32 s68, s{sLV}, {slot*SLOTB + dv}',
           [f's_add_u32 m0, s{sLK}, {slot*SLOTB + dk}', f's_mov_b64 exec, s[{sKM}:{sKM+1}]', f'buffer_load_dwordx4 v1, s[{WS}:{WS+3}], {ko} offen{SC} lds',
            's_mov_b32 m0, s68', f's_mov_b64 exec, s[{sVM}:{sVM+1}]', f'buffer_load_dwordx4 v{AvV}, s[{WS}:{WS+3}], {vo} offen{SC} lds', 's_mov_b64 exec, -1']]
    if not partner: Ls += [f's_add_u32 s{sK}, s{sK}, 4096', f's_add_u32 s{sV}, s{sV}, 4096', f's_add_u32 s{sC}, s{sC}, 1']
    return Ls
def att_vaddr(a):
    a(f'v_lshrrev_b32 v{AvV}, 5, v3'); a(f'v_lshlrev_b32 v{AvV}, 8, v{AvV}'); a(f'v_and_b32 v{AT0}, 15, v3'); a(f'v_lshl_add_u32 v{AvV}, v{AT0}, 4, v{AvV}')

def gen_attention(a):
    Q, KB, VB, S, O, P, E, vV, T0, vC, vOne, vF, vR = AQ, AKB, AVB, AS, AO, AP, AE, AvV, AT0, AvC, AvOne, AvF, AvR
    a.label('L_att_entry')
    att_ids(a); att_vaddr(a)
    one_wave(a, 0, lambda: poll_kvq(a, 104, 105), C_FKV, 104)
    a(f'buffer_load_dwordx4 {vr(AQ,4)}, v1, s[{WS}:{WS+3}], s54 offen' + ('' if 'nosc1' in DG else ' sc1'))
    for c in range(2):
        emit(a, att_dma(c, False, partner=True)); emit(a, att_dma(c, False))
    stp(a, 'ent', 1)
    a.label('L_att_entry2')
    att_vaddr(a)
    a(f'v_and_b32 v{T0}, 27, v3'); a(f'v_cmp_eq_u32 vcc, 16, v{T0}'); a(f'v_mov_b32 v{E}, 0x3f803f80'); a(f'v_cndmask_b32 v100, 0, v{E}, vcc')
    for i in range(1, 4): a(f'v_mov_b32 v{100+i}, v100')
    a(f'v_add_u32 v{T0}, s{sLV}, v1')
    a(f's_not_b64 exec, s[{sVM}:{sVM+1}]')
    for slot in range(2): a(f'ds_write_b128 v{T0}, v[100:103] offset:{slot*SLOTB}')
    a('s_mov_b64 exec, -1')
    a(f'v_mov_b32 v{vC}, {C_ATT}'); a(f'v_mov_b32 v{vOne}, 1'); a(f's_mov_b32 s{sEP}, 0'); a(f'v_add_u32 v{vR}, {RING}, v1')
    for i in range(8): a(f'v_mov_b32 v{VB[1]+i}, 0')
    for i in range(16): a(f'v_mov_b32 v{O+i}, 0')
    for i in range(8): a(f'v_mov_b32 v{P+i}, 0')
    for i in range(6): a(f'v_mov_b32 v{E+i}, 0')
    stp(a, 'mid', 4); stp(a, 'ent', 2)
    a('s_waitcnt vmcnt(0) lgkmcnt(0)')
    stp(a, 'ent', 3)
    lds_add(a, C_A0, 104); lds_wait(a, C_A0, 8, 104)
    stp(a, 'mid', 5); stp(a, 'ent', 4)
    emit(a, att_dma(2, False))
    a(f's_not_b64 exec, s[{sVM}:{sVM+1}]')
    for slot in range(2, 4): a(f'ds_write_b128 v{T0}, v[100:103] offset:{slot*SLOTB}')
    a('s_mov_b64 exec, -1')
    rdK = lambda t, buf: f'ds_read_b128 {vr(KB[buf],4)}, v{vR} offset:{((t>>2)&3)*SLOTB + (t&3)*1024}'
    rdV = lambda t, buf, j2: f'ds_read_b128 {vr(VB[buf]+4*j2,4)}, v{vR} offset:{((t>>2)&3)*SLOTB + 4096 + (t&3)*2048 + j2*1024}'
    a(rdK(0, 0)); a(rdV(0, 0, 0)); a(rdV(0, 0, 1)); a(rdK(1, 1))
    a('s_waitcnt lgkmcnt(3)')
    a(f'{M32} {vr(S[0],16)}, {vr(KB[0],4)}, {vr(Q,4)}, 0')
    a('s_nop 7'); a('s_nop 3')
    stp(a, 'main', 4); stp(a, 'mid', 6); stp(a, 'ent', 5)
    def body(t, first):
        cur = t & 1; nxt = cur ^ 1; s = S[cur]
        q = [rdK(t + 2, cur), rdV(t + 1, nxt, 0), rdV(t + 1, nxt, 1)]
        pre = [f's_setprio {3 - ((t + 2) & 3)}', 's_waitcnt lgkmcnt(0)']
        if t % 4 == 0:
            w = ['s_waitcnt vmcnt(2)']
            q = q + [w, ['s_mov_b64 exec, 1', f'ds_add_u32 v{vC}, v{vOne}', 's_mov_b64 exec, -1'], f's_add_u32 s{sEP}, s{sEP}, 8']
        if t % 4 == 1:
            q = q + [f'ds_read_b32 v{vF}, v{vC}']
        if t % 4 == 2:
            lab = L('spin'); ok = L('go')
            pre = pre + [f'v_readfirstlane_b32 s70, v{vF}', f's_cmp_ge_u32 s70, s{sEP}', f's_cbranch_scc1 {ok}', f'{lab}:',
                         f's_add_u32 s{sSPIN}, s{sSPIN}, 1', f's_cmp_gt_u32 s{sSPIN}, {SPIN_MAX}', f's_cbranch_scc1 {ok}',
                         f'ds_read_b32 v{vF}, v{vC}', 's_waitcnt lgkmcnt(0)',
                         f'v_readfirstlane_b32 s70, v{vF}', f's_cmp_ge_u32 s70, s{sEP}', f's_cbranch_scc0 {lab}', f'{ok}:']
            q = q + att_dma(((t + 2) // 4 + 2) % 4, not first)
        def e(i):
            a(f'v_exp_f32 v{E + i % 6}, v{s+i}')
            if i >= 3 and q:
                x = q.pop(0); emit(a, [x])
        c = lambda i: a(f'v_cvt_pk_bf16_f32 v{P+i}, v{E + (2*i) % 6}, v{E + (2*i+1) % 6}')
        emit(a, pre)
        a(f'{M32} {vr(S[nxt],16)}, {vr(KB[nxt],4)}, {vr(Q,4)}, 0')
        c(7)
        e(0); e(1); e(2)
        a(f'{M32} {vr(O,16)}, {vr(VB[nxt]+4,4)}, {vr(P+4,4)}, {vr(O,16)}')
        e(3); c(0); e(4); c(1); e(5); e(6); c(2); e(7); e(8); c(3); e(9); e(10)
        a(f'{M32} {vr(O,16)}, {vr(VB[cur],4)}, {vr(P,4)}, {vr(O,16)}')
        c(4); e(11); e(12); c(5); e(13); e(14); c(6); e(15)
        emit(a, q)
    stp(a, 'att', 1); stp(a, 'att2', 1)
    for t in range(16):
        body(t, True)
        if t in (3, 7, 11): stp(a, 'att', 2 + t // 4)
    stp(a, 'att', 5); stp(a, 'att2', 2)
    if SSET == 'att2':
        for it in range(3):
            for t in range(16):
                body(t, False)
                if t == 7 and it < 2: stp(a, 'att2', 3 + 2 * it)
            if it < 2: stp(a, 'att2', 4 + 2 * it)
    else:
        a(f's_mov_b32 s{sIT}, 3')
        a.label('L_att_loop')
        start = len(a.lines)
        for t in range(16): body(t, False)
        tail = [f's_sub_u32 s{sIT}, s{sIT}, 1', f's_cmp_lg_u32 s{sIT}, 0', 's_cbranch_scc1 L_att_loop']
        bodyl = a.lines[start:]
        emit(a, tail)
        extra = check_loop(bodyl + tail)
        assert extra == 0, extra
    stp(a, 'main', 5); stp(a, 'att', 6); stp(a, 'tail', 1)
    a('s_setprio 0')
    lds_add(a, C_DONE, 104)
    a(f'v_cvt_pk_bf16_f32 v{P+7}, v{E + 14 % 6}, v{E + 15 % 6}'); a('s_nop 1')
    a(f'{M32} {vr(O,16)}, {vr(VB[1]+4,4)}, {vr(P+4,4)}, {vr(O,16)}')
    a('s_waitcnt vmcnt(0) lgkmcnt(0)')
    a('s_nop 7'); a('s_nop 3')
    o = O
    a(f'v_mul_f32 v{T0}, 0, v{o}')
    for i in range(1, 8): a(f'v_fma_f32 v{T0}, v{o+i}, 0, v{T0}')
    a(f'v_cmp_eq_f32 s[66:67], 0, v{T0}')
    a(f'v_mov_b32 v{E}, 0x21800000'); a(f'v_cmp_le_f32 s[68:69], v{E}, v{o+8}')
    a('s_nop 1'); a('s_and_b64 s[66:67], s[66:67], s[68:69]')
    a(f'v_mov_b32 v{E}, 0x5d800000'); a(f'v_cmp_ge_f32 s[68:69], v{E}, v{o+8}')
    a('s_nop 1'); a('s_and_b64 s[66:67], s[66:67], s[68:69]')
    a('s_cmp_eq_u64 s[66:67], -1'); a('s_cbranch_scc0 L_att_fallback')
    a.label('L_att_fin')
    a(f'v_rcp_f32 v{T0}, v{o+8}')
    for i in range(8): a(f'v_mul_f32 v{o+i}, v{o+i}, v{T0}')
    for i in range(4): a(f'v_cvt_pk_bf16_f32 v{P+i}, v{o+2*i}, v{o+2*i+1}')
    a(f'buffer_store_dwordx4 {vr(P,4)}, v1, s[{WS}:{WS+3}], s55 offen sc1')
    stp(a, 'tail', 2)
    a('s_waitcnt vmcnt(0)')
    stp(a, 'tail', 3)
    a('s_mov_b64 exec, 1'); a('v_mov_b32 v6, 0'); a(f'v_mov_b32 v7, s{sTOK}'); a(f'buffer_store_dword v7, v6, s[{WS}:{WS+3}], s57 offen sc1'); a('s_mov_b64 exec, -1')
    stp(a, 'tail', 4)
def gen_fallback(a):
    Q, KB, VB, S, O, P, E, vV = AQ, AKB, AVB, AS, AO, AP, AE, AvV
    q = Q; m = E; o = O
    a.label('L_att_fallback')
    a('s_nop 7'); a('s_nop 7')
    a(f's_add_u32 s66, s53, {KF}'); a(f's_add_u32 s67, s53, {VF}')
    a(f'v_mov_b32 v{m}, 0xff800000')
    a(f's_mov_b32 s{sIT}, 64'); a('s_mov_b32 s68, s66')
    a.label('L_fb_max')
    a(f'buffer_load_dwordx4 {vr(KB[0],4)}, v1, s[{WS}:{WS+3}], s68 offen sc1'); a('s_waitcnt vmcnt(0)')
    a(f'{M32} {vr(S[0],16)}, {vr(KB[0],4)}, {vr(q,4)}, 0')
    a('s_nop 7'); a('s_nop 7')
    for i in range(8): a(f'v_max3_f32 v{m}, v{m}, v{S[0]+2*i}, v{S[0]+2*i+1}')
    a('s_add_u32 s68, s68, 1024'); a(f's_sub_u32 s{sIT}, s{sIT}, 1'); a(f's_cmp_lg_u32 s{sIT}, 0'); a('s_cbranch_scc1 L_fb_max')
    a(f'v_mov_b32 v{m+1}, v{m}'); a('s_nop 1'); a(f'v_permlane32_swap_b32 v{m}, v{m+1}'); a('s_nop 1'); a(f'v_max_f32 v{m}, v{m}, v{m+1}')
    for i in range(16): a(f'v_sub_f32 v{S[1]+i}, 0, v{m}')
    for i in range(16): a(f'v_mov_b32 v{o+i}, 0')
    a(f'v_and_b32 v{m}, 27, v3'); a(f'v_cmp_eq_u32 vcc, 16, v{m}'); a(f'v_mov_b32 v{m+1}, 0x3f803f80'); a('s_nop 1'); a(f'v_cndmask_b32 v{m}, 0, v{m+1}, vcc')
    for i in range(8): a(f'v_mov_b32 v{VB[0]+i}, v{m}')
    a(f's_mov_b32 s{sIT}, 64')
    a.label('L_fb_pv')
    a(f'buffer_load_dwordx4 {vr(KB[0],4)}, v1, s[{WS}:{WS+3}], s66 offen sc1')
    a(f's_mov_b64 exec, s[{sVM}:{sVM+1}]')
    a(f'buffer_load_dwordx4 {vr(VB[0],4)}, v{vV}, s[{WS}:{WS+3}], s67 offen sc1'); a(f'buffer_load_dwordx4 {vr(VB[0]+4,4)}, v{vV}, s[{WS}:{WS+3}], s67 offen offset:512 sc1')
    a('s_mov_b64 exec, -1')
    a('s_waitcnt vmcnt(0)'); a('s_nop 7')
    a(f'{M32} {vr(S[0],16)}, {vr(KB[0],4)}, {vr(q,4)}, {vr(S[1],16)}')
    a('s_nop 7'); a('s_nop 7')
    for i in range(16): a(f'v_exp_f32 v{S[0]+i}, v{S[0]+i}')
    a('s_nop 1')
    for i in range(8): a(f'v_cvt_pk_bf16_f32 v{P+i}, v{S[0]+2*i}, v{S[0]+2*i+1}')
    a('s_nop 1')
    a(f'{M32} {vr(o,16)}, {vr(VB[0],4)}, {vr(P,4)}, {vr(o,16)}'); a(f'{M32} {vr(o,16)}, {vr(VB[0]+4,4)}, {vr(P+4,4)}, {vr(o,16)}')
    a('s_nop 7'); a('s_nop 7')
    a('s_add_u32 s66, s66, 1024'); a('s_add_u32 s67, s67, 1024'); a(f's_sub_u32 s{sIT}, s{sIT}, 1'); a(f's_cmp_lg_u32 s{sIT}, 0'); a('s_cbranch_scc1 L_fb_pv')
    a('s_nop 7'); a('s_nop 7')
    a('s_branch L_att_fin')

def phase3_A(a):
    a.vm_reset()
    a('s_and_b32 s48, s2, 7'); a('s_lshr_b32 s49, s2, 3'); a('s_lshl_b32 s50, s48, 2'); a('s_and_b32 s51, s49, 3'); a('s_add_u32 s50, s50, s51')
    a('s_lshr_b32 s51, s49, 2')
    a(f's_mul_i32 s52, s50, {2*FOS}'); a(f's_add_u32 s52, s52, {FO}')
    a('v_lshrrev_b32 v7, 5, v3'); a('v_lshlrev_b32 v7, 10, v7'); a('v_bfe_u32 v8, v3, 4, 1'); a('v_lshlrev_b32 v8, 9, v8'); a('v_and_b32 v9, 15, v3'); a('v_lshlrev_b32 v9, 4, v9')
    a('v_add3_u32 v6, v7, v8, v9'); a('v_and_b32 v7, 1, v2'); a('v_lshl_add_u32 v6, v7, 8, v6')
    a('s_lshl_b32 s53, s50, 1'); a(f's_lshr_b32 s54, s{sR}, 1'); a('s_add_u32 s53, s53, s54'); a('s_lshl_b32 s53, s53, 15'); a(f's_add_u32 s53, s53, {OF}')
    a('v_lshrrev_b32 v7, 5, v3'); a('v_lshlrev_b32 v7, 4, v7'); a('v_bfe_u32 v8, v3, 4, 1'); a('v_lshl_add_u32 v7, v8, 2, v7'); a('v_bfe_u32 v9, v3, 2, 2'); a('v_add_u32 v7, v7, v9')
    a('v_lshlrev_b32 v7, 7, v7'); a('v_and_b32 v9, 2, v9'); a('v_lshl_add_u32 v9, v8, 2, v9')
    a('v_bfe_u32 v8, v3, 1, 1'); a('v_lshl_add_u32 v7, v8, 4, v7'); a('v_and_b32 v8, 1, v3'); a('v_lshl_add_u32 v7, v8, 3, v7')
    for nt in range(4):
        a(f'v_xor_b32 v8, {2*nt}, v9'); a(f'v_lshl_add_u32 v{11+nt}, v8, 4, v7')
    OFR = 16; ACC = 80; WF = (96, 112)
    def reads(ks, buf):
        for nt in range(4):
            for rho in range(2):
                a(f'ds_read_b64_tr_b16 {vr(WF[buf]+4*nt+2*rho,2)}, v{11+nt} offset:{WOL + ks*4096 + rho*1024}')
    if 'nob2' in DG: finish(a)
    lds_wait(a, C_WO, 4, 8, sleep=1)
    reads(0, 0)
    one_wave(a, 0, lambda: poll_flags(a, 's52', 64, 8, 9, hi_stride=FOS, sleep=int(os.environ.get('FOSL', '2'))), C_FO, 8)
    stp(a, 'tail', 5)
    stp(a, 'main', 6)
    a.vm_reset()
    for ks in range(16):
        if ks % 2 == 0: a(f's_add_u32 s54, s53, {(ks>>1)*4096}')
        a.vmem(f'buffer_load_dwordx4 {vr(OFR+4*ks,4)}, v6, s[{WS}:{WS+3}], s54 offen offset:{(ks&1)*2048} sc1', f'o{ks}')
    a('v_and_b32 v7, 15, v3'); a('v_lshlrev_b32 v7, 11, v7'); a('v_lshrrev_b32 v8, 4, v3'); a('v_lshl_add_u32 v7, v8, 3, v7')
    a('s_lshl_b32 s53, s50, 6'); a(f's_lshl_b32 s54, s{sR}, 4'); a('s_add_u32 s53, s53, s54'); a('s_lshl_b32 s53, s53, 11'); a('s_lshl_b32 s54, s51, 7'); a('s_add_u32 s53, s53, s54')
    for ks in range(16):
        buf = ks & 1
        if ks < 15: reads(ks + 1, buf ^ 1); a('s_waitcnt lgkmcnt(8)')
        else: a('s_waitcnt lgkmcnt(0)')
        a.vm_wait(f'o{ks}')
        for nt in range(4):
            a(f'{M16} {vr(ACC+4*nt,4)}, {vr(WF[buf]+4*nt,4)}, {vr(OFR+4*ks,4)}, ' + ('0' if ks == 0 else vr(ACC+4*nt,4)))
    stp(a, 'tail', 6)
    for nt in range(4):
        a(f'v_cvt_pk_bf16_f32 v{96+2*nt}, v{ACC+4*nt}, v{ACC+4*nt+1}'); a(f'v_cvt_pk_bf16_f32 v{97+2*nt}, v{ACC+4*nt+2}, v{ACC+4*nt+3}')
        a(f'buffer_store_dwordx2 {vr(96+2*nt,2)}, v7, s[{OUT}:{OUT+3}], s53 offen offset:{nt*32}' + OSC)
    finish(a)

def phase3_B(a):
    a.vm_reset()
    one_wave(a, 8, lambda: poll_go(a, W_GO3, 4, sleep=8), C_H3W, 4, sleep=8)
    stp(a, 'tail', 5)
    stp(a, 'main', 6)
    a(f's_mul_i32 s48, s2, {BLK}'); a(f's_add_u32 s48, s48, {ZT}'); a(f's_lshl_b32 s49, s{sR}, 11'); a('s_add_u32 s50, s48, s49')
    a(f's_add_u32 m0, s49, {ZL}'); a('s_add_u32 s51, s50, 1024')
    a(f'buffer_load_dwordx4 v1, s[{WS}:{WS+3}], s50 offen sc1 lds')
    a(f's_add_u32 m0, s49, {ZL + 1024}'); a('s_nop 0')
    a(f'buffer_load_dwordx4 v1, s[{WS}:{WS+3}], s51 offen sc1 lds')
    A0, A1, B1T, B2T, TWC, TWS, DRE, DIM, PK, RAW = 16, 20, 32, 48, 64, 80, 96, 112, 128, 24
    lds_wait(a, C_DONE, 8, 8, sleep=16)
    stp(a, 'main', 5)
    T = 12
    a('v_and_b32 v8, 15, v3'); a('v_cvt_f32_u32 v8, v8'); a('v_lshrrev_b32 v9, 5, v3'); a('v_cvt_f32_u32 v9, v9')
    a('v_and_b32 v10, 31, v3'); a('v_cvt_f32_u32 v10, v10')
    a('v_bfe_u32 v11, v3, 4, 1'); a('v_cmp_eq_u32 vcc, 0, v11'); a('v_cndmask_b32 v20, 0, -1, vcc'); a('v_not_b32 v21, v20')
    sc = fl(2.0 ** -19)
    a(f'v_mul_f32 v18, {fl(1/16)}, v8'); a('v_mul_f32 v19, 4.0, v9'); a('v_mul_f32 v19, v19, v18')
    for q in range(4):
        a(f'v_mov_b32 v{T}, {fl(q)}'); a(f'v_fma_f32 v{T}, v18, v{T}, v19'); trig_pair(a, T, T + 1, T + 2)
        a(f'v_mul_f32 v{T+1}, {sc}, v{T+1}'); a(f'v_mul_f32 v{T+2}, {sc}, v{T+2}')
        a(f'v_cvt_pk_bf16_f32 v{T+3}, v{T+1}, -v{T+2}'); a(f'v_cvt_pk_bf16_f32 v{T+4}, v{T+2}, v{T+1}')
        a(f'v_and_b32 v{B1T+q}, v{T+3}, v20'); a(f'v_and_b32 v{B1T+4+q}, v{T+3}, v21'); a(f'v_and_b32 v{B1T+8+q}, v{T+4}, v20'); a(f'v_and_b32 v{B1T+12+q}, v{T+4}, v21')
    a(f'v_mul_f32 v18, {fl(1/32)}, v10'); a('v_mul_f32 v19, 4.0, v9'); a('v_mul_f32 v22, v19, v18')
    for kap in range(2):
        for p in range(4):
            for e in range(2):
                j2 = 2 * p + e; cj = 16 * kap + 8 * (j2 >> 2) + (j2 & 3)
                a(f'v_mov_b32 v{T+e}, {fl(cj)}'); a(f'v_fma_f32 v{T+e}, v18, v{T+e}, v22'); trig_pair(a, T + e, T + 2 + e, T + 4 + e)
            a(f'v_cvt_pk_bf16_f32 v{B2T+4*kap+p}, v{T+2}, v{T+3}'); a(f'v_cvt_pk_bf16_f32 v{B2T+8+4*kap+p}, -v{T+4}, -v{T+5}')
    a(f'v_mul_f32 v18, {fl(1/512)}, v8'); a('v_mul_f32 v22, v19, v18')
    for rho in range(16):
        a(f'v_mov_b32 v{T}, {fl(8*(rho>>2) + (rho&3))}'); a(f'v_fma_f32 v{T}, v18, v{T}, v22'); trig_pair(a, T, TWC + rho, TWS + rho)
    a('v_and_b32 v5, 31, v3'); a('v_lshlrev_b32 v5, 5, v5'); a('v_lshrrev_b32 v6, 5, v3'); a('v_lshl_add_u32 v5, v6, 12, v5'); a('v_lshl_add_u32 v5, v2, 2, v5'); a(f'v_add_u32 v5, {ZL}, v5')
    a('v_lshlrev_b32 v6, 2, v2'); a(f'v_add_u32 v6, {ZL + 16}, v6')
    a('v_and_b32 v8, 1, v3'); a('v_lshlrev_b32 v8, 31, v8'); a('v_or_b32 v8, 0x36000000, v8'); a('v_cmp_gt_u32 vcc, 32, v3'); a('v_cndmask_b32 v7, 0, v8, vcc')
    a('s_waitcnt vmcnt(0) lgkmcnt(0)')
    lds_arrive(a, C_Z, 4, lambda: None, 12); lds_wait(a, C_Z, 4, 12)
    for jj in range(8): a(f'ds_read_b32 v{RAW+jj}, v5 offset:{(jj>>1)*1024 + (jj&1)*16}')
    a('ds_read_b32 v9, v6')
    a('s_mov_b32 s48, 0x05040100'); a('s_mov_b32 s49, 0x07060302')
    a('s_waitcnt lgkmcnt(0)')
    for q in range(4):
        a(f'v_perm_b32 v{A0+q}, v{RAW+2*q+1}, v{RAW+2*q}, s48'); a(f'v_perm_b32 v{A1+q}, v{RAW+2*q+1}, v{RAW+2*q}, s49')
    a('v_lshlrev_b32 v10, 16, v9'); a('v_and_b32 v9, 0xffff0000, v9'); a('v_bfe_u32 v8, v3, 4, 1'); a('v_cmp_eq_u32 vcc, 0, v8'); a('v_cndmask_b32 v9, v9, v10, vcc')
    a(f'{M32} {vr(DRE,16)}, {vr(A0,4)}, {vr(B1T,4)}, 0'); a(f'{M32} {vr(DIM,16)}, {vr(A0,4)}, {vr(B1T+8,4)}, 0')
    a(f'{M32} {vr(DRE,16)}, {vr(A1,4)}, {vr(B1T+4,4)}, {vr(DRE,16)}'); a(f'{M32} {vr(DIM,16)}, {vr(A1,4)}, {vr(B1T+12,4)}, {vr(DIM,16)}')
    a(f'v_fma_f32 v{DRE}, v9, v7, v{DRE}')
    n1 = ' neg_lo:[0,1,0] neg_hi:[0,1,0]'
    for p in range(8):
        re = vr(DRE + 2 * p, 2); im = vr(DIM + 2 * p, 2); c = vr(TWC + 2 * p, 2); s = vr(TWS + 2 * p, 2)
        a(f'v_pk_mul_f32 v[16:17], {re}, {c}'); a(f'v_pk_mul_f32 v[18:19], {im}, {c}')
        a(f'v_pk_fma_f32 v[16:17], {im}, {s}, v[16:17]' + n1); a(f'v_pk_fma_f32 v[18:19], {re}, {s}, v[18:19]')
        a(f'v_cvt_pk_bf16_f32 v{PK+p}, v16, v17'); a(f'v_cvt_pk_bf16_f32 v{PK+8+p}, v18, v19')
    a(f'{M32} {vr(DRE,16)}, {vr(PK,4)}, {vr(B2T,4)}, 0'); a(f'{M32} {vr(DRE,16)}, {vr(PK+4,4)}, {vr(B2T+4,4)}, {vr(DRE,16)}')
    a(f'{M32} {vr(DRE,16)}, {vr(PK+8,4)}, {vr(B2T+8,4)}, {vr(DRE,16)}'); a(f'{M32} {vr(DRE,16)}, {vr(PK+12,4)}, {vr(B2T+12,4)}, {vr(DRE,16)}')
    a('v_and_b32 v7, 31, v3'); a('v_lshlrev_b32 v7, 5, v7'); a('v_lshrrev_b32 v8, 5, v3'); a('v_lshl_add_u32 v5, v8, 4, v7')
    a('s_lshr_b32 s48, s2, 6'); a('s_lshl_b32 s48, s48, 2'); a(f's_and_b32 s49, s{sR}, 1'); a('s_lshl_b32 s49, s49, 1')
    a(f's_lshr_b32 s50, s{sR}, 1'); a('s_lshl_b32 s50, s50, 4'); a('s_add_u32 s48, s48, s49'); a('s_add_u32 s48, s48, s50')
    a('s_lshl_b32 s48, s48, 6'); a('s_and_b32 s49, s2, 63'); a('s_add_u32 s48, s48, s49'); a('s_lshl_b32 s48, s48, 11'); a('s_add_u32 s48, s48, 1024')
    a(f's_add_u32 s49, s48, {64*2048}')
    for r in range(2):
        for p in range(4): a(f'v_cvt_pk_bf16_f32 v{PK+4*r+p}, v{DRE+8*r+2*p}, v{DRE+8*r+2*p+1}')
        a(f'v_permlane32_swap_b32 v{PK+4*r}, v{PK+4*r+2}'); a(f'v_permlane32_swap_b32 v{PK+4*r+1}, v{PK+4*r+3}')
    a(f'buffer_store_dwordx4 {vr(PK,4)}, v5, s[{OUT}:{OUT+3}], s48 offen' + OSC); a(f'buffer_store_dwordx4 {vr(PK+4,4)}, v5, s[{OUT}:{OUT+3}], s49 offen' + OSC)
    finish(a)

def gen_fused():
    a = Asm()
    prologue(a)
    phase1_A(a)
    a('s_branch L_att_entry')
    phase1_C(a)
    gen_attention(a)
    skip = L('cend')
    a(f's_cmp_lt_u32 s{sW}, 4'); a(f's_cbranch_scc1 {skip}')
    finish(a)
    a.label(skip)
    phase3_A(a)
    phase1_B(a)
    gen_b2(a)
    phase3_B(a)
    gen_fallback(a)
    a.label('L_end'); a('s_endpgm')
    a.label('L_code_end')
    return a
```
